```python
import torch

def _softmax(x, axis=-1):
    return torch.softmax(x, dim=axis)
def _gelu(x):
    return torch.nn.functional.gelu(x, approximate="tanh")
def _silu(x):
    return torch.nn.functional.silu(x)
def _sigmoid(x):
    return torch.sigmoid(x)
def _layernorm(x, axis=-1, eps=1e-5):
    m = x.mean(dim=axis, keepdim=True)
    v = x.var(dim=axis, keepdim=True, unbiased=False)
    return (x - m) / torch.sqrt(v + eps)
def _scatter_add(tgt, idx, src, axis=0):
    return tgt.clone().index_add_(axis, idx, src)
def _segment_sum(src, seg, n):
    out = torch.zeros((n,) + src.shape[1:], dtype=src.dtype)
    return out.index_add_(0, seg, src)
def _pad(x, pw):
    flat = tuple(v for pair in reversed(pw) for v in pair)
    return torch.nn.functional.pad(x, flat)

kernel_name = 'recurrent_scan__mha_block_cached__swiglu_ffn__decode'

def setup_inputs():

    _w = (lambda a: (lambda t: t.to(torch.bfloat16) if t.is_floating_point() else t)(torch.as_tensor(a)))
    def _A_setup():
        B, Sq, D = 2, 1, 1024
        H, Sk, Dh = 32, 16384, 128
        return {
            "x": _w((lambda *s: torch.randn(*s, dtype=torch.bfloat16) * 0.05)(B, Sq, D)),
            "k_cache": _w((lambda *s: torch.randn(*s, dtype=torch.bfloat16) * 1.6)(B, H, Sk, Dh)),
            "v_cache": _w((lambda *s: torch.randn(*s, dtype=torch.bfloat16) * 0.2)(B, H, Sk, Dh)),
            "wq": _w((lambda *s: torch.randn(*s, dtype=torch.bfloat16) * 1.6)(D, H * Dh) * (D ** -0.5)),
            "wo": _w((lambda *s: torch.randn(*s, dtype=torch.bfloat16) * 0.2)(H * Dh, D) * ((H * Dh) ** -0.5)),
        }
    _A_in = _A_setup()

    def _B_setup():
        B, S, D, F = 2, 1, 1024, 3584
        return {
            "x": _w((lambda *s: torch.randn(*s, dtype=torch.bfloat16) * 0.05)(B, S, D)),
            "w_gate": _w((lambda *s: torch.randn(*s, dtype=torch.bfloat16) * 0.1)(D, F)),
            "w_up": _w((lambda *s: torch.randn(*s, dtype=torch.bfloat16) * 0.1)(D, F)),
            "w_down": _w((lambda *s: torch.randn(*s, dtype=torch.bfloat16) * 0.1)(F, D)),
        }
    _B_in = _B_setup()

    return {
        "A_x": _A_in["x"],
        "A_k_cache": _A_in["k_cache"],
        "A_v_cache": _A_in["v_cache"],
        "A_wq": _A_in["wq"],
        "A_wo": _A_in["wo"],
        "B_x": _B_in["x"],
        "B_w_gate": _B_in["w_gate"],
        "B_w_up": _B_in["w_up"],
        "B_w_down": _B_in["w_down"],
    }

def reference(A_x, A_k_cache, A_v_cache, A_wq, A_wo, B_x, B_w_gate, B_w_up, B_w_down):
    def _A_ref(x, k_cache, v_cache, wq, wo):
        B, Sq, D = x.shape
        H, Dh = 32, 128
        q = (lambda x, *d: x.permute(*d))((x @ wq).reshape(B, Sq, H, Dh), 0, 2, 1, 3)
        scores = torch.einsum("bhqd,bhkd->bhqk", q, k_cache) * (Dh ** -0.5)
        p = _softmax(scores, axis=-1)
        o = torch.einsum("bhqk,bhkd->bhqd", p, v_cache)
        return (lambda x, *d: x.permute(*d))(o, 0, 2, 1, 3).reshape(B, Sq, H * Dh) @ wo

    def _B_ref(x, w_gate, w_up, w_down):
        g = _silu(x @ w_gate)
        u = x @ w_up
        return (g * u) @ w_down

    x = A_x
    xn = _layernorm(x, axis=-1)
    s = _A_ref(xn, A_k_cache, A_v_cache, A_wq, A_wo)
    g = _silu(_B_ref(xn, B_w_gate, B_w_up, B_w_down))
    return x + s * g
```

```python
import re

TRANS = ("v_exp_f32", "v_log_f32", "v_rcp_f32", "v_rsq_f32", "v_sqrt_f32", "v_sin_f32", "v_cos_f32")

def _regs(op):
    op = op.strip()
    m = re.fullmatch(r"-?\|?([vs])(\d+)\|?", op)
    if m: return [(m.group(1), int(m.group(2)))]
    m = re.fullmatch(r"([vs])\[(\d+):(\d+)\]", op)
    if m: return [(m.group(1), i) for i in range(int(m.group(2)), int(m.group(3)) + 1)]
    if op == "vcc": return [("s", "vcc")]
    if op == "exec": return [("s", "exec")]
    if op == "m0": return [("s", "m0")]
    return []

class I:
    def __init__(self, text):
        self.text = text
        t = text.split(";")[0].strip()
        self.label = t.endswith(":")
        self.op = t.split()[0] if t else ""
        rest = t[len(self.op):].strip()
        ops = []; cur = ""; depth = 0
        for ch in rest:
            if ch == "[": depth += 1
            if ch == "]": depth -= 1
            if ch == "," and depth == 0: ops.append(cur.strip()); cur = ""
            else: cur += ch
        if cur.strip(): ops.append(cur.strip())
        mods = ""
        if ops:
            parts = ops[-1].split(None, 1)
            ops[-1] = parts[0]
            if len(parts) > 1: mods = parts[1]
        self.ops = ops; self.mods = mods
        op = self.op
        self.valu = op.startswith("v_")
        self.mfma = op.startswith("v_mfma")
        self.dpp = ("_dpp" in op) or ("row_" in mods) or ("quad_perm" in mods)
        self.trans = any(op.startswith(x) for x in TRANS)
        self.vmem = op.startswith("buffer_") or op.startswith("global_")
        self.ds = op.startswith("ds_")
        self.salu = op.startswith("s_")
        self.dst = []; self.src = []
        R = [_regs(o) for o in ops]
        if self.valu:
            if op.startswith("v_cmp"):
                self.dst = R[0]; self.src = sum(R[1:], [])
            elif op.startswith("v_permlane") and "swap" in op:
                self.dst = R[0] + R[1]; self.src = R[0] + R[1]
            elif op.startswith("v_readfirstlane") or op.startswith("v_readlane"):
                self.dst = R[0]; self.src = sum(R[1:], [])
            else:
                self.dst = R[0]; self.src = sum(R[1:], [])
                if op.startswith(("v_fmac", "v_dot2c", "v_writelane")) or self.dpp:
                    self.src = self.src + R[0]
                if op.startswith("v_cndmask") and len(ops) == 3:
                    self.src = self.src + [("s", "vcc")]
        elif self.vmem:
            if "load" in op and "lds" not in mods:
                self.dst = R[0]; self.src = sum(R[1:], [])
            elif "atomic" in op and "sc0" in mods:
                self.dst = R[0]; self.src = sum(R[1:], [])
            else:
                self.src = sum(R, [])
        elif self.ds:
            if op.startswith("ds_read") or "rtn" in op or op.startswith("ds_bpermute"):
                self.dst = R[0]; self.src = sum(R[1:], [])
            else:
                self.src = sum(R, [])
        elif self.salu:
            if op.startswith(("s_cmp", "s_cbranch", "s_branch", "s_waitcnt", "s_nop", "s_barrier", "s_sleep", "s_endpgm", "s_setprio")):
                self.src = sum(R, [])
            else:
                self.dst = R[0] if R else []; self.src = sum(R[1:], [])
    def states(self):
        if self.op == "s_nop": return int(self.ops[0]) + 1
        if self.label or not self.op: return 0
        return 1

def needed_gap(prev, cur):
    need = 0
    pd = set(prev.dst); cs = set(cur.src); cd = set(cur.dst)
    vd = {r for r in pd if r[0] == "v"}; sd = {r for r in pd if r[0] == "s"}
    if prev.valu and not prev.mfma:
        if vd & cs:
            if cur.dpp: need = max(need, 2)
            if cur.mfma: need = max(need, 2)
            if cur.op.startswith("v_permlane"): need = max(need, 2)
            if cur.op.startswith(("v_readlane", "v_readfirstlane")): need = max(need, 1)
            if prev.trans and cur.valu and not cur.trans: need = max(need, 1)
            if prev.trans and (cur.vmem or cur.ds): need = max(need, 1)
            if prev.op.startswith("v_dot2") and cur.valu and cur.op != prev.op: need = max(need, 3)
            if prev.op.startswith("v_dot2") and (cur.vmem or cur.ds): need = max(need, 3)
        if prev.op.startswith("v_dot2") and (vd & cd) and cur.valu and cur.op != prev.op:
            need = max(need, 3)
        if prev.op.startswith("v_dot2") and cur.op == prev.op:
            srcab = set(sum([_regs(o) for o in cur.ops[1:3]], []))
            if vd & srcab: need = max(need, 3)
        if sd & cs:
            if cur.valu:
                need = max(need, 4 if cur.op.startswith(("v_readlane", "v_writelane")) else 2)
            if cur.vmem: need = max(need, 5)
            if cur.salu: need = max(need, 1)
    if prev.mfma:
        if cur.mfma:
            srcab = set(sum([_regs(o) for o in cur.ops[1:3]], []))
            srcc = set(_regs(cur.ops[3])) if len(cur.ops) > 3 else set()
            if vd & srcab: need = max(need, 8)
            if vd & srcc and srcc != vd: need = max(need, 6)
        else:
            if vd & (cs | cd): need = max(need, 8)
        srcc_prev = set(_regs(prev.ops[3])) if len(prev.ops) > 3 else set()
        if cur.valu and not cur.mfma and (srcc_prev & cd): need = max(need, 3)
    if prev.vmem and "store" in prev.op and ("x4" in prev.op or "x3" in prev.op):
        data = set(_regs(prev.ops[0])) if prev.op.startswith("buffer_") else set(_regs(prev.ops[1]))
        if data & cd: need = max(need, 2)
    return need

class Asm:
    def __init__(self):
        self.ins = []
        self.nlabel = 0
    def __call__(self, text):
        for line in text.split("\n"):
            line = line.strip()
            if not line: continue
            self.emit(line)
    def emit(self, text):
        cur = I(text)
        if cur.op and not cur.label and not text.startswith("."):
            dist = 0; pad = 0
            for p in reversed(self.ins[-24:]):
                if p.text.startswith("."): continue
                if p.label: continue
                n = needed_gap(p, cur)
                if n > dist: pad = max(pad, n - dist)
                dist += p.states()
                if dist >= 12: break
            while pad > 0:
                k = min(pad, 16)
                self.ins.append(I(f"s_nop {k-1}"))
                pad -= k
        self.ins.append(cur)
    def label(self, name=None):
        self.nlabel += 1
        return (name or "L") + f"_{self.nlabel}"
    def check_branches(self):
        labels = {}
        for i, p in enumerate(self.ins):
            if p.label: labels[p.text.split(";")[0].strip()[:-1]] = i
        problems = []
        for i, p in enumerate(self.ins):
            if p.op.startswith(("s_cbranch", "s_branch")):
                tgt = labels[p.ops[0]]
                hist = []
                d = 0; k = i
                while k >= 0 and d < 12:
                    q = self.ins[k]
                    if not q.label and not q.text.startswith("."):
                        hist.append(q); d += q.states()
                    k -= 1
                d2 = 0; k = tgt
                while k < len(self.ins) and d2 < 12:
                    c = self.ins[k]
                    if not c.label and not c.text.startswith(".") and c.op:
                        dist = d2
                        for q in hist:
                            n = needed_gap(q, c)
                            if n > dist: problems.append((q.text, c.text, n, dist))
                            dist += q.states()
                        d2 += c.states()
                        if c.op in ("s_branch", "s_endpgm"): break
                    k += 1
        return problems
    def text(self):
        return "\n".join(p.text for p in self.ins) + "\n"

class VM:
    def __init__(self, A): self.A = A; self.q = []
    def issue(self, tag): self.q.append(tag); assert len(self.q) <= 63, "vmcnt overflow"
    def wait(self, tag):
        if tag not in self.q: return
        i = self.q.index(tag)
        n = len(self.q) - 1 - i
        self.A(f"s_waitcnt vmcnt({n})")
        self.q = self.q[i+1:]
    def waitall(self):
        self.A("s_waitcnt vmcnt(0)"); self.q = []
```

```python
import sys
sys.path.insert(0, "gen")
from asmlib import Asm, VM

KNAME = "recurrent_scan__mha_block_cached__swiglu_ffn__decode_kernel"

HEADER = """; Kernarg layout for this problem (96 bytes, ptrs only, base s[0:1]):
"""

XDUP = 0
XSTR = 1040
HDUP = 8320
HSTR = 144
ODUP = 9472
OSTR = 48
CNT = 11008
QD = 11264
RED = 15360
SCO = 19456
OPART = 35840
MLP = OPART + 2048
LDS_BYTES = 38144

WS_X1 = 0x000000
WS_XY = 0x100000
WS_X2 = 0x200000
WS_X3 = 0x300000
WS_DBG = 0x800000

LOG2E = 0x3FB8AA3B
SCALE = 0x3DB504F3
SPIN_LIMIT = 400000

def gen(W=5, rotk=7, wqflag="nt", kvflag="nt", wflag="nt", dbg=False, stamps=False, sleep=1):
    A = Asm()
    sX, sK, sV, sWQ, sWO, sWG, sWU, sWD, sOUT, sDBG, sWS = 8, 10, 12, 14, 16, 20, 22, 24, 26, 28, 30
    sW, sH, sSUB, sB, sSPLIT, sHW = 3, 32, 33, 34, 35, 36
    sT0, sT1, sT2, sT3 = 37, 38, 39, 40
    sRUN, sOFF, sCNT, sROT = 41, 42, 43, 44
    sBIT0, sBIT1 = 46, 48
    sSPIN = 50
    sEX = 52
    SRD_A, SRD_B, SRD_C, SRD_D, SRD_WS = 56, 60, 64, 68, 72
    sSTAMP0 = 76
    sT4, sT5 = 78, 79
    sISC = 80
    sK4 = 81
    vLANE, vL16, vTMP = 1, 2, 3
    vM = 4
    vA0, vA1 = 8, 12
    vD = 16
    vD2 = 20
    vQ = 24
    vT = 28
    vX = 44
    vU = 60
    RING = 128
    def slot(i): return RING + 4 * i
    def r4(b): return f"v[{b}:{b+3}]"

    def srd(base, ptr, size, add=None):
        if add is None:
            A(f"s_mov_b32 s{base}, s{ptr}"); A(f"s_mov_b32 s{base+1}, s{ptr+1}")
        else:
            A(f"s_add_u32 s{base}, s{ptr}, s{add}"); A(f"s_addc_u32 s{base+1}, s{ptr+1}, 0")
        A(f"s_mov_b32 s{base+2}, {size}"); A(f"s_mov_b32 s{base+3}, 0x20000")

    def bf16r(dst, src):
        A(f"v_cvt_pk_bf16_f32 v{dst}, v{src}, v{src}")
        A(f"v_and_b32 v{dst}, 0xffff0000, v{dst}")

    def allreduce(op, r, tmp):
        for k in (8, 4, 2, 1):
            A(f"{op}_dpp v{r}, v{r}, v{r} row_ror:{k} row_mask:0xf bank_mask:0xf")
        A(f"v_mov_b32 v{tmp}, v{r}"); A(f"v_permlane16_swap_b32 v{r}, v{tmp}"); A(f"{op} v{r}, v{r}, v{tmp}")
        A(f"v_mov_b32 v{tmp}, v{r}"); A(f"v_permlane32_swap_b32 v{r}, v{tmp}"); A(f"{op} v{r}, v{r}, v{tmp}")

    def lds_signal(off):
        A("s_waitcnt lgkmcnt(0)")
        A(f"v_mov_b32 v{vTMP}, {CNT+off}"); A(f"v_mov_b32 v{vU+67}, 1")
        A("s_mov_b64 exec, 1")
        A(f"ds_add_u32 v{vTMP}, v{vU+67}")
        A("s_mov_b64 exec, -1")
    def lds_wait(off, n):
        lab = A.label("Lw")
        A(f"v_mov_b32 v{vTMP}, {CNT+off}")
        A(f"s_mov_b32 s51, {SPIN_LIMIT}")
        A(f"{lab}:")
        A(f"ds_read_b32 v{vU+67}, v{vTMP}")
        A("s_waitcnt lgkmcnt(0)")
        A(f"v_readfirstlane_b32 s{sT0}, v{vU+67}")
        A(f"s_cmp_ge_u32 s{sT0}, {n}")
        A(f"s_cbranch_scc1 {lab}_ok")
        A(f"s_sub_u32 s51, s51, 1")
        A(f"s_cmp_lg_u32 s51, 0")
        A(f"s_cbranch_scc1 {lab}")
        A(f"{lab}_ok:")

    def mfma_row(areg, xreg, breg, dreg, dpp=None):
        for k in range(4):
            if dpp is None:
                A(f"v_and_b32 v{areg+k}, v{xreg}, v{vM+k}")
            else:
                A(f"v_and_b32_dpp v{areg+k}, v{xreg}, v{vM+k} row_newbcast:{dpp} row_mask:0xf bank_mask:0xf")
        A(f"v_mfma_f32_16x16x32_bf16 {r4(dreg)}, {r4(areg)}, {r4(breg)}, {r4(dreg)}")

    def zero4(r):
        for k in range(4): A(f"v_mov_b32 v{r+k}, 0")

    def stamp(idx):
        if stamps:
            A(f"s_memrealtime s[{sT4}:{sT5}]"); A("s_waitcnt lgkmcnt(0)")
            A(f"v_writelane_b32 v{vU+66}, s{sT4}, {idx}")

    def silu(dst, x, t1, t2):
        A(f"v_mul_f32 v{t1}, 0xbfb8aa3b, v{x}")
        A(f"v_exp_f32 v{t1}, v{t1}")
        A(f"v_add_f32 v{t1}, 1.0, v{t1}")
        A(f"v_rcp_f32 v{t2}, v{t1}")
        A(f"v_mul_f32 v{dst}, v{x}, v{t2}")
        bf16r(dst, dst)

    A(f"{KNAME}:")
    A("s_cmp_ge_u32 s2, 256")
    A("s_cbranch_scc1 L_end")
    A(f"s_load_dwordx16 s[8:23], s[0:1], 0")
    A(f"s_load_dwordx8 s[24:31], s[0:1], 64")
    if stamps:
        A(f"s_memrealtime s[{sSTAMP0}:{sSTAMP0+1}]")
    A(f"v_and_b32 v{vLANE}, 63, v0")
    A(f"v_lshrrev_b32 v{vTMP}, 6, v0")
    A(f"v_lshlrev_b32 v{vL16}, 4, v{vLANE}")
    A(f"v_readfirstlane_b32 s{sW}, v{vTMP}")
    A(f"s_and_b32 s{sT0}, s2, 7"); A(f"s_lshl_b32 s{sH}, s{sT0}, 2")
    A(f"s_lshr_b32 s{sT1}, s2, 3"); A(f"s_and_b32 s{sT0}, s{sT1}, 3"); A(f"s_add_u32 s{sH}, s{sH}, s{sT0}")
    A(f"s_lshr_b32 s{sSUB}, s{sT1}, 2")
    A(f"s_lshr_b32 s{sB}, s{sSUB}, 2"); A(f"s_and_b32 s{sSPLIT}, s{sSUB}, 3")
    A(f"s_mul_i32 s{sROT}, s2, {rotk*16384}"); A(f"s_and_b32 s{sROT}, s{sROT}, 0xfffff")
    A(f"s_mov_b32 s{sBIT0}, 0xaaaaaaaa"); A(f"s_mov_b32 s{sBIT0+1}, 0xaaaaaaaa")
    A(f"s_mov_b32 s{sBIT1}, 0xcccccccc"); A(f"s_mov_b32 s{sBIT1+1}, 0xcccccccc")
    vG, vC = vU, vU + 1
    A(f"v_lshrrev_b32 v{vG}, 4, v{vLANE}")
    A(f"v_and_b32 v{vC}, 15, v{vLANE}")
    A(f"v_and_b32 v{vU+2}, 1, v{vC}")
    A(f"v_lshlrev_b32 v{vU+2}, 4, v{vU+2}")
    A(f"v_mov_b32 v{vU+3}, 0xffff")
    A(f"v_lshlrev_b32 v{vU+3}, v{vU+2}, v{vU+3}")
    A(f"v_bfe_u32 v{vU+4}, v{vC}, 1, 2")
    for k in range(4):
        A(f"v_cmp_eq_u32 vcc, {k}, v{vU+4}")
        A(f"v_cndmask_b32 v{vM+k}, 0, v{vU+3}, vcc")
    vXA = vU + 5
    A(f"v_lshrrev_b32 v{vU+2}, 3, v{vC}")
    A(f"v_lshl_add_u32 v{vU+2}, v{vU+2}, 2, v{vG}")
    vBG = vU + 6
    A(f"v_mov_b32 v{vBG}, v{vU+2}")
    A(f"v_mul_u32_u24 v{vXA}, {XSTR}, v{vBG}")
    if stamps: A(f"v_mov_b32 v{vU+66}, 0")
    A("s_waitcnt lgkmcnt(0)")
    vm = VM(A)
    srd(SRD_A, sX, 4096)
    A(f"s_and_b32 s{sT0}, s{sW}, 1"); A(f"s_lshl_b32 s{sT0}, s{sT0}, 11")
    vXR = vU + 8
    A(f"buffer_load_dwordx4 {r4(vXR)}, v{vL16}, s[{SRD_A}:{SRD_A+3}], s{sT0} offen"); vm.issue("x0")
    A(f"buffer_load_dwordx4 {r4(vXR+4)}, v{vL16}, s[{SRD_A}:{SRD_A+3}], s{sT0} offen offset:1024"); vm.issue("x1")
    A(f"s_lshr_b32 s{sT1}, s{sW}, 2"); A(f"s_lshl_b32 s{sT1}, s{sT1}, 10"); A(f"s_add_u32 s{sT0}, s{sT0}, s{sT1}")
    A(f"s_lshr_b32 s{sT1}, s{sW}, 1"); A(f"s_and_b32 s{sT1}, s{sT1}, 1"); A(f"s_lshl_b32 s{sT1}, s{sT1}, 3"); A(f"s_add_u32 s{sT0}, s{sT0}, s{sT1}")
    A(f"buffer_load_dwordx2 v[{vXR+8}:{vXR+9}], v{vL16}, s[{SRD_A}:{SRD_A+3}], s{sT0} offen"); vm.issue("x2")
    srd(SRD_WS, sWS, 0x1000000)
    A(f"s_cmp_ge_u32 s{sW}, 4")
    A("s_cbranch_scc1 L_helper_issue")

    vWQ = vU + 20
    A(f"v_lshlrev_b32 v{vWQ}, 13, v{vG}")
    A(f"v_lshl_add_u32 v{vWQ}, v{vC}, 4, v{vWQ}")
    A(f"s_lshl_b32 s{sT0}, s{sH}, 8")
    srd(SRD_B, sWQ, 8388608 - 31 * 256, add=sT0)
    A(f"s_lshl_b32 s{sOFF}, s{sW}, 21")
    vms = VM(A); vms.q = list(vm.q)
    for n in range(32):
        A(f"buffer_load_dwordx4 {r4(slot(n))}, v{vWQ}, s[{SRD_B}:{SRD_B+3}], s{sOFF} offen {wqflag}"); vms.issue(("wq", n))
        A(f"s_add_u32 s{sOFF}, s{sOFF}, 32768")
    A(f"s_lshl_b32 s{sT0}, s{sB}, 5"); A(f"s_add_u32 s{sT0}, s{sT0}, s{sH}"); A(f"s_lshl_b32 s{sT0}, s{sT0}, 2")
    A(f"s_add_u32 s{sT0}, s{sT0}, s{sSPLIT}"); A(f"s_lshl_b32 s{sT0}, s{sT0}, 20")
    srd(SRD_C, sK, 0x100000, add=sT0)
    srd(SRD_D, sV, 0x100000, add=sT0)
    A("s_branch L_ln")

    A("L_helper_issue:")
    vmh = VM(A); vmh.q = list(vm.q)
    A(f"s_sub_u32 s{sHW}, s{sW}, 4")
    vF1 = vU + 20
    A(f"v_mul_u32_u24 v{vF1}, 7168, v{vG}")
    A(f"v_lshl_add_u32 v{vF1}, v{vC}, 4, v{vF1}")
    A(f"v_mov_b32 v{vU+21}, 0x40000000")
    A(f"v_cmp_gt_u32 vcc, 14, v{vC}")
    A(f"v_cndmask_b32 v{vF1}, v{vU+21}, v{vF1}, vcc")
    A(f"s_and_b32 s{sT0}, s{sHW}, 1"); A(f"s_cmp_eq_u32 s{sT0}, 0")
    A(f"s_cselect_b32 s{sT2}, s{sWG}, s{sWU}"); A(f"s_cselect_b32 s{sT3}, s{sWG+1}, s{sWU+1}")
    A(f"s_mul_i32 s{sT0}, s{sH}, 224")
    A(f"s_add_u32 s{SRD_B}, s{sT2}, s{sT0}"); A(f"s_addc_u32 s{SRD_B+1}, s{sT3}, 0")
    A(f"s_mov_b32 s{SRD_B+2}, {1024*7168 - 31*224}"); A(f"s_mov_b32 s{SRD_B+3}, 0x20000")
    A(f"s_lshl_b32 s{sT0}, s{sSUB}, 7"); A(f"s_lshr_b32 s{sT1}, s{sHW}, 1"); A(f"s_lshl_b32 s{sT1}, s{sT1}, 6")
    A(f"s_add_u32 s{sT0}, s{sT0}, s{sT1}"); A(f"s_mul_i32 s{sOFF}, s{sT0}, 7168")
    wf = wflag
    for n in range(16):
        A(f"buffer_load_dwordx4 {r4(slot(n))}, v{vF1}, s[{SRD_B}:{SRD_B+3}], s{sOFF} offen {wf}"); vmh.issue(("f1", n))
        A(f"s_add_u32 s{sOFF}, s{sOFF}, 28672")
    vWD = vU + 22; vWD2 = vU + 23
    A(f"v_lshlrev_b32 v{vWD}, 11, v{vG}")
    A(f"v_lshl_add_u32 v{vWD}, v{vC}, 4, v{vWD}")
    A(f"v_mov_b32 v{vWD2}, v{vWD}")
    A(f"s_cmp_lg_u32 s{sHW}, 3"); A("s_cbranch_scc1 L_wd_ok")
    A(f"v_mov_b32 v{vWD2}, 0x40000000")
    A("L_wd_ok:")
    A(f"s_mul_i32 s{sT0}, s{sH}, {112*2048}"); A(f"s_lshl_b32 s{sT1}, s{sSUB}, 8"); A(f"s_add_u32 s{sT0}, s{sT0}, s{sT1}")
    srd(SRD_C, sWD, 111 * 2048 + 256, add=sT0)
    A(f"s_lshl_b32 s{sT0}, s{sH}, 18"); A(f"s_add_u32 s{sT0}, s{sT0}, s{sT1}")
    srd(SRD_D, sWO, 127 * 2048 + 256, add=sT0)
    A(f"s_lshl_b32 s{sOFF}, s{sHW}, 16")
    for n in range(8):
        vv = vWD if n < 4 else vWD2
        A(f"buffer_load_dwordx4 {r4(slot(16+n))}, v{vv}, s[{SRD_C}:{SRD_C+3}], s{sOFF} offen {wf}"); vmh.issue(("wd", n))
        A(f"buffer_load_dwordx4 {r4(slot(24+n))}, v{vWD}, s[{SRD_D}:{SRD_D+3}], s{sOFF} offen {wf}"); vmh.issue(("wo", n))
        A(f"s_add_u32 s{sOFF}, s{sOFF}, 8192")

    A("L_ln:")
    A("s_waitcnt vmcnt(32)")
    vF = vT
    for t in range(2):
        for k in range(4):
            A(f"v_lshlrev_b32 v{vF+8*t+2*k}, 16, v{vXR+4*t+k}")
            A(f"v_and_b32 v{vF+8*t+2*k+1}, 0xffff0000, v{vXR+4*t+k}")
    vS = vX; vS2 = vX + 1; vMEAN = vX + 2
    A(f"v_add_f32 v{vS}, v{vF}, v{vF+1}")
    for i in range(2, 16): A(f"v_add_f32 v{vS}, v{vS}, v{vF+i}")
    allreduce("v_add_f32", vS, vS2)
    A(f"v_mul_f32 v{vMEAN}, 0x3a800000, v{vS}")
    A(f"v_mov_b32 v{vS}, 0")
    for i in range(16):
        A(f"v_sub_f32 v{vF+i}, v{vF+i}, v{vMEAN}")
        A(f"v_fmac_f32 v{vS}, v{vF+i}, v{vF+i}")
    allreduce("v_add_f32", vS, vS2)
    A(f"v_mul_f32 v{vS}, 0x3a800000, v{vS}")
    bf16r(vS, vS)
    A(f"v_add_f32 v{vS}, 0x3727c5ac, v{vS}")
    bf16r(vS, vS)
    vSQ = vX + 3; vR = vX + 4; vE = vX + 5
    A(f"v_sqrt_f32 v{vSQ}, v{vS}")
    A(f"v_rcp_f32 v{vR}, v{vSQ}")
    A(f"v_fma_f32 v{vE}, -v{vSQ}, v{vSQ}, v{vS}")
    A(f"v_mul_f32 v{vE}, 0.5, v{vE}")
    A(f"v_fma_f32 v{vSQ}, v{vE}, v{vR}, v{vSQ}")
    bf16r(vSQ, vSQ)
    A(f"v_rcp_f32 v{vR}, v{vSQ}")
    bf16r(vMEAN, vMEAN)
    vY = vX + 8
    A(f"v_lshlrev_b32 v{vY}, 16, v{vXR+8}"); A(f"v_and_b32 v{vY+1}, 0xffff0000, v{vXR+8}")
    A(f"v_lshlrev_b32 v{vY+2}, 16, v{vXR+9}"); A(f"v_and_b32 v{vY+3}, 0xffff0000, v{vXR+9}")
    A(f"s_and_b32 s{sT0}, s{sW}, 1"); A(f"s_mul_i32 s{sT0}, s{sT0}, {4*XSTR}")
    A(f"s_lshr_b32 s{sT1}, s{sW}, 2"); A(f"s_lshl_b32 s{sT1}, s{sT1}, 9"); A(f"s_add_u32 s{sT0}, s{sT0}, s{sT1}")
    A(f"s_lshr_b32 s{sT1}, s{sW}, 1"); A(f"s_and_b32 s{sT1}, s{sT1}, 1"); A(f"s_lshl_b32 s{sT1}, s{sT1}, 2"); A(f"s_add_u32 s{sT0}, s{sT0}, s{sT1}")
    A(f"v_lshlrev_b32 v{vTMP}, 3, v{vLANE}")
    A(f"v_add_u32 v{vTMP}, s{sT0}, v{vTMP}")
    for k in range(4):
        y = vY + k
        A(f"v_sub_f32 v{y}, v{y}, v{vMEAN}")
        bf16r(y, y)
        A(f"v_mul_f32 v{vS}, v{y}, v{vR}")
        A(f"v_fma_f32 v{vE}, -v{vS}, v{vSQ}, v{y}")
        A(f"v_fma_f32 v{vS}, v{vE}, v{vR}, v{vS}")
        A(f"v_cvt_pk_bf16_f32 v{y}, v{vS}, v{vS}")
        A(f"ds_write_b32 v{vTMP}, v{y} offset:{XDUP + k*XSTR}")
    A(f"v_mov_b32 v{vS}, 0"); A(f"v_lshlrev_b32 v{vE}, 2, v{vLANE}")
    A(f"s_mov_b64 exec, 0xffff")
    A(f"ds_write_b32 v{vE}, v{vS} offset:{CNT}")
    A("s_mov_b64 exec, -1")
    A("s_waitcnt lgkmcnt(0)")
    A("s_barrier")
    stamp(1)
    A(f"s_cmp_ge_u32 s{sW}, 4")
    A("s_cbranch_scc1 L_helper")

    vm = vms
    vm.q = [t for t in vm.q if isinstance(t, tuple)]
    zero4(vD)
    A(f"s_lshl_b32 s{sT0}, s{sW}, 8")
    A(f"v_add_u32 v{vTMP}, s{sT0}, v{vXA}")
    vXADDR = vU + 24
    A(f"v_mov_b32 v{vXADDR}, v{vTMP}")
    A(f"s_lshl_b32 s{sT0}, s{sW}, 12"); A(f"s_add_u32 s{sRUN}, s{sROT}, s{sT0}")
    def kv_issue(idx, srdb, tag, state):
        piece = idx >> 2
        key = (srdb, piece, state.get("epoch", 0))
        if state.get("cur") != key:
            if piece == 0: A(f"s_and_b32 s{sOFF}, s{sRUN}, 0xfffff")
            else:
                A(f"s_add_u32 s{sOFF}, s{sRUN}, {piece*16384}"); A(f"s_and_b32 s{sOFF}, s{sOFF}, 0xfffff")
            state["cur"] = key
        A(f"buffer_load_dwordx4 {r4(slot(idx % 16))}, v{vL16}, s[{srdb}:{srdb+3}], s{sOFF} offen offset:{(idx&3)*1024} {kvflag}")
        vm.issue(tag)
    sWQO = sT3
    A(f"s_lshl_b32 s{sWQO}, s{sW}, 21"); A(f"s_add_u32 s{sWQO}, s{sWQO}, {32*32768}")
    st = {}
    A(f"ds_read_b128 {r4(vX)}, v{vXADDR} offset:{XDUP}")
    for n in range(64):
        if n % 4 == 0:
            A("s_waitcnt lgkmcnt(0)")
            if n + 4 < 64:
                xr = vX + 4 * (((n + 4) // 4) % 2)
                A(f"ds_read_b128 {r4(xr)}, v{vXADDR} offset:{XDUP + (n+4)*4}")
        vm.wait(("wq", n))
        xr = vX + 4 * ((n // 4) % 2) + (n % 4)
        mfma_row(vA0 if n % 2 == 0 else vA1, xr, slot(n % 32), vD)
        if n < 32:
            A(f"buffer_load_dwordx4 {r4(slot(n))}, v{vWQ}, s[{SRD_B}:{SRD_B+3}], s{sWQO} offen {wqflag}"); vm.issue(("wq", n + 32))
            A(f"s_add_u32 s{sWQO}, s{sWQO}, 32768")
        elif n < 48:
            kv_issue(n - 32, SRD_C, ("k", n - 32), st)
    A(f"s_lshl_b32 s{sT0}, s{sW}, 10")
    A(f"v_add_u32 v{vTMP}, s{sT0}, v{vL16}")
    A(f"ds_write_b128 v{vTMP}, {r4(vD)} offset:{QD}")
    lds_signal(0)
    lds_wait(0, 4)
    A(f"s_lshl_b32 s{sT0}, s{sB}, 9")
    A(f"v_lshlrev_b32 v{vTMP}, 4, v{vC}")
    A(f"v_add_u32 v{vTMP}, s{sT0}, v{vTMP}")
    for w in range(4):
        A(f"ds_read_b128 {r4(vT+8*(w%2))}, v{vTMP} offset:{QD + w*1024}")
        A(f"ds_read_b128 {r4(vT+8*(w%2)+4)}, v{vTMP} offset:{QD + w*1024 + 256}")
        if w % 2 == 1:
            A("s_waitcnt lgkmcnt(0)")
            for e in range(8):
                if w == 1: A(f"v_add_f32 v{vX+e}, v{vT+e}, v{vT+8+e}")
                else:
                    A(f"v_add_f32 v{vT+e}, v{vT+e}, v{vT+8+e}")
                    A(f"v_add_f32 v{vX+e}, v{vX+e}, v{vT+e}")
    for k in range(4):
        A(f"v_cvt_pk_bf16_f32 v{vQ+k}, v{vX+2*k}, v{vX+2*k+1}")
    if dbg:
        A(f"s_lshl_b32 s{sT0}, s2, 14"); A(f"s_lshl_b32 s{sT1}, s{sW}, 10"); A(f"s_add_u32 s{sT0}, s{sT0}, s{sT1}"); A(f"s_add_u32 s{sT0}, s{sT0}, {WS_DBG}")
        A(f"buffer_store_dwordx4 {r4(vQ)}, v{vL16}, s[{SRD_WS}:{SRD_WS+3}], s{sT0} offen"); vm.issue("dbg"); vm.wait("dbg")
    stamp(2)
    vMX = vU + 25; vSA = vU + 26; vSC = vU + 27; vS1 = vU + 28; vS2r = vU + 29
    A(f"v_mov_b32 v{vMX}, 0xff800000")
    A(f"s_lshl_b32 s{sT0}, s{sW}, 12")
    A(f"v_lshlrev_b32 v{vSA}, 2, v{vLANE}")
    A(f"v_add_u32 v{vSA}, s{sT0}, v{vSA}")
    def kblock(issue):
        for j in range(16):
            vm.wait(("k", j))
            b = slot(j)
            A(f"v_dot2_f32_bf16 v{vT+j}, v{b}, v{vQ}, 0")
            for k in range(1, 4):
                A(f"v_dot2_f32_bf16 v{vT+j}, v{b+k}, v{vQ+k}, v{vT+j}")
            issue(j)
        for j in range(8):
            A(f"v_add_f32_dpp v{vT+j}, v{vT+j}, v{vT+j} row_ror:8 row_mask:0xf bank_mask:0x3")
            A(f"v_add_f32_dpp v{vT+j}, v{vT+j+8}, v{vT+j+8} row_ror:8 row_mask:0xf bank_mask:0xc")
        for j in range(4):
            A(f"v_add_f32_dpp v{vT+j}, v{vT+j}, v{vT+j} row_shl:4 row_mask:0xf bank_mask:0x5")
            A(f"v_add_f32_dpp v{vT+j}, v{vT+j+4}, v{vT+j+4} row_shr:4 row_mask:0xf bank_mask:0xa")
        for j in range(4):
            A(f"v_add_f32_dpp v{vT+8+j}, v{vT+j}, v{vT+j} quad_perm:[2,3,0,1] row_mask:0xf bank_mask:0xf")
        A(f"v_cndmask_b32 v{vT}, v{vT+8}, v{vT+10}, s[{sBIT1}:{sBIT1+1}]")
        A(f"v_cndmask_b32 v{vT+1}, v{vT+9}, v{vT+11}, s[{sBIT1}:{sBIT1+1}]")
        A(f"v_add_f32_dpp v{vT+8}, v{vT}, v{vT} quad_perm:[1,0,3,2] row_mask:0xf bank_mask:0xf")
        A(f"v_add_f32_dpp v{vT+9}, v{vT+1}, v{vT+1} quad_perm:[1,0,3,2] row_mask:0xf bank_mask:0xf")
        A(f"v_cndmask_b32 v{vSC}, v{vT+8}, v{vT+9}, s[{sBIT0}:{sBIT0+1}]")
        bf16r(vSC, vSC)
        A(f"v_mul_f32 v{vSC}, {hex(SCALE)}, v{vSC}")
        bf16r(vSC, vSC)
        A(f"v_max_f32 v{vMX}, v{vMX}, v{vSC}")
        A(f"ds_write_b32 v{vSA}, v{vSC} offset:{SCO}")
        A(f"v_add_u32 v{vSA}, 256, v{vSA}")
    def retag(old, new, shift):
        vm.q = [((new, t[1] + shift) if (isinstance(t, tuple) and t[0] == old) else t) for t in vm.q]
    st = {}
    def iss0(j):
        if j + W >= 16: kv_issue(j + W, SRD_C, ("k", j + W), st)
    kblock(iss0)
    retag("k", "k", -16)
    A(f"s_add_u32 s{sRUN}, s{sRUN}, 65536")
    A(f"s_mov_b32 s{sCNT}, 14")
    A("L_kloop:")
    q_in = list(vm.q); st = {}
    kblock(lambda j: kv_issue(j + W, SRD_C, ("k", j + W), st))
    retag("k", "k", -16)
    assert vm.q == q_in, (vm.q, q_in)
    A(f"s_add_u32 s{sRUN}, s{sRUN}, 65536")
    A(f"s_sub_u32 s{sCNT}, s{sCNT}, 1"); A(f"s_cmp_lg_u32 s{sCNT}, 0"); A("s_cbranch_scc1 L_kloop")
    st = {}
    sRUNV = sT2
    A(f"s_lshl_b32 s{sT0}, s{sW}, 12"); A(f"s_add_u32 s{sRUNV}, s{sROT}, s{sT0}")
    def issl(j):
        if j + W < 16: kv_issue(j + W, SRD_C, ("k", j + W), st)
        else:
            if st.get("epoch", 0) == 0:
                st["epoch"] = 1; A(f"s_mov_b32 s{sRUN}, s{sRUNV}")
            kv_issue(j + W - 16, SRD_D, ("v", j + W - 16), st)
    kblock(issl)
    stamp(3)
    allreduce("v_max_f32", vMX, vS1)
    vL = vU + 30; vP = vU + 31; vSN = vU + 32; vP2 = vU + 33
    A(f"v_mov_b32 v{vL}, 0")
    zero4(vD)
    A(f"v_subrev_u32 v{vSA}, 4096, v{vSA}")
    A("s_waitcnt lgkmcnt(0)")
    A(f"ds_read_b32 v{vSN}, v{vSA} offset:{SCO}")
    def vblock(issue, last=False):
        A("s_waitcnt lgkmcnt(0)")
        A(f"v_sub_f32 v{vP}, v{vSN}, v{vMX}")
        A(f"v_mul_f32 v{vP}, {hex(LOG2E)}, v{vP}")
        A(f"v_exp_f32 v{vP}, v{vP}")
        if not last:
            A(f"v_add_u32 v{vSA}, 256, v{vSA}")
            A(f"ds_read_b32 v{vSN}, v{vSA} offset:{SCO}")
        A(f"v_add_f32 v{vL}, v{vL}, v{vP}")
        A(f"v_cvt_pk_bf16_f32 v{vP2}, v{vP}, v{vP}")
        for j in range(16):
            vm.wait(("v", j))
            mfma_row(vA0 if j % 2 == 0 else vA1, vP2, slot(j), vD, dpp=j)
            issue(j)
    A(f"s_mov_b32 s{sCNT}, 15")
    A("L_vloop:")
    q_in = list(vm.q); st = {}
    vblock(lambda j: kv_issue(j + W, SRD_D, ("v", j + W), st))
    retag("v", "v", -16)
    assert vm.q == q_in, (vm.q, q_in)
    A(f"s_add_u32 s{sRUN}, s{sRUN}, 65536")
    A(f"s_sub_u32 s{sCNT}, s{sCNT}, 1"); A(f"s_cmp_lg_u32 s{sCNT}, 0"); A("s_cbranch_scc1 L_vloop")
    st = {}
    def issv(j):
        if j + W < 16: kv_issue(j + W, SRD_D, ("v", j + W), st)
    vblock(issv, last=True)
    stamp(4)
    allreduce("v_add_f32", vL, vS1)
    A(f"v_lshlrev_b32 v{vTMP}, 5, v{vC}")
    A(f"v_lshl_add_u32 v{vTMP}, v{vG}, 4, v{vTMP}")
    A(f"s_lshl_b32 s{sT0}, s{sW}, 9")
    A(f"v_add_u32 v{vS1}, s{sT0}, v{vTMP}")
    A("s_mov_b32 exec_hi, 0")
    A(f"ds_write_b128 v{vS1}, {r4(vD)} offset:{OPART}")
    A(f"s_lshl_b32 s{sT0}, s{sW}, 3")
    A(f"v_mov_b32 v{vS1}, s{sT0}")
    A(f"v_mov_b32 v{vP}, v{vMX}"); A(f"v_mov_b32 v{vP+1}, v{vL}")
    A("s_mov_b64 exec, 1")
    A(f"ds_write_b64 v{vS1}, v[{vP}:{vP+1}] offset:{MLP}") if (vP % 2 == 0) else (A(f"ds_write_b32 v{vS1}, v{vP} offset:{MLP}"), A(f"ds_write_b32 v{vS1}, v{vP+1} offset:{MLP+4}"))
    A("s_mov_b64 exec, -1")
    A("s_waitcnt lgkmcnt(0)")
    A("s_barrier")
    A(f"s_cmp_lg_u32 s{sW}, 0")
    A("s_cbranch_scc1 L_end")
    vO = vT
    for w in range(4):
        A(f"ds_read_b128 {r4(vO+4*w)}, v{vTMP} offset:{OPART + w*512}")
    vML = vX
    A(f"v_mov_b32 v{vS1}, 0")
    A(f"ds_read_b128 {r4(vML)}, v{vS1} offset:{MLP}")
    A(f"ds_read_b128 {r4(vML+4)}, v{vS1} offset:{MLP+16}")
    A("s_waitcnt lgkmcnt(0)")
    vMM = vX + 8; vLL = vX + 9; vFW = vX + 10
    A(f"v_max_f32 v{vMM}, v{vML}, v{vML+2}")
    A(f"v_max3_f32 v{vMM}, v{vMM}, v{vML+4}, v{vML+6}")
    for w in range(4):
        A(f"v_sub_f32 v{vFW+w}, v{vML+2*w}, v{vMM}")
        A(f"v_mul_f32 v{vFW+w}, {hex(LOG2E)}, v{vFW+w}")
        A(f"v_exp_f32 v{vFW+w}, v{vFW+w}")
    A(f"v_mul_f32 v{vLL}, v{vFW}, v{vML+1}")
    for w in range(1, 4): A(f"v_fmac_f32 v{vLL}, v{vFW+w}, v{vML+2*w+1}")
    for r in range(4):
        A(f"v_mul_f32 v{vD+r}, v{vFW}, v{vO+r}")
        for w in range(1, 4): A(f"v_fmac_f32 v{vD+r}, v{vFW+w}, v{vO+4*w+r}")
    A(f"v_cmp_eq_u32 vcc, 32, v{vLANE}")
    A(f"v_cndmask_b32 v{vD}, v{vD}, v{vMM}, vcc"); A(f"v_cndmask_b32 v{vD+1}, v{vD+1}, v{vLL}, vcc")
    A(f"v_cndmask_b32 v{vD+2}, v{vD+2}, v{vMM}, vcc"); A(f"v_cndmask_b32 v{vD+3}, v{vD+3}, v{vLL}, vcc")
    A(f"v_mov_b32 v{vS1}, 512")
    A(f"v_cndmask_b32 v{vTMP}, v{vTMP}, v{vS1}, vcc")
    A(f"s_lshl_b32 s{sT0}, s{sH}, 3"); A(f"s_add_u32 s{sT0}, s{sT0}, s{sSUB}"); A(f"s_lshl_b32 s{sT0}, s{sT0}, 10"); A(f"s_add_u32 s{sT0}, s{sT0}, {WS_X2}")
    A("s_mov_b32 exec_hi, 1")
    A(f"buffer_store_dwordx4 {r4(vD)}, v{vTMP}, s[{SRD_WS}:{SRD_WS+3}], s{sT0} offen sc1")
    if stamps:
        A("s_mov_b64 exec, -1")
        stamp(5)
        A(f"s_lshl_b32 s{sT0}, s2, 9"); A(f"s_add_u32 s{sT0}, s{sT0}, 0x700000")
        A(f"v_lshlrev_b32 v{vS1}, 2, v{vLANE}")
        A(f"v_writelane_b32 v{vU+66}, s{sSTAMP0}, 0")
        A(f"buffer_store_dword v{vU+66}, v{vS1}, s[{SRD_WS}:{SRD_WS+3}], s{sT0} offen")
    A("s_endpgm")

    A("L_helper:")
    vm = vmh
    vm.q = [t for t in vm.q if isinstance(t, tuple)]
    zero4(vD)
    A(f"s_lshl_b32 s{sT0}, s{sSUB}, 7"); A(f"s_lshr_b32 s{sT1}, s{sHW}, 1"); A(f"s_lshl_b32 s{sT1}, s{sT1}, 6"); A(f"s_add_u32 s{sT0}, s{sT0}, s{sT1}")
    A(f"v_add_u32 v{vTMP}, s{sT0}, v{vXA}")
    for q4 in range(4):
        A(f"ds_read_b128 {r4(vX+4*q4)}, v{vTMP} offset:{XDUP + q4*16}")
    A("s_waitcnt lgkmcnt(0)")
    for n in range(16):
        vm.wait(("f1", n))
        mfma_row(vA0 if n % 2 == 0 else vA1, vX + n, slot(n), vD)
    A(f"s_and_b32 s{sT0}, s{sHW}, 1"); A(f"s_lshl_b32 s{sT0}, s{sT0}, 10")
    A(f"v_add_u32 v{vU+24}, s{sT0}, v{vL16}")
    vRA = vU + 24
    A(f"s_cmp_lt_u32 s{sHW}, 2"); A("s_cbranch_scc1 L_f1_low")
    A(f"ds_write_b128 v{vRA}, {r4(vD)} offset:{RED}")
    lds_signal(4)
    A("s_waitcnt vmcnt(0)")
    A("s_branch L_f1_done")
    A("L_f1_low:")
    lds_wait(4, 2)
    A(f"ds_read_b128 {r4(vD2)}, v{vRA} offset:{RED}")
    A("s_waitcnt lgkmcnt(0)")
    for r in range(4): A(f"v_add_f32 v{vD+r}, v{vD+r}, v{vD2+r}")
    A(f"s_lshl_b32 s{sT0}, s{sH}, 3"); A(f"s_add_u32 s{sT0}, s{sT0}, s{sSUB}"); A(f"s_lshl_b32 s{sT0}, s{sT0}, 11")
    A(f"buffer_store_dwordx4 {r4(vD)}, v{vRA}, s[{SRD_WS}:{SRD_WS+3}], s{sT0} offen sc1")
    A(f"s_cmp_lg_u32 s{sHW}, 0")
    A("s_cbranch_scc1 L_noclear")
    for k in range(4): A(f"v_mov_b32 v{vD2+k}, -1")
    A(f"s_lshl_b32 s{sT1}, s{sSUB}, 5"); A(f"s_add_u32 s{sT1}, s{sT1}, s{sH}"); A(f"s_lshl_b32 s{sT1}, s{sT1}, 10")
    A(f"s_add_u32 s{sT3}, s{sT1}, {WS_XY}")
    A(f"buffer_store_dwordx4 {r4(vD2)}, v{vL16}, s[{SRD_WS}:{SRD_WS+3}], s{sT3} offen sc1")
    A(f"s_add_u32 s{sT3}, s{sT1}, {WS_X3}")
    A(f"buffer_store_dwordx4 {r4(vD2)}, v{vL16}, s[{SRD_WS}:{SRD_WS+3}], s{sT3} offen sc1")
    A(f"s_lshr_b32 s{sT1}, s{sT0}, 1")
    A(f"s_add_u32 s{sT3}, s{sT1}, {WS_X2}")
    A(f"buffer_store_dwordx4 {r4(vD2)}, v{vL16}, s[{SRD_WS}:{SRD_WS+3}], s{sT3} offen sc1")
    A("L_noclear:")
    A("s_waitcnt vmcnt(0)")
    A(f"s_cmp_eq_u32 s{sHW}, 0"); A("s_cbranch_scc1 L_f1_h0")
    lds_signal(8)
    A("s_branch L_f1_done")
    A("L_f1_h0:")
    lds_wait(8, 1)
    A(f"s_lshl_b32 s{sT0}, s{sH}, 2")
    A(f"v_mov_b32 v{vU+25}, s{sT0}"); A(f"v_mov_b32 v{vU+26}, 1")
    A("s_mov_b64 exec, 1")
    A(f"global_atomic_add v{vU+25}, v{vU+26}, s[{sDBG}:{sDBG+1}]")
    A("s_mov_b64 exec, -1")
    A(f"v_and_b32 v{vU+25}, 31, v{vLANE}"); A(f"v_lshlrev_b32 v{vU+25}, 2, v{vU+25}")
    A(f"s_mov_b32 s{sSPIN}, {SPIN_LIMIT}")
    A("L_cntpoll:")
    A(f"global_load_dword v{vU+26}, v{vU+25}, s[{sDBG}:{sDBG+1}] sc1")
    A("s_waitcnt vmcnt(0)")
    A(f"v_cmp_gt_u32 vcc, 8, v{vU+26}")
    A(f"s_cmp_eq_u64 vcc, 0"); A("s_cbranch_scc1 L_cnt_ok")
    A(f"s_sleep 4")
    A(f"s_sub_u32 s{sSPIN}, s{sSPIN}, 1"); A(f"s_cmp_lg_u32 s{sSPIN}, 0"); A("s_cbranch_scc1 L_cntpoll")
    A("L_cnt_ok:")
    A(f"s_lshl_b32 s{sT0}, s{sH}, 14")
    for s in range(8):
        A(f"buffer_load_dwordx4 {r4(slot(2*s))}, v{vL16}, s[{SRD_WS}:{SRD_WS+3}], s{sT0} offen sc1")
        A(f"buffer_load_dwordx4 {r4(slot(2*s+1))}, v{vL16}, s[{SRD_WS}:{SRD_WS+3}], s{sT0} offen offset:1024 sc1")
        A(f"s_add_u32 s{sT0}, s{sT0}, 2048")
    A("s_waitcnt vmcnt(0)")
    for mt in range(2):
        for r in range(4):
            A(f"v_add_f32 v{vT+4*mt+r}, v{slot(mt)+r}, v{slot(2+mt)+r}")
            for s in range(2, 8): A(f"v_add_f32 v{vT+4*mt+r}, v{vT+4*mt+r}, v{slot(2*s+mt)+r}")
    A(f"v_lshrrev_b32 v{vU+25}, 1, v{vG}"); A(f"v_mul_u32_u24 v{vU+25}, {4*HSTR}, v{vU+25}")
    A(f"v_and_b32 v{vU+26}, 1, v{vG}"); A(f"v_lshl_add_u32 v{vU+26}, v{vC}, 1, v{vU+26}")
    A(f"v_lshl_add_u32 v{vU+25}, v{vU+26}, 2, v{vU+25}")
    for r in range(4):
        bf16r(vT + r, vT + r); bf16r(vT + 4 + r, vT + 4 + r)
        silu(vT + 8, vT + r, vT + 9, vT + 10)
        A(f"v_mul_f32 v{vT+8}, v{vT+8}, v{vT+4+r}")
        A(f"v_cvt_pk_bf16_f32 v{vT+8}, v{vT+8}, v{vT+8}")
        A(f"ds_write_b32 v{vU+25}, v{vT+8} offset:{HDUP + r*HSTR}")
    lds_signal(12)
    A("L_f1_done:")
    lds_wait(12, 1)
    A(f"v_mul_u32_u24 v{vU+25}, {HSTR}, v{vBG}")
    A(f"s_lshl_b32 s{sT0}, s{sHW}, 5")
    A(f"v_add_u32 v{vU+25}, s{sT0}, v{vU+25}")
    A(f"ds_read_b128 {r4(vX)}, v{vU+25} offset:{HDUP}")
    A(f"ds_read_b128 {r4(vX+4)}, v{vU+25} offset:{HDUP+16}")
    zero4(vD)
    A("s_waitcnt vmcnt(0) lgkmcnt(0)")
    for n in range(8):
        mfma_row(vA0 if n % 2 == 0 else vA1, vX + n, slot(16 + n), vD)
    A(f"s_lshl_b32 s{sT0}, s{sHW}, 10")
    A(f"v_add_u32 v{vRA}, s{sT0}, v{vL16}")
    vPL = vU + 27
    A(f"v_lshrrev_b32 v{vPL}, 1, v{vG}"); A(f"v_lshlrev_b32 v{vPL}, 9, v{vPL}")
    A(f"v_and_b32 v{vU+26}, 1, v{vG}"); A(f"v_lshl_add_u32 v{vPL}, v{vU+26}, 4, v{vPL}")
    A(f"v_lshl_add_u32 v{vPL}, v{vC}, 5, v{vPL}")
    A(f"s_lshr_b32 s{sK4}, s{sH}, 3")
    vGA = vU + 28
    A(f"v_lshlrev_b32 v{vGA}, 10, v{vG}")
    A(f"v_bfe_u32 v{vU+26}, v{vLANE}, 3, 1"); A(f"v_lshl_add_u32 v{vGA}, v{vU+26}, 9, v{vGA}")
    A(f"v_and_b32 v{vU+29}, 7, v{vLANE}"); A(f"v_lshl_add_u32 v{vGA}, v{vU+29}, 4, v{vGA}")
    vOA = vU + 30
    A(f"v_bfe_u32 v{vU+26}, v{vLANE}, 3, 1"); A(f"v_lshlrev_b32 v{vOA}, 11, v{vU+26}")
    A(f"v_lshl_add_u32 v{vOA}, v{vU+29}, 3, v{vOA}")
    A(f"s_lshl_b32 s{sT0}, s{sSUB}, 8"); A(f"s_lshl_b32 s{sT1}, s{sK4}, 6"); A(f"s_add_u32 s{sT0}, s{sT0}, s{sT1}")
    A(f"v_add_u32 v{vOA}, s{sT0}, v{vOA}")
    A(f"s_cmp_eq_u32 s{sHW}, 0"); A("s_cbranch_scc1 L_f2_h0")
    A(f"ds_write_b128 v{vRA}, {r4(vD)} offset:{RED}")
    lds_signal(16)
    A("s_branch L_tail")
    A("L_f2_h0:")
    lds_wait(16, 3)
    for w in range(1, 4): A(f"ds_read_b128 {r4(vT+4*w)}, v{vL16} offset:{RED + w*1024}")
    A("s_waitcnt lgkmcnt(0)")
    for r in range(4):
        for w in range(1, 4): A(f"v_add_f32 v{vD+r}, v{vD+r}, v{vT+4*w+r}")
    sBOX = sT2
    A(f"s_lshl_b32 s{sBOX}, s{sSUB}, 5"); A(f"s_add_u32 s{sBOX}, s{sBOX}, s{sH}"); A(f"s_lshl_b32 s{sBOX}, s{sBOX}, 10")
    A(f"s_add_u32 s{sT0}, s{sBOX}, {WS_XY}")
    A(f"buffer_store_dwordx4 {r4(vD)}, v{vPL}, s[{SRD_WS}:{SRD_WS+3}], s{sT0} offen sc1")
    A(f"s_and_b32 s{sT0}, s{sH}, 7"); A(f"s_cmp_eq_u32 s{sT0}, s{sSUB}"); A(f"s_cselect_b32 s{sISC}, 1, 0")
    A(f"s_cmp_eq_u32 s{sISC}, 0"); A("s_cbranch_scc1 L_tail")
    def gather(base_const, lab):
        A(f"s_mov_b32 s{sSPIN}, {SPIN_LIMIT}")
        A(f"{lab}:")
        A(f"s_lshl_b32 s{sT0}, s{sSUB}, 15"); A(f"s_lshl_b32 s{sT1}, s{sK4}, 7"); A(f"s_add_u32 s{sT0}, s{sT0}, s{sT1}"); A(f"s_add_u32 s{sT0}, s{sT0}, {base_const}")
        for tt in range(8):
            A(f"buffer_load_dwordx4 {r4(slot(tt))}, v{vGA}, s[{SRD_WS}:{SRD_WS+3}], s{sT0} offen sc1")
            if tt < 7: A(f"s_add_u32 s{sT0}, s{sT0}, 4096")
        A("s_waitcnt vmcnt(0)")
        A(f"v_max3_u32 v{vT+4}, v{slot(0)}, v{slot(0)+1}, v{slot(0)+2}")
        regs = [slot(0) + 3] + [slot(tt) + r for tt in range(1, 8) for r in range(4)]
        i = 0
        while i < len(regs):
            if i + 1 < len(regs): A(f"v_max3_u32 v{vT+4}, v{vT+4}, v{regs[i]}, v{regs[i+1]}"); i += 2
            else: A(f"v_max_u32 v{vT+4}, v{vT+4}, v{regs[i]}"); i += 1
        A(f"v_cmp_eq_u32 vcc, -1, v{vT+4}")
        A(f"s_cmp_eq_u64 vcc, 0"); A(f"s_cbranch_scc1 {lab}_ok")
        if sleep: A(f"s_sleep {sleep}")
        A(f"s_sub_u32 s{sSPIN}, s{sSPIN}, 1"); A(f"s_cmp_lg_u32 s{sSPIN}, 0"); A(f"s_cbranch_scc1 {lab}")
        A(f"{lab}_ok:")
        for r in range(4):
            A(f"v_add_f32 v{vT+r}, v{slot(0)+r}, v{slot(1)+r}")
            for tt in range(2, 8): A(f"v_add_f32 v{vT+r}, v{vT+r}, v{slot(tt)+r}")
        for r in range(4):
            A(f"v_mov_b32 v{vT+4+r}, v{vT+r}")
        for r in range(4):
            A(f"v_permlane16_swap_b32 v{vT+r}, v{vT+4+r}")
        for r in range(4):
            A(f"v_add_f32 v{vT+r}, v{vT+r}, v{vT+4+r}")
        for r in range(4):
            A(f"v_mov_b32 v{vT+4+r}, v{vT+r}")
        for r in range(4):
            A(f"v_permlane32_swap_b32 v{vT+r}, v{vT+4+r}")
        for r in range(4):
            A(f"v_add_f32 v{vT+r}, v{vT+r}, v{vT+4+r}")
        for r in range(4): bf16r(vT + r, vT + r)
    gather(WS_XY, "L_gy")
    vGG = vU + 32
    for r in range(4):
        silu(vGG + r, vT + r, vT + 9, vT + 10)
    A(f"buffer_load_dwordx2 v[{vU+40}:{vU+41}], v{vOA}, s[{SRD_A}:{SRD_A+3}], 0 offen")
    A("s_waitcnt vmcnt(0)")
    vXO = vU + 36
    A(f"v_lshlrev_b32 v{vXO}, 16, v{vU+40}"); A(f"v_and_b32 v{vXO+1}, 0xffff0000, v{vU+40}")
    A(f"v_lshlrev_b32 v{vXO+2}, 16, v{vU+41}"); A(f"v_and_b32 v{vXO+3}, 0xffff0000, v{vU+41}")

    A("L_tail:")
    vX2A = vU + 44; vX2M = vU + 45
    A(f"v_bfe_u32 v{vU+26}, v{vLANE}, 2, 2")
    A(f"v_lshrrev_b32 v{vX2M}, 5, v{vLANE}")
    A(f"v_lshl_add_u32 v{vX2M}, v{vX2M}, 2, v{vU+26}")
    A(f"v_lshlrev_b32 v{vX2M}, 10, v{vX2M}")
    A(f"v_bfe_u32 v{vU+26}, v{vLANE}, 4, 1"); A(f"v_and_b32 v{vU+46}, 3, v{vLANE}")
    A(f"v_lshl_add_u32 v{vU+46}, v{vU+26}, 2, v{vU+46}")
    A(f"v_lshl_add_u32 v{vX2A}, v{vU+46}, 4, v{vX2M}")
    A(f"s_lshl_b32 s{sT0}, s{sHW}, 7")
    A(f"v_add_u32 v{vX2A}, s{sT0}, v{vX2A}")
    A(f"v_add_u32 v{vX2M}, 512, v{vX2M}")
    vOW = vU + 47; vOR = vU + 48
    A(f"v_lshrrev_b32 v{vOW}, 5, v{vLANE}"); A(f"v_mul_u32_u24 v{vOW}, {4*OSTR}, v{vOW}")
    A(f"v_lshl_add_u32 v{vOW}, v{vU+46}, 2, v{vOW}")
    A(f"s_mul_i32 s{sT0}, s{sHW}, 384")
    A(f"v_add_u32 v{vOW}, s{sT0}, v{vOW}")
    A(f"v_mul_u32_u24 v{vOR}, {OSTR}, v{vBG}"); A(f"v_add_u32 v{vOR}, s{sT0}, v{vOR}")
    A(f"s_lshl_b32 s{sT3}, s{sH}, 13"); A(f"s_add_u32 s{sT3}, s{sT3}, {WS_X2}")
    zero4(vD)
    A("s_waitcnt vmcnt(0) lgkmcnt(0)")
    A("s_barrier")
    stamp(5)
    A(f"s_mov_b32 s{sSPIN}, {SPIN_LIMIT}")
    A("L_x2poll:")
    vO2 = vT; vM2 = vT + 4
    A(f"buffer_load_dwordx4 {r4(vO2)}, v{vX2A}, s[{SRD_WS}:{SRD_WS+3}], s{sT3} offen sc1")
    A(f"buffer_load_dwordx2 v[{vM2}:{vM2+1}], v{vX2M}, s[{SRD_WS}:{SRD_WS+3}], s{sT3} offen sc1")
    A("s_waitcnt vmcnt(0)")
    A(f"v_max3_u32 v{vT+6}, v{vO2}, v{vO2+1}, v{vO2+2}")
    A(f"v_max3_u32 v{vT+6}, v{vT+6}, v{vO2+3}, v{vM2}")
    A(f"v_max_u32 v{vT+6}, v{vT+6}, v{vM2+1}")
    A(f"v_cmp_eq_u32 vcc, -1, v{vT+6}")
    A(f"s_cmp_eq_u64 vcc, 0"); A("s_cbranch_scc1 L_x2ok")
    if sleep: A(f"s_sleep {sleep}")
    A(f"s_sub_u32 s{sSPIN}, s{sSPIN}, 1"); A(f"s_cmp_lg_u32 s{sSPIN}, 0"); A("s_cbranch_scc1 L_x2poll")
    A("L_x2ok:")
    stamp(6)
    vMb = vT + 7; vFb = vT + 8; vLb = vT + 9
    A(f"v_max_f32_dpp v{vMb}, v{vM2}, v{vM2} row_ror:4 row_mask:0xf bank_mask:0xf")
    A(f"v_max_f32_dpp v{vMb}, v{vMb}, v{vMb} row_ror:8 row_mask:0xf bank_mask:0xf")
    A(f"v_sub_f32 v{vFb}, v{vM2}, v{vMb}")
    A(f"v_mul_f32 v{vFb}, {hex(LOG2E)}, v{vFb}")
    A(f"v_exp_f32 v{vFb}, v{vFb}")
    A(f"v_mul_f32 v{vLb}, v{vFb}, v{vM2+1}")
    for r in range(4): A(f"v_mul_f32 v{vO2+r}, v{vFb}, v{vO2+r}")
    for k in (4, 8):
        A(f"v_add_f32_dpp v{vLb}, v{vLb}, v{vLb} row_ror:{k} row_mask:0xf bank_mask:0xf")
        for r in range(4):
            A(f"v_add_f32_dpp v{vO2+r}, v{vO2+r}, v{vO2+r} row_ror:{k} row_mask:0xf bank_mask:0xf")
    vRb = vT + 10
    A(f"v_rcp_f32 v{vRb}, v{vLb}")
    for r in range(4):
        A(f"v_mul_f32 v{vT+11}, v{vO2+r}, v{vRb}")
        A(f"v_fma_f32 v{vT+12}, -v{vT+11}, v{vLb}, v{vO2+r}")
        A(f"v_fma_f32 v{vT+11}, v{vT+12}, v{vRb}, v{vT+11}")
        A(f"v_cvt_pk_bf16_f32 v{vO2+r}, v{vT+11}, v{vT+11}")
        A(f"ds_write_b32 v{vOW}, v{vO2+r} offset:{ODUP + r*OSTR}")
    A("s_waitcnt lgkmcnt(0)")
    A(f"ds_read_b128 {r4(vX)}, v{vOR} offset:{ODUP}")
    A(f"ds_read_b128 {r4(vX+4)}, v{vOR} offset:{ODUP+16}")
    A("s_waitcnt lgkmcnt(0)")
    for n in range(8):
        mfma_row(vA0 if n % 2 == 0 else vA1, vX + n, slot(24 + n), vD)
    A(f"s_cmp_eq_u32 s{sHW}, 0"); A("s_cbranch_scc1 L_x3_h0")
    A(f"ds_write_b128 v{vRA}, {r4(vD)} offset:{RED}")
    A("s_waitcnt lgkmcnt(0)")
    A("s_barrier")
    A("s_endpgm")
    A("L_x3_h0:")
    A("s_nop 1")
    A("s_barrier")
    for w in range(1, 4): A(f"ds_read_b128 {r4(vT+4*w)}, v{vL16} offset:{RED + w*1024}")
    A("s_waitcnt lgkmcnt(0)")
    for r in range(4):
        for w in range(1, 4): A(f"v_add_f32 v{vD+r}, v{vD+r}, v{vT+4*w+r}")
    A(f"s_add_u32 s{sT0}, s{sBOX}, {WS_X3}")
    A(f"buffer_store_dwordx4 {r4(vD)}, v{vPL}, s[{SRD_WS}:{SRD_WS+3}], s{sT0} offen sc1")
    stamp(7)
    A(f"s_cmp_eq_u32 s{sISC}, 0"); A("s_cbranch_scc1 L_fin")
    gather(WS_X3, "L_g3")
    for r in range(4):
        A(f"v_mul_f32 v{vT+r}, v{vT+r}, v{vGG+r}")
        bf16r(vT + r, vT + r)
        A(f"v_add_f32 v{vT+r}, v{vT+r}, v{vXO+r}")
    A(f"v_cvt_pk_bf16_f32 v{vT+4}, v{vT}, v{vT+1}")
    A(f"v_cvt_pk_bf16_f32 v{vT+5}, v{vT+2}, v{vT+3}")
    srd(SRD_B, sOUT, 4096)
    A("s_mov_b64 exec, 0xffff")
    A(f"buffer_store_dwordx2 v[{vT+4}:{vT+5}], v{vOA}, s[{SRD_B}:{SRD_B+3}], 0 offen")
    A("s_mov_b64 exec, -1")
    A("L_fin:")
    if stamps:
        stamp(8)
        A(f"s_lshl_b32 s{sT0}, s2, 9"); A(f"s_add_u32 s{sT0}, s{sT0}, 0x700100")
        A(f"v_lshlrev_b32 v{vTMP}, 2, v{vLANE}")
        A(f"v_writelane_b32 v{vU+66}, s{sSTAMP0}, 0")
        A(f"buffer_store_dword v{vU+66}, v{vTMP}, s[{SRD_WS}:{SRD_WS+3}], s{sT0} offen")
    A("L_end:")
    A("s_endpgm")

    probs = A.check_branches()
    for p in probs: print("HAZARD across branch:", p, file=sys.stderr)
    out = HEADER
    out += f"; @launch grid=(256,1,1) block=(512,1,1) lds={LDS_BYTES}\n"
    out += '.amdgcn_target "amdgcn-amd-amdhsa--gfx950"\n.text\n'
    out += f".globl {KNAME}\n.p2align 8\n.type {KNAME},@function\n"
    out += A.text()
    out += f""".section .rodata,"a"
.p2align 6
.amdhsa_kernel {KNAME}
  .amdhsa_next_free_vgpr 256
  .amdhsa_next_free_sgpr 96
  .amdhsa_accum_offset 256
  .amdhsa_group_segment_fixed_size 0
  .amdhsa_kernarg_size 96
  .amdhsa_user_sgpr_count 2
  .amdhsa_user_sgpr_kernarg_segment_ptr 1
  .amdhsa_system_sgpr_workgroup_id_x 1
  .amdhsa_float_denorm_mode_32 3
.end_amdhsa_kernel
"""
    return out

if __name__ == "__main__":
    kw = eval("dict(" + (sys.argv[2] if len(sys.argv) > 2 else "") + ")")
    open(sys.argv[1], "w").write(gen(**kw))
```

```python
import sys
sys.path.insert(0, "gen")
from asmlib import Asm, VM

KNAME = "recurrent_scan__mha_block_cached__swiglu_ffn__decode_kernel"

HEADER = """; Kernarg layout for this problem (96 bytes, ptrs only, base s[0:1]):
"""

XDUP = 0; XSTR = 1040
HDUP = 8320; HSTR = 144
ODUP = 9472; OSTR = 48
CNT = 11008
C_QRDY, C_H1, C_H1B, C_H2, C_H3, C_MLW, C_MLRDY, C_STAT, C_XDUP, C_QD, C_PROG = 0, 4, 8, 12, 16, 20, 24, 28, 32, 36, 40
QD = 11264
QPK = 19456
MLW = 19712
MLF = 19744
STAT = 19776
RED = 19968
SCO = 24064
LDS_BYTES = 40448

WS_XQ = 0x000000
WS_X1 = 0x080000
WS_XY = 0x100000
WS_X2 = 0x200000
WS_X3 = 0x300000
WS_XM = 0x400000
WS_XH = 0x480000
WS_Z = 0x500000
WS_DBG = 0x800000

LOG2E = 0x3FB8AA3B
SCALE = 0x3DB504F3
SPIN_LIMIT = 400000

def gen(W=5, WH=4, WE=3, R=16, KPRE=16, qpoll="light", hmode="normal", skip="", napx2=0, napx3=0, PX1=3, prio=2, napml=1, rotk=7, wqflag="nt", kvflag="nt", wflag="nt", dbg=False, stamps=False, sleep=1):
    A = Asm()
    sX, sK, sV, sWQ, sWO, sWG, sWU, sWD, sOUT, sDBG, sWS = 8, 10, 12, 14, 16, 20, 22, 24, 26, 28, 30
    sW, sH, sSUB, sB, sSPLIT, sHW = 3, 32, 33, 34, 35, 36
    sT0, sT1, sT2, sT3 = 37, 38, 39, 40
    sRUN, sOFF, sCNT, sROT = 41, 42, 43, 44
    sBOXH = 45
    sBIT0, sBIT1 = 46, 48
    sSPIN = 50; sSPIN2 = 51
    SRD_A, SRD_B, SRD_C, SRD_D, SRD_WS, SRD_Q = 56, 60, 64, 68, 72, 84
    sSTAMP0 = 76
    sT4, sT5 = 78, 79
    sISC, sK4, sBOXC, sTAG = 80, 81, 82, 83
    vLANE, vL16, vTMP = 1, 2, 3
    vM = 4; vA0, vA1 = 8, 12; vD = 16; vD2 = 20; vQ = 24; vT = 28; vX = 44; vU = 60
    vG, vC, vXA, vBG = vU, vU + 1, vU + 5, vU + 6
    vWQD = 92
    vSIG = 127; vST = 126
    RING = 128
    def slot(i): return RING + 4 * i
    def r4(b): return f"v[{b}:{b+3}]"
    WSR = f"s[{SRD_WS}:{SRD_WS+3}]"

    def srd(base, ptr, size, add=None):
        if add is None:
            A(f"s_mov_b32 s{base}, s{ptr}"); A(f"s_mov_b32 s{base+1}, s{ptr+1}")
        else:
            A(f"s_add_u32 s{base}, s{ptr}, s{add}"); A(f"s_addc_u32 s{base+1}, s{ptr+1}, 0")
        A(f"s_mov_b32 s{base+2}, {size}"); A(f"s_mov_b32 s{base+3}, 0x20000")
    def bf16r(dst, src):
        A(f"v_cvt_pk_bf16_f32 v{dst}, v{src}, v{src}")
        A(f"v_and_b32 v{dst}, 0xffff0000, v{dst}")
    def allreduce(op, r, tmp):
        for k in (8, 4, 2, 1):
            A(f"{op}_dpp v{r}, v{r}, v{r} row_ror:{k} row_mask:0xf bank_mask:0xf")
        A(f"v_mov_b32 v{tmp}, v{r}"); A(f"v_permlane16_swap_b32 v{r}, v{tmp}"); A(f"{op} v{r}, v{r}, v{tmp}")
        A(f"v_mov_b32 v{tmp}, v{r}"); A(f"v_permlane32_swap_b32 v{r}, v{tmp}"); A(f"{op} v{r}, v{r}, v{tmp}")
    def lds_signal(off):
        A("s_waitcnt lgkmcnt(0)")
        A(f"v_mov_b32 v{vTMP}, {CNT+off}"); A(f"v_mov_b32 v{vSIG}, 1")
        A("s_mov_b64 exec, 1")
        A(f"ds_add_u32 v{vTMP}, v{vSIG}")
        A("s_mov_b64 exec, -1")
    def lds_wait(off, n, nap=0):
        lab = A.label("Lw")
        A(f"v_mov_b32 v{vTMP}, {CNT+off}")
        A(f"s_mov_b32 s{sSPIN2}, {SPIN_LIMIT*4}")
        A(f"{lab}:")
        A(f"ds_read_b32 v{vSIG}, v{vTMP}")
        A("s_waitcnt lgkmcnt(0)")
        A(f"v_readfirstlane_b32 s{sT0}, v{vSIG}")
        A(f"s_cmp_ge_u32 s{sT0}, {n}")
        A(f"s_cbranch_scc1 {lab}_ok")
        if nap: A(f"s_sleep {nap}")
        A(f"s_sub_u32 s{sSPIN2}, s{sSPIN2}, 1")
        A(f"s_cmp_lg_u32 s{sSPIN2}, 0")
        A(f"s_cbranch_scc1 {lab}")
        A(f"{lab}_ok:")
    def mfma_row(areg, xreg, breg, dreg, dpp=None):
        for k in range(4):
            if dpp is None: A(f"v_and_b32 v{areg+k}, v{xreg}, v{vM+k}")
            else: A(f"v_and_b32_dpp v{areg+k}, v{xreg}, v{vM+k} row_newbcast:{dpp} row_mask:0xf bank_mask:0xf")
        A(f"v_mfma_f32_16x16x32_bf16 {r4(dreg)}, {r4(areg)}, {r4(breg)}, {r4(dreg)}")
    def zero4(r):
        for k in range(4): A(f"v_mov_b32 v{r+k}, 0")
    def stamp(idx):
        if stamps:
            A(f"s_memrealtime s[{sT4}:{sT5}]"); A("s_waitcnt lgkmcnt(0)")
            A(f"v_writelane_b32 v{vST}, s{sT4}, {idx}")
    def stamp_loop(base, cntreg, top):
        if stamps:
            A(f"s_memrealtime s[{sT4}:{sT5}]"); A("s_waitcnt lgkmcnt(0)")
            A(f"s_sub_u32 s{sT5}, {base+top}, s{cntreg}"); A(f"s_mov_b32 m0, s{sT5}"); A("s_nop 0")
            A(f"v_writelane_b32 v{vST}, s{sT4}, m0")
    def stamp_store(off):
        if stamps:
            A(f"s_lshl_b32 s{sT0}, s2, 9"); A(f"s_add_u32 s{sT0}, s{sT0}, {0x700000+off}")
            A(f"v_lshlrev_b32 v{vTMP}, 2, v{vLANE}")
            A(f"v_writelane_b32 v{vST}, s{sSTAMP0}, 0")
            A(f"buffer_store_dword v{vST}, v{vTMP}, {WSR}, s{sT0} offen")
    def silu(dst, x, t1, t2):
        A(f"v_mul_f32 v{t1}, 0xbfb8aa3b, v{x}")
        A(f"v_exp_f32 v{t1}, v{t1}")
        A(f"v_add_f32 v{t1}, 1.0, v{t1}")
        A(f"v_rcp_f32 v{t2}, v{t1}")
        A(f"v_mul_f32 v{dst}, v{x}, v{t2}")
        bf16r(dst, dst)
    def exp_diff(dst, a, b):
        A(f"v_sub_f32 v{dst}, v{a}, v{b}")
        A(f"v_mul_f32 v{dst}, {hex(LOG2E)}, v{dst}")
        A(f"v_exp_f32 v{dst}, v{dst}")
    def check_sentinel(regs, tmp):
        regs = list(regs)
        if len(regs) >= 3:
            A(f"v_max3_u32 v{tmp}, v{regs[0]}, v{regs[1]}, v{regs[2]}"); i = 3
        else:
            A(f"v_max_u32 v{tmp}, v{regs[0]}, v{regs[1]}"); i = 2
        while i < len(regs):
            if i + 1 < len(regs): A(f"v_max3_u32 v{tmp}, v{tmp}, v{regs[i]}, v{regs[i+1]}"); i += 2
            else: A(f"v_max_u32 v{tmp}, v{tmp}, v{regs[i]}"); i += 1
        A(f"v_cmp_eq_u32 vcc, -1, v{tmp}")
        A(f"s_cmp_eq_u64 vcc, 0")
    def check_tags(regs, tmp):
        regs = list(regs)
        A(f"v_xor_b32 v{tmp}, s{sTAG}, v{regs[0]}")
        if len(regs) > 2:
            A(f"v_xor_b32 v{tmp+1}, s{sTAG}, v{regs[1]}")
            for i, r in enumerate(regs[2:]):
                A(f"v_bitop3_b32 v{tmp+(i&1)}, v{r}, s{sTAG}, v{tmp+(i&1)} bitop3:0xbe")
            A(f"v_or_b32 v{tmp}, v{tmp}, v{tmp+1}")
        else:
            for r in regs[1:]: A(f"v_bitop3_b32 v{tmp}, v{r}, s{sTAG}, v{tmp} bitop3:0xbe")
        A(f"v_cmp_ne_u32 vcc, 0, v{tmp}")
        A(f"s_cmp_eq_u64 vcc, 0")
    def poll_masked(name, issue, regs, tmp, tags=False, nap=0):
        A(f"s_mov_b32 s{sSPIN}, {SPIN_LIMIT}")
        A(f"{name}:")
        issue()
        A("s_waitcnt vmcnt(0)")
        if tags: check_tags(regs, tmp)
        else: check_sentinel(regs, tmp)
        A(f"s_cbranch_scc1 {name}_ok")
        A("s_mov_b64 exec, vcc")
        if nap: A(f"s_sleep {nap}")
        A(f"s_sub_u32 s{sSPIN}, s{sSPIN}, 1"); A(f"s_cmp_lg_u32 s{sSPIN}, 0"); A(f"s_cbranch_scc1 {name}")
        A(f"{name}_ok:")
        A("s_mov_b64 exec, -1")
    def int_sum(regs, dst):
        regs = list(regs)
        A(f"v_add3_u32 v{dst}, v{regs[0]}, v{regs[1]}, v{regs[2]}"); i = 3
        while i < len(regs):
            if i + 1 < len(regs): A(f"v_add3_u32 v{dst}, v{dst}, v{regs[i]}, v{regs[i+1]}"); i += 2
            else: A(f"v_add_u32 v{dst}, v{dst}, v{regs[i]}"); i += 1
    def poll_sum(name, issue, regs, tmp, starget, nap=0, rowreduce=False, masked=True):
        A(f"s_mov_b32 s{sSPIN}, {SPIN_LIMIT}")
        A(f"{name}:")
        issue()
        A("s_waitcnt vmcnt(0)")
        int_sum(regs, tmp)
        if rowreduce:
            for k in (8, 4, 2, 1): A(f"v_add_u32_dpp v{tmp}, v{tmp}, v{tmp} row_ror:{k} row_mask:0xf bank_mask:0xf")
        A(f"v_cmp_ne_u32 vcc, s{starget}, v{tmp}"); A("s_cmp_eq_u64 vcc, 0")
        A(f"s_cbranch_scc1 {name}_ok")
        if masked: A("s_mov_b64 exec, vcc")
        if nap: A(f"s_sleep {nap}")
        A(f"s_sub_u32 s{sSPIN}, s{sSPIN}, 1"); A(f"s_cmp_lg_u32 s{sSPIN}, 0"); A(f"s_cbranch_scc1 {name}")
        A(f"{name}_ok:")
        A("s_mov_b64 exec, -1")
    def poll2(name, issue, nloads, setA, setB, nregs, process, tmp):
        A(f"s_mov_b32 s{sSPIN}, {SPIN_LIMIT}")
        issue(setA)
        A(f"{name}_loop:")
        issue(setB)
        A(f"s_waitcnt vmcnt({nloads})")
        check_sentinel(range(setA, setA + nregs), tmp)
        A(f"s_cbranch_scc1 {name}_okA")
        issue(setA)
        A(f"s_waitcnt vmcnt({nloads})")
        check_sentinel(range(setB, setB + nregs), tmp)
        A(f"s_cbranch_scc1 {name}_okB")
        A(f"s_sub_u32 s{sSPIN}, s{sSPIN}, 1"); A(f"s_cmp_lg_u32 s{sSPIN}, 0")
        A(f"s_cbranch_scc0 {name}_okB")
        A(f"s_branch {name}_loop")
        A(f"{name}_okB:")
        process(setB)
        A(f"s_branch {name}_end")
        A(f"{name}_okA:")
        process(setA)
        A(f"{name}_end:")

    A(f"{KNAME}:")
    A("s_cmp_ge_u32 s2, 256")
    A("s_cbranch_scc1 L_end")
    A(f"s_load_dwordx16 s[8:23], s[0:1], 0")
    A(f"s_load_dwordx8 s[24:31], s[0:1], 64")
    if stamps: A(f"s_memrealtime s[{sSTAMP0}:{sSTAMP0+1}]")
    A(f"v_and_b32 v{vLANE}, 63, v0")
    A(f"v_lshrrev_b32 v{vTMP}, 6, v0")
    A(f"v_lshlrev_b32 v{vL16}, 4, v{vLANE}")
    A(f"v_readfirstlane_b32 s{sW}, v{vTMP}")
    A(f"s_and_b32 s{sT0}, s2, 7"); A(f"s_lshl_b32 s{sH}, s{sT0}, 2")
    A(f"s_lshr_b32 s{sT1}, s2, 3"); A(f"s_and_b32 s{sT0}, s{sT1}, 3"); A(f"s_add_u32 s{sH}, s{sH}, s{sT0}")
    A(f"s_lshr_b32 s{sSUB}, s{sT1}, 2")
    A(f"s_lshr_b32 s{sB}, s{sSUB}, 2"); A(f"s_and_b32 s{sSPLIT}, s{sSUB}, 3")
    A(f"s_lshl_b32 s{sBOXH}, s{sH}, 3"); A(f"s_add_u32 s{sBOXH}, s{sBOXH}, s{sSUB}")
    A(f"s_lshl_b32 s{sBOXC}, s{sSUB}, 5"); A(f"s_add_u32 s{sBOXC}, s{sBOXC}, s{sH}"); A(f"s_lshl_b32 s{sBOXC}, s{sBOXC}, 10")
    A(f"s_mul_i32 s{sROT}, s2, {rotk*16384}"); A(f"s_and_b32 s{sROT}, s{sROT}, 0xfffff")
    A(f"s_sub_u32 s{sHW}, s{sW}, 4")
    A(f"v_lshrrev_b32 v{vG}, 4, v{vLANE}")
    A(f"v_and_b32 v{vC}, 15, v{vLANE}")
    vWQ = vU + 20
    A(f"v_lshlrev_b32 v{vWQ}, 13, v{vG}")
    A(f"v_lshl_add_u32 v{vWQ}, v{vC}, 4, v{vWQ}")
    A("s_waitcnt lgkmcnt(0)")
    A(f"s_add_u32 s{sT4}, s{sWS}, {WS_Z}"); A(f"s_addc_u32 s{sT5}, s{sWS+1}, 0")
    A(f"s_load_dword s{sTAG}, s[{sT4}:{sT5}], 0")
    srd(SRD_A, sX, 4096)
    sPIV = 52
    vXR = vU + 8
    vF1 = vU + 21; vWD = vU + 22; vWD2 = vU + 23
    A(f"s_cmp_ge_u32 s{sW}, 4")
    A("s_cbranch_scc1 L_helper_issue")

    vms = VM(A)
    A(f"s_and_b32 s{sT0}, s{sW}, 1"); A(f"s_lshl_b32 s{sT0}, s{sT0}, 11")
    A(f"s_load_dword s{sPIV}, s[{sX}:{sX+1}], s{sT0}")
    A(f"s_lshr_b32 s{sT1}, s{sW}, 1"); A(f"s_lshl_b32 s{sT1}, s{sT1}, 10"); A(f"s_add_u32 s{sT0}, s{sT0}, s{sT1}")
    A(f"buffer_load_dwordx4 {r4(vXR)}, v{vL16}, s[{SRD_A}:{SRD_A+3}], s{sT0} offen"); vms.issue("x")
    A(f"s_lshl_b32 s{sT0}, s{sH}, 8")
    srd(SRD_Q, sWQ, 8388608 - 31 * 256, add=sT0)
    A(f"s_lshl_b32 s{sT0}, s{sSUB}, 5"); A(f"s_lshl_b32 s{sT1}, s{sW}, 3"); A(f"s_add_u32 s{sT0}, s{sT0}, s{sT1}"); A(f"s_lshl_b32 s{sOFF}, s{sT0}, 15")
    WQS = 16
    for n in range(8):
        A(f"buffer_load_dwordx4 {r4(slot(WQS+n))}, v{vWQ}, s[{SRD_Q}:{SRD_Q+3}], s{sOFF} offen {wqflag}"); vms.issue(("wq", n))
        if n < 7: A(f"s_add_u32 s{sOFF}, s{sOFF}, 32768")
    A(f"v_mov_b32 v{vX}, 0"); A(f"v_lshlrev_b32 v{vX+1}, 2, v{vLANE}")
    A(f"s_mov_b64 exec, 0xffff")
    A(f"ds_write_b32 v{vX+1}, v{vX} offset:{CNT}")
    A("s_mov_b64 exec, -1")
    srd(SRD_WS, sWS, 0x1000000)
    srd(SRD_B, sX, 0)
    A(f"s_lshl_b32 s{sT0}, s{sB}, 5"); A(f"s_add_u32 s{sT0}, s{sT0}, s{sH}"); A(f"s_lshl_b32 s{sT0}, s{sT0}, 2")
    A(f"s_add_u32 s{sT0}, s{sT0}, s{sSPLIT}"); A(f"s_lshl_b32 s{sT0}, s{sT0}, 20")
    srd(SRD_C, sK, 0x100000, add=sT0)
    srd(SRD_D, sV, 0x100000, add=sT0)
    A(f"s_lshl_b32 s{sT0}, s{sW}, 12"); A(f"s_add_u32 s{sRUN}, s{sROT}, s{sT0}")
    for r in (vF1, vWD, vWD2, vU + 28, vU + 30): A(f"v_mov_b32 v{r}, 0")
    A("s_waitcnt lgkmcnt(0)")
    A("s_barrier")
    cur = {"vm": vms}
    def kv_issue(idx, srdb, tag, state, ring):
        piece = idx >> 2
        key = (srdb, piece, state.get("epoch", 0))
        if state.get("cur") != key:
            if piece == 0: A(f"s_and_b32 s{sOFF}, s{sRUN}, 0xfffff")
            else:
                A(f"s_add_u32 s{sOFF}, s{sRUN}, {piece*16384}"); A(f"s_and_b32 s{sOFF}, s{sOFF}, 0xfffff")
            state["cur"] = key
        A(f"buffer_load_dwordx4 {r4(slot((idx + state.get('slot0', 0)) % ring))}, v{vL16}, s[{srdb}:{srdb+3}], s{sOFF} offen offset:{(idx&3)*1024} {kvflag}")
        cur["vm"].issue(tag)
    def masks():
        A(f"v_and_b32 v{vU+2}, 1, v{vC}")
        A(f"v_lshlrev_b32 v{vU+2}, 4, v{vU+2}")
        A(f"v_mov_b32 v{vU+3}, 0xffff")
        A(f"v_lshlrev_b32 v{vU+3}, v{vU+2}, v{vU+3}")
        A(f"v_bfe_u32 v{vU+4}, v{vC}, 1, 2")
        for k in range(4):
            A(f"v_cmp_eq_u32 vcc, {k}, v{vU+4}")
            A(f"v_cndmask_b32 v{vM+k}, 0, v{vU+3}, vcc")
        A(f"v_lshrrev_b32 v{vU+2}, 3, v{vC}")
        A(f"v_lshl_add_u32 v{vBG}, v{vU+2}, 2, v{vG}")
        A(f"v_mul_u32_u24 v{vXA}, {XSTR}, v{vBG}")
    masks()
    A(f"s_mov_b32 s{sBIT0}, 0xaaaaaaaa"); A(f"s_mov_b32 s{sBIT0+1}, 0xaaaaaaaa")
    A(f"s_mov_b32 s{sBIT1}, 0xcccccccc"); A(f"s_mov_b32 s{sBIT1+1}, 0xcccccccc")
    A(f"s_add_u32 s{sTAG}, s{sTAG}, 1")
    A(f"s_lshl_b32 s{sPIV}, s{sPIV}, 16")
    vms.wait("x")
    st = {}
    for n in range(WE): kv_issue(n, SRD_C, ("k", n), st, 16)
    stamp(9)
    vY = vT; vZ = vT + 8
    for k in range(4):
        A(f"v_lshlrev_b32 v{vY+2*k}, 16, v{vXR+k}"); A(f"v_and_b32 v{vY+2*k+1}, 0xffff0000, v{vXR+k}")
    for k in range(8): A(f"v_subrev_f32 v{vZ+k}, s{sPIV}, v{vY+k}")
    vS = vX; vSB = vX + 1; vS2 = vX + 2; vMEAN = vX + 6
    A(f"v_add_f32 v{vS}, v{vZ}, v{vZ+1}"); A(f"v_mul_f32 v{vSB}, v{vZ}, v{vZ}")
    A(f"v_add_f32 v{vS2}, v{vZ+2}, v{vZ+3}"); A(f"v_mul_f32 v{vS2+1}, v{vZ+1}, v{vZ+1}")
    for k in (4, 6):
        A(f"v_add_f32 v{vS}, v{vS}, v{vZ+k}"); A(f"v_add_f32 v{vS2}, v{vS2}, v{vZ+k+1}")
    for k in (2, 4, 6):
        A(f"v_fmac_f32 v{vSB}, v{vZ+k}, v{vZ+k}"); A(f"v_fmac_f32 v{vS2+1}, v{vZ+k+1}, v{vZ+k+1}")
    A(f"v_add_f32 v{vS}, v{vS}, v{vS2}"); A(f"v_add_f32 v{vSB}, v{vSB}, v{vS2+1}")
    fill = [f"s_and_b32 s{sT0}, s{sW}, 1", f"s_mul_i32 s{sT1}, s{sT0}, {4*XSTR}",
            f"s_lshr_b32 s{sT2}, s{sW}, 1", f"s_lshl_b32 s{sT3}, s{sT2}, 9", f"s_add_u32 s{sT1}, s{sT1}, s{sT3}",
            f"s_lshl_b32 s{sT0}, s{sT0}, 4", f"s_lshl_b32 s{sT2}, s{sT2}, 3", f"s_add_u32 s{sT2}, s{sT2}, s{sT0}"]
    for i, k in enumerate((8, 4, 2, 1)):
        A(f"v_add_f32_dpp v{vS}, v{vS}, v{vS} row_ror:{k} row_mask:0xf bank_mask:0xf")
        A(f"v_add_f32_dpp v{vSB}, v{vSB}, v{vSB} row_ror:{k} row_mask:0xf bank_mask:0xf")
        A(fill[2*i]); A(fill[2*i+1])
    for swap in ("v_permlane16_swap_b32", "v_permlane32_swap_b32"):
        A(f"v_mov_b32 v{vS2}, v{vS}"); A(f"v_mov_b32 v{vS2+1}, v{vSB}")
        A(f"{swap} v{vS}, v{vS2}"); A(f"{swap} v{vSB}, v{vS2+1}")
        A(f"v_add_f32 v{vS}, v{vS}, v{vS2}"); A(f"v_add_f32 v{vSB}, v{vSB}, v{vS2+1}")
    vXW = vU + 9 + 3
    A(f"v_lshlrev_b32 v{vXW}, 3, v{vLANE}")
    A(f"v_add_u32 v{vXW}, s{sT1}, v{vXW}")
    A(f"v_mov_b32 v{vS2}, s{sT2}"); A(f"v_mov_b32 v{vXW+1}, s{sT0}")
    A("s_mov_b64 exec, 1")
    A(f"ds_write_b64 v{vS2}, v[{vS}:{vS+1}] offset:{STAT}")
    A("s_mov_b64 exec, -1")
    lds_signal(C_STAT)
    lds_wait(C_STAT, 4)
    A(f"ds_read_b128 {r4(vZ)}, v{vXW+1} offset:{STAT}")
    A("s_waitcnt lgkmcnt(0)")
    A(f"v_add_f32 v{vS}, v{vZ}, v{vZ+2}"); A(f"v_add_f32 v{vSB}, v{vZ+1}, v{vZ+3}")
    A(f"v_mul_f32 v{vS}, 0x3a800000, v{vS}"); A(f"v_mul_f32 v{vSB}, 0x3a800000, v{vSB}")
    A(f"v_add_f32 v{vMEAN}, s{sPIV}, v{vS}")
    A(f"v_fma_f32 v{vS}, -v{vS}, v{vS}, v{vSB}")
    A(f"v_max_f32 v{vS}, 0, v{vS}")
    bf16r(vS, vS)
    A(f"v_add_f32 v{vS}, 0x3727c5ac, v{vS}")
    bf16r(vS, vS)
    vSQ = vX + 3; vR = vX + 4; vE = vX + 5
    A(f"v_sqrt_f32 v{vSQ}, v{vS}")
    bf16r(vMEAN, vMEAN)
    A(f"v_rcp_f32 v{vR}, v{vSQ}")
    A(f"v_fma_f32 v{vE}, -v{vSQ}, v{vSQ}, v{vS}")
    A(f"v_mul_f32 v{vE}, 0.5, v{vE}")
    A(f"v_fma_f32 v{vSQ}, v{vE}, v{vR}, v{vSQ}")
    bf16r(vSQ, vSQ)
    A(f"v_rcp_f32 v{vR}, v{vSQ}")
    for k in range(8): A(f"v_sub_f32 v{vY+k}, v{vY+k}, v{vMEAN}")
    for k in range(8): bf16r(vY + k, vY + k)
    for k in range(8): A(f"v_mul_f32 v{vZ+k}, v{vY+k}, v{vR}")
    vZ2 = vX + 8
    for k in range(8): A(f"v_fma_f32 v{vZ2+k}, -v{vZ+k}, v{vSQ}, v{vY+k}")
    for k in range(8): A(f"v_fma_f32 v{vZ+k}, v{vZ2+k}, v{vR}, v{vZ+k}")
    for g in range(4):
        A(f"v_cvt_pk_bf16_f32 v{vY+2*g}, v{vZ+g}, v{vZ+g}"); A(f"v_cvt_pk_bf16_f32 v{vY+2*g+1}, v{vZ+g+4}, v{vZ+g+4}")
    for g in range(4): A(f"ds_write_b64 v{vXW}, v[{vY+2*g}:{vY+2*g+1}] offset:{XDUP + g*XSTR}")
    lds_signal(C_XDUP)
    A(f"s_lshl_b32 s{sT0}, s{sSUB}, 7"); A(f"s_lshl_b32 s{sT1}, s{sW}, 5"); A(f"s_add_u32 s{sT0}, s{sT0}, s{sT1}")
    A(f"v_add_u32 v{vU+24}, s{sT0}, v{vXA}")
    zero4(vD)
    lds_wait(C_XDUP, 4)
    stamp(1)
    A(f"ds_read_b128 {r4(vX)}, v{vU+24} offset:{XDUP}")
    A(f"ds_read_b128 {r4(vX+4)}, v{vU+24} offset:{XDUP+16}")
    A(f"s_lshl_b32 s{sT0}, s{sW}, 10")
    A(f"v_add_u32 v{vU+25}, s{sT0}, v{vL16}")
    vms.wait(("wq", 7))
    A("s_waitcnt lgkmcnt(0)")
    for n in range(8): mfma_row(vA0 if n % 2 == 0 else vA1, vX + n, slot(WQS + n), vD)
    A(f"ds_write_b128 v{vU+25}, {r4(vD)} offset:{QD}")
    lds_signal(C_QD)
    vm = vms
    st = {}
    for n in range(WE, KPRE):
        A(f"s_waitcnt vmcnt({WE-1})")
        kv_issue(n, SRD_C, ("k", n), st, 16)
    vm.q = [("k", n) for n in range(KPRE)]
    lds_wait(C_QRDY, 1)
    A(f"v_lshlrev_b32 v{vTMP}, 4, v{vC}")
    A(f"ds_read_b128 {r4(vQ)}, v{vTMP} offset:{QPK}")
    vMX = vU + 25; vSA = vU + 26; vSC = vU + 27; vS1 = vU + 28; vLs = vU + 29; vE1 = vU + 30; vE2 = vU + 31
    A(f"v_mov_b32 v{vMX}, 0xff800000"); A(f"v_mov_b32 v{vLs}, 0")
    A(f"s_lshl_b32 s{sT0}, s{sW}, 12")
    A(f"v_lshlrev_b32 v{vSA}, 2, v{vLANE}")
    A(f"v_add_u32 v{vSA}, s{sT0}, v{vSA}")
    A("s_waitcnt lgkmcnt(0)")
    if dbg:
        A(f"s_lshl_b32 s{sT0}, s2, 14"); A(f"s_lshl_b32 s{sT1}, s{sW}, 10"); A(f"s_add_u32 s{sT0}, s{sT0}, s{sT1}"); A(f"s_add_u32 s{sT0}, s{sT0}, {WS_DBG}")
        A(f"buffer_store_dwordx4 {r4(vQ)}, v{vL16}, {WSR}, s{sT0} offen"); A("s_waitcnt vmcnt(0)")
    stamp(2)
    def kpost(T):
        o = []
        for j in range(8): o.append(f"v_add_f32_dpp v{T+j}, v{T+j}, v{T+j} row_ror:8 row_mask:0xf bank_mask:0x3")
        for j in range(8): o.append(f"v_add_f32_dpp v{T+j}, v{T+j+8}, v{T+j+8} row_ror:8 row_mask:0xf bank_mask:0xc")
        for j in range(4): o.append(f"v_add_f32_dpp v{T+j}, v{T+j}, v{T+j} row_shl:4 row_mask:0xf bank_mask:0x5")
        for j in range(4): o.append(f"v_add_f32_dpp v{T+j}, v{T+j+4}, v{T+j+4} row_shr:4 row_mask:0xf bank_mask:0xa")
        for j in range(4): o.append(f"v_add_f32_dpp v{T+8+j}, v{T+j}, v{T+j} quad_perm:[2,3,0,1] row_mask:0xf bank_mask:0xf")
        o.append(f"v_cndmask_b32 v{T}, v{T+8}, v{T+10}, s[{sBIT1}:{sBIT1+1}]")
        o.append(f"v_cndmask_b32 v{T+1}, v{T+9}, v{T+11}, s[{sBIT1}:{sBIT1+1}]")
        o.append(f"v_add_f32_dpp v{T+8}, v{T}, v{T} quad_perm:[1,0,3,2] row_mask:0xf bank_mask:0xf")
        o.append(f"v_add_f32_dpp v{T+9}, v{T+1}, v{T+1} quad_perm:[1,0,3,2] row_mask:0xf bank_mask:0xf")
        o.append(f"v_cndmask_b32 v{vSC}, v{T+8}, v{T+9}, s[{sBIT0}:{sBIT0+1}]")
        o += [f"v_cvt_pk_bf16_f32 v{vSC}, v{vSC}, v{vSC}", f"v_and_b32 v{vSC}, 0xffff0000, v{vSC}",
              f"v_mul_f32 v{vSC}, {hex(SCALE)}, v{vSC}",
              f"v_cvt_pk_bf16_f32 v{vSC}, v{vSC}, v{vSC}", f"v_and_b32 v{vSC}, 0xffff0000, v{vSC}",
              f"ds_write_b32 v{vSA}, v{vSC} offset:{SCO}",
              f"v_max_f32 v{vS1}, v{vMX}, v{vSC}",
              f"v_sub_f32 v{vE1}, v{vMX}, v{vS1}", f"v_sub_f32 v{vE2}, v{vSC}, v{vS1}",
              f"v_mul_f32 v{vE1}, {hex(LOG2E)}, v{vE1}", f"v_mul_f32 v{vE2}, {hex(LOG2E)}, v{vE2}",
              f"v_exp_f32 v{vE1}, v{vE1}", f"v_exp_f32 v{vE2}, v{vE2}",
              f"v_mov_b32 v{vMX}, v{vS1}", f"v_add_u32 v{vSA}, 256, v{vSA}",
              f"v_fma_f32 v{vLs}, v{vLs}, v{vE1}, v{vE2}"]
        return o
    def kblock(base, T, post, issue):
        n = len(post); per = (n + 15) // 16
        for j in range(16):
            vm.wait(("k", base + j))
            issue(base + j)
            b = slot(j)
            A(f"v_dot2_f32_bf16 v{T+j}, v{b}, v{vQ}, 0")
            for k in range(1, 4): A(f"v_dot2_f32_bf16 v{T+j}, v{b+k}, v{vQ+k}, v{T+j}")
            for ins in post[j*per:(j+1)*per]: A(ins)
    def retag(name, shift):
        vm.q = [((name, t[1] + shift) if (isinstance(t, tuple) and t[0] == name) else t) for t in vm.q]
    T0, T1 = vT, vX
    st = {}
    def iss_first(n, ring, pre, srdb, nm):
        if pre < ring or W > ring - 1:
            if n + W >= pre: kv_issue(n + W, srdb, (nm, n + W), st, ring)
        else:
            if 1 <= n <= W: kv_issue(ring + n - 1, srdb, (nm, ring + n - 1), st, ring)
    kblock(0, T0, [], lambda n: iss_first(n, 16, KPRE, SRD_C, "k"))
    retag("k", -16)
    A(f"s_add_u32 s{sRUN}, s{sRUN}, 65536")
    A(f"s_mov_b32 s{sCNT}, 7")
    A("L_kloop:")
    q_in = list(vm.q); st = {}
    kblock(0, T1, kpost(T0), lambda n: kv_issue(n + W, SRD_C, ("k", n + W), st, 16))
    kblock(16, T0, kpost(T1), lambda n: kv_issue(n + W, SRD_C, ("k", n + W), st, 16))
    retag("k", -32)
    assert vm.q == q_in, (vm.q, q_in)
    lds_signal(C_PROG)
    stamp_loop(16, sCNT, 7)
    A(f"s_add_u32 s{sRUN}, s{sRUN}, 131072")
    A(f"s_sub_u32 s{sCNT}, s{sCNT}, 1"); A(f"s_cmp_lg_u32 s{sCNT}, 0"); A("s_cbranch_scc1 L_kloop")
    st = {}
    sRUNV = sT2
    A(f"s_lshl_b32 s{sT0}, s{sW}, 12"); A(f"s_add_u32 s{sRUNV}, s{sROT}, s{sT0}")
    VOFF = 16 if R == 32 else 0
    def issl(j):
        if j + W < 16: kv_issue(j + W, SRD_C, ("k", j + W), st, 16)
        else:
            if st.get("epoch", 0) == 0:
                st["epoch"] = 1; st["slot0"] = VOFF; A(f"s_mov_b32 s{sRUN}, s{sRUNV}")
            kv_issue(j + W - 16, SRD_D, ("v", j + W - 16), st, R)
    kblock(0, T1, kpost(T0), issl)
    for ins in kpost(T1): A(ins)
    stamp(3)
    A(f"v_mov_b32 v{vS1}, v{vMX}")
    allreduce("v_max_f32", vS1, vE1)
    exp_diff(vE1, vMX, vS1)
    A(f"v_mul_f32 v{vLs}, v{vLs}, v{vE1}")
    allreduce("v_add_f32", vLs, vE1)
    vPAIR = vX
    A(f"v_mov_b32 v{vPAIR}, v{vS1}"); A(f"v_mov_b32 v{vPAIR+1}, v{vLs}")
    A(f"s_lshl_b32 s{sT0}, s{sW}, 3"); A(f"v_mov_b32 v{vE1}, s{sT0}")
    A("s_mov_b64 exec, 1")
    A(f"ds_write_b64 v{vE1}, v[{vPAIR}:{vPAIR+1}] offset:{MLW}")
    A("s_mov_b64 exec, -1")
    lds_signal(C_MLW)
    st = {"epoch": 1, "slot0": VOFF}
    for n in range(W, R):
        A(f"s_waitcnt vmcnt({W-1})")
        kv_issue(n, SRD_D, ("v", n), st, R)
    A(f"v_subrev_u32 v{vSA}, 4096, v{vSA}")
    vL = None; vP = vU + 31; vSN = vU + 32; vP2 = vU + 33; vMG = vX + 2; vIL = vX + 3
    A(f"ds_read_b32 v{vSN}, v{vSA} offset:{SCO}")
    zero4(vD)
    lds_wait(C_MLRDY, 1)
    A(f"v_mov_b32 v{vE1}, 0")
    A(f"ds_read_b64 v[{vMG}:{vMG+1}], v{vE1} offset:{MLF}")
    stamp(10)
    def vblock(base, issue, last=False):
        A("s_waitcnt lgkmcnt(0)")
        exp_diff(vP, vSN, vMG)
        if not last:
            A(f"v_add_u32 v{vSA}, 256, v{vSA}")
            A(f"ds_read_b32 v{vSN}, v{vSA} offset:{SCO}")
        A(f"v_mul_f32 v{vP}, v{vP}, v{vIL}")
        A(f"v_cvt_pk_bf16_f32 v{vP2}, v{vP}, v{vP}")
        for j in range(16):
            vm.wait(("v", base + j))
            issue(base + j)
            mfma_row(vA0 if j % 2 == 0 else vA1, vP2, slot((base + j + VOFF) % R), vD, dpp=j)
    NB = R // 16
    vm.q = [("v", n) for n in range(R)]
    st = {"epoch": 1, "slot0": VOFF}
    for bb in range(NB):
        vblock(16 * bb, lambda n: iss_first(n, R, R, SRD_D, "v"))
    retag("v", -R)
    A(f"s_add_u32 s{sRUN}, s{sRUN}, {65536*NB}")
    A(f"s_mov_b32 s{sCNT}, {16//NB - 2}")
    A("L_vloop:")
    q_in = list(vm.q); st = {"epoch": 1, "slot0": VOFF}
    for bb in range(NB):
        vblock(16 * bb, lambda n: kv_issue(n + W, SRD_D, ("v", n + W), st, R))
    retag("v", -R)
    assert vm.q == q_in, (vm.q, q_in)
    stamp_loop(32, sCNT, 14)
    A(f"s_add_u32 s{sRUN}, s{sRUN}, {65536*NB}")
    A(f"s_sub_u32 s{sCNT}, s{sCNT}, 1"); A(f"s_cmp_lg_u32 s{sCNT}, 0"); A("s_cbranch_scc1 L_vloop")
    st = {"epoch": 1, "slot0": VOFF}
    for bb in range(NB):
        vblock(16 * bb, lambda n: kv_issue(n + W, SRD_D, ("v", n + W), st, R) if n + W < R else None, last=(bb == NB - 1))
    A(f"v_lshlrev_b32 v{vTMP}, 5, v{vC}")
    A(f"v_lshl_add_u32 v{vTMP}, v{vG}, 4, v{vTMP}")
    A(f"s_lshl_b32 s{sT0}, s{sBOXH}, 11"); A(f"s_lshl_b32 s{sT1}, s{sW}, 9"); A(f"s_add_u32 s{sT0}, s{sT0}, s{sT1}"); A(f"s_add_u32 s{sT0}, s{sT0}, {WS_X2}")
    A("s_mov_b32 exec_hi, 0")
    A(f"buffer_store_dwordx4 {r4(vD)}, v{vTMP}, {WSR}, s{sT0} offen sc1")
    A("s_mov_b64 exec, -1")
    stamp(4)
    A("s_barrier")
    if stamps:
        A(f"s_cmp_lg_u32 s{sW}, 0"); A("s_cbranch_scc1 L_end")
        stamp_store(0)
    A("s_endpgm")

    A("L_helper_issue:")
    vmh = VM(A)
    srd(SRD_WS, sWS, 0x1000000)
    srd(SRD_Q, sV if hmode == "contig" else sX, 0x4000000 if hmode == "contig" else 0)
    A(f"v_mul_u32_u24 v{vF1}, 7168, v{vG}")
    A(f"v_lshl_add_u32 v{vF1}, v{vC}, 4, v{vF1}")
    A(f"v_mov_b32 v{vWD2}, 0x40000000")
    A(f"v_cmp_gt_u32 vcc, 14, v{vC}")
    A(f"v_cndmask_b32 v{vF1}, v{vWD2}, v{vF1}, vcc")
    A(f"s_and_b32 s{sT0}, s{sHW}, 1"); A(f"s_cmp_eq_u32 s{sT0}, 0")
    A(f"s_cselect_b32 s{sT2}, s{sWG}, s{sWU}"); A(f"s_cselect_b32 s{sT3}, s{sWG+1}, s{sWU+1}")
    A(f"s_mul_i32 s{sT0}, s{sH}, 224")
    A(f"s_add_u32 s{SRD_B}, s{sT2}, s{sT0}"); A(f"s_addc_u32 s{SRD_B+1}, s{sT3}, 0")
    A(f"s_mov_b32 s{SRD_B+2}, {1024*7168 - 31*224}"); A(f"s_mov_b32 s{SRD_B+3}, 0x20000")
    A(f"s_lshl_b32 s{sT0}, s{sSUB}, 7"); A(f"s_lshr_b32 s{sT1}, s{sHW}, 1"); A(f"s_lshl_b32 s{sT1}, s{sT1}, 6")
    A(f"s_add_u32 s{sT0}, s{sT0}, s{sT1}"); A(f"s_mul_i32 s{sRUN}, s{sT0}, 7168")
    A(f"v_lshlrev_b32 v{vWD}, 11, v{vG}")
    A(f"v_lshl_add_u32 v{vWD}, v{vC}, 4, v{vWD}")
    A(f"s_cmp_lg_u32 s{sHW}, 3"); A("s_cbranch_scc0 L_wd_oob")
    A(f"v_mov_b32 v{vWD2}, v{vWD}")
    A("L_wd_oob:")
    A(f"s_mul_i32 s{sT0}, s{sH}, {112*2048}"); A(f"s_lshl_b32 s{sT1}, s{sSUB}, 8"); A(f"s_add_u32 s{sT0}, s{sT0}, s{sT1}")
    srd(SRD_C, sWD, 111 * 2048 + 256, add=sT0)
    A(f"s_lshl_b32 s{sT0}, s{sH}, 18"); A(f"s_add_u32 s{sT0}, s{sT0}, s{sT1}")
    srd(SRD_D, sWO, 127 * 2048 + 256, add=sT0)
    sHB = sCNT
    A(f"s_lshl_b32 s{sHB}, s{sHW}, 16")
    def h_issue(n):
        if n >= 32: return
        if hmode == "contig":
            A(f"s_lshl_b32 s{sOFF}, s2, 17"); A(f"s_lshl_b32 s{sT5}, s{sHW}, 10"); A(f"s_add_u32 s{sOFF}, s{sOFF}, s{sT5}"); A(f"s_add_u32 s{sOFF}, s{sOFF}, {n*4096}")
            A(f"buffer_load_dwordx4 {r4(slot(n))}, v{vL16}, s[{SRD_Q}:{SRD_Q+3}], s{sOFF} offen {wflag}")
        elif hmode == "none":
            A(f"s_mov_b32 s{sOFF}, 0")
            A(f"buffer_load_dwordx4 {r4(slot(n))}, v{vL16}, s[{SRD_A}:{SRD_A+3}], s{sOFF} offen")
        elif n < 16:
            A(f"s_add_u32 s{sOFF}, s{sRUN}, {n*28672}")
            A(f"buffer_load_dwordx4 {r4(slot(n))}, v{vF1}, s[{SRD_B}:{SRD_B+3}], s{sOFF} offen {wflag}")
        elif n < 24:
            A(f"s_add_u32 s{sOFF}, s{sHB}, {(n-16)*8192}")
            A(f"buffer_load_dwordx4 {r4(slot(n))}, v{vWD if n < 20 else vWD2}, s[{SRD_C}:{SRD_C+3}], s{sOFF} offen {wflag}")
        else:
            A(f"s_add_u32 s{sOFF}, s{sHB}, {(n-24)*8192}")
            A(f"buffer_load_dwordx4 {r4(slot(n))}, v{vWD}, s[{SRD_D}:{SRD_D+3}], s{sOFF} offen {wflag}")
        vmh.issue(("h", n))
    A("s_waitcnt lgkmcnt(0)")
    A("s_barrier")
    A(f"s_add_u32 s{sTAG}, s{sTAG}, 1")
    A(f"s_cmp_lg_u32 s{sHW}, 0"); A("s_cbranch_scc1 L_noclear")
    for k in range(4): A(f"v_mov_b32 v{vD2+k}, -1")
    A(f"s_add_u32 s{sT1}, s{sBOXC}, {WS_X3}")
    A(f"buffer_store_dwordx4 {r4(vD2)}, v{vL16}, {WSR}, s{sT1} offen sc1")
    A(f"s_lshl_b32 s{sT0}, s{sBOXH}, 11"); A(f"s_add_u32 s{sT1}, s{sT0}, {WS_X2}")
    A(f"buffer_store_dwordx4 {r4(vD2)}, v{vL16}, {WSR}, s{sT1} offen sc1")
    A(f"buffer_store_dwordx4 {r4(vD2)}, v{vL16}, {WSR}, s{sT1} offen offset:1024 sc1")
    A(f"s_lshl_b32 s{sT1}, s{sBOXH}, 7"); A(f"s_add_u32 s{sT1}, s{sT1}, {WS_XM}")
    A("s_mov_b64 exec, 0xff")
    A(f"buffer_store_dwordx4 {r4(vD2)}, v{vL16}, {WSR}, s{sT1} offen sc1")
    A("s_mov_b64 exec, -1")
    A("L_noclear:")
    for n in range(WH): h_issue(n)
    masks()
    A(f"s_cmp_lg_u32 s{sHW}, 0"); A("s_cbranch_scc1 L_hstart")
    if prio: A(f"s_setprio {prio}")
    lds_wait(C_QD, 4)
    for w in range(4): A(f"ds_read_b128 {r4(vT+4*w)}, v{vL16} offset:{QD + w*1024}")
    A("s_waitcnt lgkmcnt(0)")
    for r in range(4):
        A(f"v_add_f32 v{vD+r}, v{vT+r}, v{vT+4+r}"); A(f"v_add_f32 v{vD2+r}, v{vT+8+r}, v{vT+12+r}")
    for r in range(4): A(f"v_add_f32 v{vD+r}, v{vD+r}, v{vD2+r}")
    A("s_waitcnt vmcnt(0)")
    A(f"v_add3_u32 v{vD2}, v{vD}, v{vD+1}, v{vD+2}"); A(f"v_add_u32 v{vD2}, v{vD2}, v{vD+3}")
    A(f"v_sub_u32 v{vD2}, s{sTAG}, v{vD2}")
    A(f"s_lshl_b32 s{sT0}, s{sBOXH}, 11")
    A(f"v_lshlrev_b32 v{vD2+1}, 2, v{vLANE}")
    A(f"buffer_store_dwordx4 {r4(vD)}, v{vL16}, {WSR}, s{sT0} offen sc1")
    A(f"buffer_store_dword v{vD2}, v{vD2+1}, {WSR}, s{sT0} offen offset:1024 sc1")
    stamp(16)
    A(f"v_lshrrev_b32 v{vU+25}, 5, v{vLANE}"); A(f"v_lshlrev_b32 v{vU+25}, 11, v{vU+25}")
    A(f"v_and_b32 v{vU+26}, 31, v{vLANE}")
    A(f"v_lshl_add_u32 v{vU+36}, v{vU+26}, 2, v{vU+25}")
    A(f"v_lshl_add_u32 v{vU+25}, v{vU+26}, 4, v{vU+25}")
    sQB = sT3; sQC = sT2
    A(f"s_lshl_b32 s{sQB}, s{sH}, 14"); A(f"s_lshl_b32 s{sT1}, s{sB}, 7"); A(f"s_add_u32 s{sQC}, s{sQB}, s{sT1}"); A(f"s_add_u32 s{sQC}, s{sQC}, 1024")
    A(f"s_lshl_b32 s{sT1}, s{sB}, 9"); A(f"s_add_u32 s{sQB}, s{sQB}, s{sT1}")
    QG = vT
    A(f"s_mov_b32 s{sSPIN}, {SPIN_LIMIT}")
    if qpoll == "light":
        A(f"v_and_b32 v{vU+26}, 7, v{vLANE}"); A(f"v_lshlrev_b32 v{vU+26}, 11, v{vU+26}")
        A(f"s_lshl_b32 s{sT1}, s{sH}, 14"); A(f"s_add_u32 s{sT1}, s{sT1}, 1008")
        A("L_qlight:")
        A(f"buffer_load_dwordx4 {r4(QG)}, v{vU+26}, {WSR}, s{sT1} offen sc1")
        A(f"buffer_load_dword v{QG+4}, v{vU+26}, {WSR}, s{sT1} offen offset:268 sc1")
        A("s_waitcnt vmcnt(0)")
        A(f"v_add3_u32 v{QG+5}, v{QG}, v{QG+1}, v{QG+2}"); A(f"v_add3_u32 v{QG+5}, v{QG+5}, v{QG+3}, v{QG+4}")
        A(f"v_cmp_ne_u32 vcc, s{sTAG}, v{QG+5}"); A("s_cmp_eq_u64 vcc, 0")
        A("s_cbranch_scc1 L_qfull")
        A(f"s_sub_u32 s{sSPIN}, s{sSPIN}, 1"); A(f"s_cmp_lg_u32 s{sSPIN}, 0"); A("s_cbranch_scc1 L_qlight")
        A("L_qfull:")
    A(f"s_lshl_b32 s{sT5}, s{sTAG}, 2")
    def xq_issue():
        A(f"s_mov_b32 s{sT0}, s{sQB}"); A(f"s_mov_b32 s{sT1}, s{sQC}")
        for k in range(4):
            A(f"buffer_load_dwordx4 {r4(QG+4*k)}, v{vU+25}, {WSR}, s{sT0} offen sc1")
            A(f"buffer_load_dword v{QG+16+k}, v{vU+36}, {WSR}, s{sT1} offen sc1")
            if k < 3: A(f"s_add_u32 s{sT0}, s{sT0}, 4096"); A(f"s_add_u32 s{sT1}, s{sT1}, 4096")
    poll_sum("L_qpoll", xq_issue, list(range(QG, QG + 20)), vU + 32, sT5)
    stamp(17)
    vQS = vU + 32
    for r in range(4):
        A(f"v_add_f32 v{vQS+4+r}, v{QG+r}, v{QG+4+r}"); A(f"v_add_f32 v{vQS+8+r}, v{QG+8+r}, v{QG+12+r}")
    for r in range(4): A(f"v_add_f32 v{vQS+r}, v{vQS+4+r}, v{vQS+8+r}")
    for r in range(4): A(f"v_mov_b32 v{vQS+4+r}, v{vQS+r}")
    for r in range(4): A(f"v_permlane32_swap_b32 v{vQS+r}, v{vQS+4+r}")
    for r in range(4): A(f"v_add_f32 v{vQS+r}, v{vQS+r}, v{vQS+4+r}")
    A(f"v_cvt_pk_bf16_f32 v{vQS+4}, v{vQS}, v{vQS+1}"); A(f"v_cvt_pk_bf16_f32 v{vQS+5}, v{vQS+2}, v{vQS+3}")
    A(f"v_and_b32 v{vU+25}, 1, v{vG}"); A(f"v_lshlrev_b32 v{vU+25}, 3, v{vU+25}"); A(f"v_lshl_add_u32 v{vU+25}, v{vC}, 4, v{vU+25}")
    A("s_mov_b32 exec_hi, 0")
    A(f"ds_write_b64 v{vU+25}, v[{vQS+4}:{vQS+5}] offset:{QPK}")
    A("s_mov_b64 exec, -1")
    lds_signal(C_QRDY)
    if prio: A("s_setprio 0")
    A("L_hstart:")
    vm = vmh
    vm.q = [("h", n) for n in range(WH)]
    for n in range(32 - WH):
        vm.wait(("h", n))
        h_issue(n + WH)
        if n in (0, 7, 15, 23): stamp({0: 13, 7: 14, 15: 15, 23: 4}[n])
    zero4(vD)
    A(f"s_lshl_b32 s{sT0}, s{sSUB}, 7"); A(f"s_lshr_b32 s{sT1}, s{sHW}, 1"); A(f"s_lshl_b32 s{sT1}, s{sT1}, 6"); A(f"s_add_u32 s{sT0}, s{sT0}, s{sT1}")
    A(f"v_add_u32 v{vU+25}, s{sT0}, v{vXA}")
    lds_wait(C_XDUP, 4)
    for q4 in range(4): A(f"ds_read_b128 {r4(vX+4*q4)}, v{vU+25} offset:{XDUP + q4*16}")
    vm.wait(("h", 15))
    A("s_waitcnt lgkmcnt(0)")
    for n in range(16): mfma_row(vA0 if n % 2 == 0 else vA1, vX + n, slot(n), vD)
    vRA = vU + 24
    A(f"s_and_b32 s{sT0}, s{sHW}, 1"); A(f"s_lshl_b32 s{sT0}, s{sT0}, 10")
    A(f"v_add_u32 v{vRA}, s{sT0}, v{vL16}")
    A(f"s_cmp_lt_u32 s{sHW}, 2"); A("s_cbranch_scc1 L_f1_keep")
    A(f"ds_write_b128 v{vRA}, {r4(vD)} offset:{RED}")
    lds_signal(C_H1)
    A("L_f1_keep:")
    stamp(2)
    A(f"s_cmp_lt_u32 s{sHW}, 2"); A("s_cbranch_scc0 L_f1_done")
    lds_wait(C_H1, 2)
    A(f"ds_read_b128 {r4(vD2)}, v{vRA} offset:{RED}")
    A("s_waitcnt lgkmcnt(0)")
    for r in range(4): A(f"v_add_f32 v{vD+r}, v{vD+r}, v{vD2+r}")
    A(f"v_cmp_gt_u32 vcc, 14, v{vC}")
    for r in range(4): A(f"v_cndmask_b32 v{vD+r}, 0, v{vD+r}, vcc")
    int_sum(range(vD, vD + 4), vD2)
    for k in (8, 4, 2, 1): A(f"v_add_u32_dpp v{vD2}, v{vD2}, v{vD2} row_ror:{k} row_mask:0xf bank_mask:0xf")
    A(f"v_sub_u32 v{vD2}, s{sTAG}, v{vD2}")
    A(f"v_cmp_eq_u32 vcc, 15, v{vC}")
    A(f"v_cndmask_b32 v{vD}, v{vD}, v{vD2}, vcc")
    A(f"s_lshl_b32 s{sT0}, s{sBOXH}, 11"); A(f"s_add_u32 s{sT0}, s{sT0}, {WS_X1}")
    A(f"buffer_store_dwordx4 {r4(vD)}, v{vRA}, {WSR}, s{sT0} offen sc1")
    A(f"s_cmp_eq_u32 s{sHW}, 0"); A("s_cbranch_scc0 L_f1_done")
    lds_wait(C_PROG, 4 * PX1, nap=32)
    A(f"s_lshl_b32 s{sT5}, s{sTAG}, 4")
    def x1_issue():
        A(f"s_lshl_b32 s{sT0}, s{sH}, 14"); A(f"s_add_u32 s{sT0}, s{sT0}, {WS_X1}")
        for s_ in range(8):
            A(f"buffer_load_dwordx4 {r4(slot(2*s_))}, v{vL16}, {WSR}, s{sT0} offen sc1")
            A(f"buffer_load_dwordx4 {r4(slot(2*s_+1))}, v{vL16}, {WSR}, s{sT0} offen offset:1024 sc1")
            if s_ < 7: A(f"s_add_u32 s{sT0}, s{sT0}, 2048")
    poll_sum("L_x1poll", x1_issue, range(slot(0), slot(0) + 64), vT, sT5, nap=32, rowreduce=True, masked=False)
    stamp(3)
    for mt in range(2):
        for r in range(4):
            A(f"v_add_f32 v{vT+4*mt+r}, v{slot(mt)+r}, v{slot(2+mt)+r}")
        for s_ in range(2, 8):
            for r in range(4): A(f"v_add_f32 v{vT+4*mt+r}, v{vT+4*mt+r}, v{slot(2*s_+mt)+r}")
    A(f"v_cmp_gt_u32 vcc, 14, v{vC}")
    for r in range(8): A(f"v_cndmask_b32 v{vT+r}, 0, v{vT+r}, vcc")
    A(f"v_lshrrev_b32 v{vU+25}, 1, v{vG}"); A(f"v_mul_u32_u24 v{vU+25}, {4*HSTR}, v{vU+25}")
    A(f"v_and_b32 v{vU+26}, 1, v{vG}"); A(f"v_lshl_add_u32 v{vU+26}, v{vC}, 1, v{vU+26}")
    A(f"v_lshl_add_u32 v{vU+25}, v{vU+26}, 2, v{vU+25}")
    for r in range(4):
        bf16r(vT + r, vT + r); bf16r(vT + 4 + r, vT + 4 + r)
        silu(vT + 8, vT + r, vT + 9, vT + 10)
        A(f"v_mul_f32 v{vT+8}, v{vT+8}, v{vT+4+r}")
        A(f"v_cvt_pk_bf16_f32 v{vT+8}, v{vT+8}, v{vT+8}")
        A(f"ds_write_b32 v{vU+25}, v{vT+8} offset:{HDUP + r*HSTR}")
    lds_signal(C_H2)
    A("L_f1_done:")
    lds_wait(C_H2, 1, nap=32)
    A(f"v_mul_u32_u24 v{vU+25}, {HSTR}, v{vBG}")
    A(f"s_lshl_b32 s{sT0}, s{sHW}, 5")
    A(f"v_add_u32 v{vU+25}, s{sT0}, v{vU+25}")
    A(f"ds_read_b128 {r4(vX)}, v{vU+25} offset:{HDUP}")
    A(f"ds_read_b128 {r4(vX+4)}, v{vU+25} offset:{HDUP+16}")
    zero4(vD)
    A("s_waitcnt vmcnt(0) lgkmcnt(0)")
    for n in range(8): mfma_row(vA0 if n % 2 == 0 else vA1, vX + n, slot(16 + n), vD)
    vRA = vU + 24
    A(f"s_lshl_b32 s{sT0}, s{sHW}, 10")
    A(f"v_add_u32 v{vRA}, s{sT0}, v{vL16}")
    vPL = vU + 27
    A(f"v_lshrrev_b32 v{vPL}, 1, v{vG}"); A(f"v_lshlrev_b32 v{vPL}, 9, v{vPL}")
    A(f"v_and_b32 v{vU+26}, 1, v{vG}"); A(f"v_lshl_add_u32 v{vPL}, v{vU+26}, 4, v{vPL}")
    A(f"v_lshl_add_u32 v{vPL}, v{vC}, 5, v{vPL}")
    A(f"s_lshr_b32 s{sK4}, s{sH}, 3")
    vGA = vU + 28; vOA = vU + 30
    A(f"v_lshlrev_b32 v{vGA}, 10, v{vG}")
    A(f"v_bfe_u32 v{vU+26}, v{vLANE}, 3, 1"); A(f"v_lshl_add_u32 v{vGA}, v{vU+26}, 9, v{vGA}")
    A(f"v_and_b32 v{vU+29}, 7, v{vLANE}"); A(f"v_lshl_add_u32 v{vGA}, v{vU+29}, 4, v{vGA}")
    A(f"v_lshlrev_b32 v{vOA}, 11, v{vU+26}")
    A(f"v_lshl_add_u32 v{vOA}, v{vU+29}, 3, v{vOA}")
    A(f"s_lshl_b32 s{sT0}, s{sSUB}, 8"); A(f"s_lshl_b32 s{sT1}, s{sK4}, 6"); A(f"s_add_u32 s{sT0}, s{sT0}, s{sT1}")
    A(f"v_add_u32 v{vOA}, s{sT0}, v{vOA}")
    A(f"s_and_b32 s{sT0}, s{sH}, 7"); A(f"s_cmp_eq_u32 s{sT0}, s{sSUB}"); A(f"s_cselect_b32 s{sISC}, 1, 0")
    A(f"s_cmp_eq_u32 s{sHW}, 0"); A("s_cbranch_scc1 L_f2_h0")
    A(f"ds_write_b128 v{vRA}, {r4(vD)} offset:{RED}")
    lds_signal(C_H3)
    A("s_branch L_tail")
    A("L_f2_h0:")
    lds_wait(C_H3, 3)
    for w in range(1, 4): A(f"ds_read_b128 {r4(vT+4*w)}, v{vL16} offset:{RED + w*1024}")
    A("s_waitcnt lgkmcnt(0)")
    for r in range(4):
        for w in range(1, 4): A(f"v_add_f32 v{vD+r}, v{vD+r}, v{vT+4*w+r}")
    int_sum(range(vD, vD + 4), vT)
    A(f"v_sub_u32 v{vT}, s{sTAG}, v{vT}")
    A(f"v_lshrrev_b32 v{vT+1}, 2, v{vPL}")
    A(f"s_lshl_b32 s{sT0}, s{sBOXC}, 1"); A(f"s_add_u32 s{sT0}, s{sT0}, {WS_XY}")
    if "xypub" not in skip:
        A(f"buffer_store_dwordx4 {r4(vD)}, v{vPL}, {WSR}, s{sT0} offen sc1")
        A(f"buffer_store_dword v{vT}, v{vT+1}, {WSR}, s{sT0} offen offset:1024 sc1")
    sGB = sT3
    def g_issue(base_const):
        def f(setbase):
            A(f"s_lshl_b32 s{sGB}, s{sSUB}, 15"); A(f"s_lshl_b32 s{sT1}, s{sK4}, 7"); A(f"s_add_u32 s{sGB}, s{sGB}, s{sT1}"); A(f"s_add_u32 s{sGB}, s{sGB}, {base_const}")
            for tt in range(8):
                A(f"buffer_load_dwordx4 {r4(setbase+4*tt)}, v{vGA}, {WSR}, s{sGB} offen sc1")
                if tt < 7: A(f"s_add_u32 s{sGB}, s{sGB}, 4096")
        return f
    def g_process(sb):
        for r in range(4):
            A(f"v_add_f32 v{vT+r}, v{sb+r}, v{sb+4+r}"); A(f"v_add_f32 v{vT+4+r}, v{sb+8+r}, v{sb+12+r}")
            A(f"v_add_f32 v{vT+8+r}, v{sb+16+r}, v{sb+20+r}"); A(f"v_add_f32 v{vT+12+r}, v{sb+24+r}, v{sb+28+r}")
        for r in range(4):
            A(f"v_add_f32 v{vT+r}, v{vT+r}, v{vT+4+r}"); A(f"v_add_f32 v{vT+8+r}, v{vT+8+r}, v{vT+12+r}")
        for r in range(4): A(f"v_add_f32 v{vT+r}, v{vT+r}, v{vT+8+r}")
    def g_finish():
        for r in range(4): A(f"v_mov_b32 v{vT+4+r}, v{vT+r}")
        for r in range(4): A(f"v_permlane16_swap_b32 v{vT+r}, v{vT+4+r}")
        for r in range(4): A(f"v_add_f32 v{vT+r}, v{vT+r}, v{vT+4+r}")
        for r in range(4): A(f"v_mov_b32 v{vT+4+r}, v{vT+r}")
        for r in range(4): A(f"v_permlane32_swap_b32 v{vT+r}, v{vT+4+r}")
        for r in range(4): A(f"v_add_f32 v{vT+r}, v{vT+r}, v{vT+4+r}")
        for r in range(4): bf16r(vT + r, vT + r)
    A("L_xm:")
    stamp(10)
    lds_wait(C_MLW, 4, nap=napml)
    if prio: A(f"s_setprio {prio}")
    vML = vT
    A(f"v_mov_b32 v{vTMP}, 0")
    A(f"ds_read_b128 {r4(vML)}, v{vTMP} offset:{MLW}")
    A(f"ds_read_b128 {r4(vML+4)}, v{vTMP} offset:{MLW+16}")
    A("s_waitcnt lgkmcnt(0)")
    vMM = vT + 8; vLL = vT + 9; vFW = vT + 10
    A(f"v_max_f32 v{vMM}, v{vML}, v{vML+2}")
    A(f"v_max3_f32 v{vMM}, v{vMM}, v{vML+4}, v{vML+6}")
    for w in range(4): exp_diff(vFW + w, vML + 2 * w, vMM)
    A(f"v_mul_f32 v{vLL}, v{vFW}, v{vML+1}")
    for w in range(1, 4): A(f"v_fmac_f32 v{vLL}, v{vFW+w}, v{vML+2*w+1}")
    A(f"s_lshl_b32 s{sT0}, s{sBOXH}, 7"); A(f"s_add_u32 s{sT0}, s{sT0}, {WS_XM}")
    A(f"v_mov_b32 v{vTMP}, 0")
    A("s_mov_b64 exec, 1")
    A(f"buffer_store_dwordx2 v[{vMM}:{vMM+1}], v{vTMP}, {WSR}, s{sT0} offen sc1")
    A("s_mov_b64 exec, -1")
    stamp(11)
    A(f"v_and_b32 v{vU+25}, 3, v{vLANE}"); A(f"v_lshlrev_b32 v{vU+25}, 7, v{vU+25}")
    A(f"s_lshl_b32 s{sT1}, s{sH}, 3"); A(f"s_lshl_b32 s{sT0}, s{sB}, 2"); A(f"s_add_u32 s{sT1}, s{sT1}, s{sT0}"); A(f"s_lshl_b32 s{sT1}, s{sT1}, 7"); A(f"s_add_u32 s{sT1}, s{sT1}, {WS_XM}")
    def xm_issue(sb): A(f"buffer_load_dwordx2 v[{sb}:{sb+1}], v{vU+25}, {WSR}, s{sT1} offen sc1")
    def xm_proc(sb):
        A(f"v_mov_b32 v{vT}, v{sb}"); A(f"v_mov_b32 v{vT+1}, v{sb+1}")
    poll2("L_xmp", xm_issue, 1, slot(0), slot(1), 2, xm_proc, vT + 4)
    A(f"v_max_f32_dpp v{vT+2}, v{vT}, v{vT} quad_perm:[1,0,3,2] row_mask:0xf bank_mask:0xf")
    A(f"v_max_f32_dpp v{vT+2}, v{vT+2}, v{vT+2} quad_perm:[2,3,0,1] row_mask:0xf bank_mask:0xf")
    exp_diff(vT + 3, vT, vT + 2)
    A(f"v_mul_f32 v{vT+3}, v{vT+3}, v{vT+1}")
    A(f"v_add_f32_dpp v{vT+3}, v{vT+3}, v{vT+3} quad_perm:[1,0,3,2] row_mask:0xf bank_mask:0xf")
    A(f"v_add_f32_dpp v{vT+3}, v{vT+3}, v{vT+3} quad_perm:[2,3,0,1] row_mask:0xf bank_mask:0xf")
    A(f"v_rcp_f32 v{vT+5}, v{vT+3}")
    A(f"v_fma_f32 v{vT+6}, -v{vT+3}, v{vT+5}, 1.0")
    A(f"v_fma_f32 v{vT+5}, v{vT+6}, v{vT+5}, v{vT+5}")
    A(f"v_mov_b32 v{vT+4}, v{vT+2}")
    A(f"v_mov_b32 v{vTMP}, 0")
    A("s_mov_b64 exec, 1")
    A(f"ds_write_b64 v{vTMP}, v[{vT+4}:{vT+5}] offset:{MLF}")
    A("s_mov_b64 exec, -1")
    lds_signal(C_MLRDY)
    if prio: A("s_setprio 0")
    stamp(12)
    A("s_waitcnt vmcnt(0)")
    A(f"s_cmp_eq_u32 s{sISC}, 0"); A("s_cbranch_scc1 L_tail")
    A(f"v_lshlrev_b32 v{vU+26}, 10, v{vG}"); A(f"v_add_u32 v{vU+26}, v{vU+26}, v{vGA}")
    A(f"v_lshlrev_b32 v{vU+25}, 11, v{vG}")
    A(f"v_bfe_u32 v{vT}, v{vLANE}, 3, 1"); A(f"v_lshl_add_u32 v{vU+25}, v{vT}, 7, v{vU+25}")
    A(f"v_lshl_add_u32 v{vU+25}, v{vU+29}, 2, v{vU+25}")
    A(f"s_lshl_b32 s{sT5}, s{sTAG}, 3")
    def gy_issue():
        A(f"s_lshl_b32 s{sGB}, s{sSUB}, 16"); A(f"s_add_u32 s{sGB}, s{sGB}, {WS_XY}")
        A(f"s_lshl_b32 s{sT1}, s{sK4}, 5"); A(f"s_add_u32 s{sT2}, s{sGB}, s{sT1}"); A(f"s_add_u32 s{sT2}, s{sT2}, 1024")
        A(f"s_lshl_b32 s{sT1}, s{sK4}, 7"); A(f"s_add_u32 s{sGB}, s{sGB}, s{sT1}")
        for tt in range(8):
            A(f"buffer_load_dwordx4 {r4(slot(tt))}, v{vU+26}, {WSR}, s{sGB} offen sc1")
            A(f"buffer_load_dword v{slot(8)+tt}, v{vU+25}, {WSR}, s{sT2} offen sc1")
            if tt < 7: A(f"s_add_u32 s{sGB}, s{sGB}, 8192"); A(f"s_add_u32 s{sT2}, s{sT2}, 8192")
    if "xyget" not in skip: poll_sum("L_gy", gy_issue, range(slot(0), slot(0) + 40), vT, sT5, nap=32)
    g_process(slot(0)); g_finish()
    vGG = vU + 32; vXO = vU + 36
    for r in range(4): silu(vGG + r, vT + r, vT + 9, vT + 10)
    A(f"buffer_load_dwordx2 v[{vU+40}:{vU+41}], v{vOA}, s[{SRD_A}:{SRD_A+3}], 0 offen")
    A("s_waitcnt vmcnt(0)")
    A(f"v_lshlrev_b32 v{vXO}, 16, v{vU+40}"); A(f"v_and_b32 v{vXO+1}, 0xffff0000, v{vU+40}")
    A(f"v_lshlrev_b32 v{vXO+2}, 16, v{vU+41}"); A(f"v_and_b32 v{vXO+3}, 0xffff0000, v{vU+41}")

    A("L_tail:")
    vX2A = vU + 44
    A(f"v_bfe_u32 v{vU+26}, v{vLANE}, 2, 2")
    A(f"v_lshrrev_b32 v{vX2A}, 5, v{vLANE}")
    A(f"v_lshl_add_u32 v{vX2A}, v{vX2A}, 2, v{vU+26}")
    A(f"v_lshlrev_b32 v{vX2A}, 11, v{vX2A}")
    A(f"v_bfe_u32 v{vU+26}, v{vLANE}, 4, 1"); A(f"v_and_b32 v{vU+46}, 3, v{vLANE}")
    A(f"v_lshl_add_u32 v{vU+46}, v{vU+26}, 2, v{vU+46}")
    A(f"v_lshl_add_u32 v{vX2A}, v{vU+46}, 4, v{vX2A}")
    A(f"s_lshl_b32 s{sT0}, s{sHW}, 7")
    A(f"v_add_u32 v{vX2A}, s{sT0}, v{vX2A}")
    vOW = vU + 47; vOR = vU + 48
    A(f"v_lshrrev_b32 v{vOW}, 5, v{vLANE}"); A(f"v_mul_u32_u24 v{vOW}, {4*OSTR}, v{vOW}")
    A(f"v_lshl_add_u32 v{vOW}, v{vU+46}, 2, v{vOW}")
    A(f"s_mul_i32 s{sT0}, s{sHW}, 384")
    A(f"v_add_u32 v{vOW}, s{sT0}, v{vOW}")
    A(f"v_mul_u32_u24 v{vOR}, {OSTR}, v{vBG}"); A(f"v_add_u32 v{vOR}, s{sT0}, v{vOR}")
    sX2 = sT3
    A(f"s_lshl_b32 s{sX2}, s{sH}, 14"); A(f"s_add_u32 s{sX2}, s{sX2}, {WS_X2}")
    zero4(vD)
    A("s_waitcnt vmcnt(0) lgkmcnt(0)")
    A("s_barrier")
    stamp(5)
    def x2_issue(sb):
        for w in range(4):
            A(f"buffer_load_dwordx4 {r4(sb+4*w)}, v{vX2A}, {WSR}, s{sX2} offen offset:{w*512} sc1")
    def x2_proc(sb):
        for r in range(4):
            A(f"v_add_f32 v{vT+r}, v{sb+r}, v{sb+4+r}"); A(f"v_add_f32 v{vT+4+r}, v{sb+8+r}, v{sb+12+r}")
        for r in range(4): A(f"v_add_f32 v{vT+r}, v{vT+r}, v{vT+4+r}")
    poll_masked("L_x2", lambda: x2_issue(slot(0)), range(slot(0), slot(0) + 16), vT + 8, nap=napx2)
    x2_proc(slot(0))
    stamp(6)
    for k in (4, 8):
        for r in range(4):
            A(f"v_add_f32_dpp v{vT+r}, v{vT+r}, v{vT+r} row_ror:{k} row_mask:0xf bank_mask:0xf")
    for r in range(4):
        A(f"v_cvt_pk_bf16_f32 v{vT+r}, v{vT+r}, v{vT+r}")
    for r in range(4):
        A(f"ds_write_b32 v{vOW}, v{vT+r} offset:{ODUP + r*OSTR}")
    A(f"ds_read_b128 {r4(vX)}, v{vOR} offset:{ODUP}")
    A(f"ds_read_b128 {r4(vX+4)}, v{vOR} offset:{ODUP+16}")
    A("s_waitcnt lgkmcnt(0)")
    for n in range(8): mfma_row(vA0 if n % 2 == 0 else vA1, vX + n, slot(24 + n), vD)
    A(f"s_cmp_eq_u32 s{sHW}, 0"); A("s_cbranch_scc1 L_x3_h0")
    A(f"ds_write_b128 v{vRA}, {r4(vD)} offset:{RED}")
    A("s_waitcnt lgkmcnt(0)")
    A("s_barrier")
    A("s_endpgm")
    A("L_x3_h0:")
    A("s_nop 1")
    A("s_barrier")
    for w in range(1, 4): A(f"ds_read_b128 {r4(vT+4*w)}, v{vL16} offset:{RED + w*1024}")
    A("s_waitcnt lgkmcnt(0)")
    for r in range(4):
        A(f"v_add_f32 v{vD+r}, v{vD+r}, v{vT+4+r}"); A(f"v_add_f32 v{vT+8+r}, v{vT+8+r}, v{vT+12+r}")
    for r in range(4): A(f"v_add_f32 v{vD+r}, v{vD+r}, v{vT+8+r}")
    A(f"s_add_u32 s{sT0}, s{sBOXC}, {WS_X3}")
    A(f"buffer_store_dwordx4 {r4(vD)}, v{vPL}, {WSR}, s{sT0} offen sc1")
    stamp(7)
    A(f"s_cmp_eq_u32 s{sISC}, 0"); A("s_cbranch_scc1 L_fin")
    poll_masked("L_g3", lambda: g_issue(WS_X3)(slot(8)), range(slot(8), slot(8) + 32), vT + 4, nap=napx3)
    g_process(slot(8))
    g_finish()
    for r in range(4):
        A(f"v_mul_f32 v{vT+r}, v{vT+r}, v{vGG+r}")
    for r in range(4): bf16r(vT + r, vT + r)
    for r in range(4): A(f"v_add_f32 v{vT+r}, v{vT+r}, v{vXO+r}")
    A(f"v_cvt_pk_bf16_f32 v{vT+4}, v{vT}, v{vT+1}")
    A(f"v_cvt_pk_bf16_f32 v{vT+5}, v{vT+2}, v{vT+3}")
    srd(SRD_B, sOUT, 4096)
    A("s_mov_b64 exec, 0xffff")
    A(f"buffer_store_dwordx2 v[{vT+4}:{vT+5}], v{vOA}, s[{SRD_B}:{SRD_B+3}], 0 offen")
    A(f"s_cmp_lg_u32 s2, 0"); A("s_cbranch_scc1 L_noepoch")
    A(f"v_mov_b32 v{vT}, s{sTAG}"); A(f"v_mov_b32 v{vT+1}, {WS_Z}")
    A("s_mov_b64 exec, 1")
    A(f"buffer_store_dword v{vT}, v{vT+1}, {WSR}, 0 offen sc1")
    A("L_noepoch:")
    A("s_mov_b64 exec, -1")
    A("L_fin:")
    if stamps:
        stamp(8)
        stamp_store(256)
    A("L_end:")
    A("s_endpgm")

    probs = A.check_branches()
    for p in probs: print("HAZARD across branch:", p, file=sys.stderr)
    out = HEADER
    out += f"; @launch grid=(256,1,1) block=(512,1,1) lds={LDS_BYTES}\n"
    out += '.amdgcn_target "amdgcn-amd-amdhsa--gfx950"\n.text\n'
    out += f".globl {KNAME}\n.p2align 8\n.type {KNAME},@function\n"
    out += A.text()
    out += f""".section .rodata,"a"
.p2align 6
.amdhsa_kernel {KNAME}
  .amdhsa_next_free_vgpr 256
  .amdhsa_next_free_sgpr 96
  .amdhsa_accum_offset 256
  .amdhsa_group_segment_fixed_size 0
  .amdhsa_kernarg_size 96
  .amdhsa_user_sgpr_count 2
  .amdhsa_user_sgpr_kernarg_segment_ptr 1
  .amdhsa_system_sgpr_workgroup_id_x 1
  .amdhsa_float_denorm_mode_32 3
.end_amdhsa_kernel
"""
    return out

if __name__ == "__main__":
    kw = eval("dict(" + (sys.argv[2] if len(sys.argv) > 2 else "") + ")")
    open(sys.argv[1], "w").write(gen(**kw))
```

```python
import sys
sys.path.insert(0, "gen")
from asmlib import Asm, VM

KNAME = "recurrent_scan__mha_block_cached__swiglu_ffn__decode_kernel"

HEADER = """; Kernarg layout for this problem (96 bytes, ptrs only, base s[0:1]):
"""

XDUP = 0; XSTR = 1040
HDUP = 8320; HSTR = 144
ODUP = 9472; OSTR = 48
CNT = 11008
C_QRDY, C_H1, C_H1B, C_H2, C_H3, C_MLW, C_MLRDY, C_STAT, C_XDUP, C_QD, C_PROG = 0, 4, 8, 12, 16, 20, 24, 28, 32, 36, 40
QD = 11264
QPK = 19456
MLW = 19712
MLF = 19744
STAT = 19776
RED = 19968
SCO = 24064
LDS_BYTES = 40448

WS_XQ = 0x000000
WS_X1 = 0x080000
WS_XY = 0x100000
WS_X2 = 0x200000
WS_X3 = 0x300000
WS_XM = 0x400000
WS_XH = 0x480000
WS_Z = 0x500000
WS_DBG = 0x800000

LOG2E = 0x3FB8AA3B
SCALE = 0x3DB504F3
SPIN_LIMIT = 400000

def gen(W=5, WH=4, WE=3, R=16, KPRE=16, qpoll="light", hmode="normal", skip="", napx2=0, napx3=0, PX1=3, dbgtime=False, prio=2, napml=1, rotk=7, wqflag="nt", kvflag="nt", wflag="nt", dbg=False, stamps=False, sleep=1):
    A = Asm()
    sX, sK, sV, sWQ, sWO, sWG, sWU, sWD, sOUT, sDBG, sWS = 8, 10, 12, 14, 16, 20, 22, 24, 26, 28, 30
    sW, sH, sSUB, sB, sSPLIT, sHW = 3, 32, 33, 34, 35, 36
    sT0, sT1, sT2, sT3 = 37, 38, 39, 40
    sRUN, sOFF, sCNT, sROT = 41, 42, 43, 44
    sBOXH = 45
    sBIT0, sBIT1 = 46, 48
    sSPIN = 50; sSPIN2 = 51
    SRD_A, SRD_B, SRD_C, SRD_D, SRD_WS, SRD_Q = 56, 60, 64, 68, 72, 84
    sSTAMP0 = 76
    sT4, sT5 = 78, 79
    sISC, sK4, sBOXC, sTAG = 80, 81, 82, 83
    vLANE, vL16, vTMP = 1, 2, 3
    vM = 4; vA0, vA1 = 8, 12; vD = 16; vD2 = 20; vQ = 24; vT = 28; vX = 44; vU = 60
    vG, vC, vXA, vBG = vU, vU + 1, vU + 5, vU + 6
    vWQD = 92
    vSIG = 127; vST = 126
    RING = 128
    def slot(i): return RING + 4 * i
    def r4(b): return f"v[{b}:{b+3}]"
    WSR = f"s[{SRD_WS}:{SRD_WS+3}]"

    def srd(base, ptr, size, add=None):
        if add is None:
            A(f"s_mov_b32 s{base}, s{ptr}"); A(f"s_mov_b32 s{base+1}, s{ptr+1}")
        else:
            A(f"s_add_u32 s{base}, s{ptr}, s{add}"); A(f"s_addc_u32 s{base+1}, s{ptr+1}, 0")
        A(f"s_mov_b32 s{base+2}, {size}"); A(f"s_mov_b32 s{base+3}, 0x20000")
    def bf16r(dst, src):
        A(f"v_cvt_pk_bf16_f32 v{dst}, v{src}, v{src}")
        A(f"v_and_b32 v{dst}, 0xffff0000, v{dst}")
    def allreduce(op, r, tmp):
        for k in (8, 4, 2, 1):
            A(f"{op}_dpp v{r}, v{r}, v{r} row_ror:{k} row_mask:0xf bank_mask:0xf")
        A(f"v_mov_b32 v{tmp}, v{r}"); A(f"v_permlane16_swap_b32 v{r}, v{tmp}"); A(f"{op} v{r}, v{r}, v{tmp}")
        A(f"v_mov_b32 v{tmp}, v{r}"); A(f"v_permlane32_swap_b32 v{r}, v{tmp}"); A(f"{op} v{r}, v{r}, v{tmp}")
    def lds_signal(off):
        A("s_waitcnt lgkmcnt(0)")
        A(f"v_mov_b32 v{vTMP}, {CNT+off}"); A(f"v_mov_b32 v{vSIG}, 1")
        A("s_mov_b64 exec, 1")
        A(f"ds_add_u32 v{vTMP}, v{vSIG}")
        A("s_mov_b64 exec, -1")
    def lds_wait(off, n, nap=0):
        lab = A.label("Lw")
        A(f"v_mov_b32 v{vTMP}, {CNT+off}")
        A(f"s_mov_b32 s{sSPIN2}, {SPIN_LIMIT*4}")
        A(f"{lab}:")
        A(f"ds_read_b32 v{vSIG}, v{vTMP}")
        A("s_waitcnt lgkmcnt(0)")
        A(f"v_readfirstlane_b32 s{sT0}, v{vSIG}")
        A(f"s_cmp_ge_u32 s{sT0}, {n}")
        A(f"s_cbranch_scc1 {lab}_ok")
        if nap: A(f"s_sleep {nap}")
        A(f"s_sub_u32 s{sSPIN2}, s{sSPIN2}, 1")
        A(f"s_cmp_lg_u32 s{sSPIN2}, 0")
        A(f"s_cbranch_scc1 {lab}")
        A(f"{lab}_ok:")
    def mfma_row(areg, xreg, breg, dreg, dpp=None):
        for k in range(4):
            if dpp is None: A(f"v_and_b32 v{areg+k}, v{xreg}, v{vM+k}")
            else: A(f"v_and_b32_dpp v{areg+k}, v{xreg}, v{vM+k} row_newbcast:{dpp} row_mask:0xf bank_mask:0xf")
        A(f"v_mfma_f32_16x16x32_bf16 {r4(dreg)}, {r4(areg)}, {r4(breg)}, {r4(dreg)}")
    def zero4(r):
        for k in range(4): A(f"v_mov_b32 v{r+k}, 0")
    def stamp(idx):
        if stamps:
            A(f"s_memrealtime s[{sT4}:{sT5}]"); A("s_waitcnt lgkmcnt(0)")
            A(f"v_writelane_b32 v{vST}, s{sT4}, {idx}")
    def stamp_loop(base, cntreg, top):
        if stamps:
            A(f"s_memrealtime s[{sT4}:{sT5}]"); A("s_waitcnt lgkmcnt(0)")
            A(f"s_sub_u32 s{sT5}, {base+top}, s{cntreg}"); A(f"s_mov_b32 m0, s{sT5}"); A("s_nop 0")
            A(f"v_writelane_b32 v{vST}, s{sT4}, m0")
    def stamp_store(off):
        if stamps:
            A(f"s_lshl_b32 s{sT0}, s2, 9"); A(f"s_add_u32 s{sT0}, s{sT0}, {0x700000+off}")
            A(f"v_lshlrev_b32 v{vTMP}, 2, v{vLANE}")
            A(f"v_writelane_b32 v{vST}, s{sSTAMP0}, 0")
            A(f"buffer_store_dword v{vST}, v{vTMP}, {WSR}, s{sT0} offen")
    def silu(dst, x, t1, t2):
        A(f"v_mul_f32 v{t1}, 0xbfb8aa3b, v{x}")
        A(f"v_exp_f32 v{t1}, v{t1}")
        A(f"v_add_f32 v{t1}, 1.0, v{t1}")
        A(f"v_rcp_f32 v{t2}, v{t1}")
        A(f"v_mul_f32 v{dst}, v{x}, v{t2}")
        bf16r(dst, dst)
    def exp_diff(dst, a, b):
        A(f"v_sub_f32 v{dst}, v{a}, v{b}")
        A(f"v_mul_f32 v{dst}, {hex(LOG2E)}, v{dst}")
        A(f"v_exp_f32 v{dst}, v{dst}")
    def check_sentinel(regs, tmp):
        regs = list(regs)
        if len(regs) >= 3:
            A(f"v_max3_u32 v{tmp}, v{regs[0]}, v{regs[1]}, v{regs[2]}"); i = 3
        else:
            A(f"v_max_u32 v{tmp}, v{regs[0]}, v{regs[1]}"); i = 2
        while i < len(regs):
            if i + 1 < len(regs): A(f"v_max3_u32 v{tmp}, v{tmp}, v{regs[i]}, v{regs[i+1]}"); i += 2
            else: A(f"v_max_u32 v{tmp}, v{tmp}, v{regs[i]}"); i += 1
        A(f"v_cmp_eq_u32 vcc, -1, v{tmp}")
        A(f"s_cmp_eq_u64 vcc, 0")
    def check_tags(regs, tmp):
        regs = list(regs)
        A(f"v_xor_b32 v{tmp}, s{sTAG}, v{regs[0]}")
        if len(regs) > 2:
            A(f"v_xor_b32 v{tmp+1}, s{sTAG}, v{regs[1]}")
            for i, r in enumerate(regs[2:]):
                A(f"v_bitop3_b32 v{tmp+(i&1)}, v{r}, s{sTAG}, v{tmp+(i&1)} bitop3:0xbe")
            A(f"v_or_b32 v{tmp}, v{tmp}, v{tmp+1}")
        else:
            for r in regs[1:]: A(f"v_bitop3_b32 v{tmp}, v{r}, s{sTAG}, v{tmp} bitop3:0xbe")
        A(f"v_cmp_ne_u32 vcc, 0, v{tmp}")
        A(f"s_cmp_eq_u64 vcc, 0")
    def poll_masked(name, issue, regs, tmp, tags=False, nap=0):
        A(f"s_mov_b32 s{sSPIN}, {SPIN_LIMIT}")
        A(f"{name}:")
        issue()
        A("s_waitcnt vmcnt(0)")
        if tags: check_tags(regs, tmp)
        else: check_sentinel(regs, tmp)
        A(f"s_cbranch_scc1 {name}_ok")
        A("s_mov_b64 exec, vcc")
        if nap: A(f"s_sleep {nap}")
        A(f"s_sub_u32 s{sSPIN}, s{sSPIN}, 1"); A(f"s_cmp_lg_u32 s{sSPIN}, 0"); A(f"s_cbranch_scc1 {name}")
        A(f"{name}_ok:")
        A("s_mov_b64 exec, -1")
    def int_sum(regs, dst):
        regs = list(regs)
        A(f"v_add3_u32 v{dst}, v{regs[0]}, v{regs[1]}, v{regs[2]}"); i = 3
        while i < len(regs):
            if i + 1 < len(regs): A(f"v_add3_u32 v{dst}, v{dst}, v{regs[i]}, v{regs[i+1]}"); i += 2
            else: A(f"v_add_u32 v{dst}, v{dst}, v{regs[i]}"); i += 1
    def poll_sum(name, issue, regs, tmp, starget, nap=0, rowreduce=False, masked=True):
        A(f"s_mov_b32 s{sSPIN}, {SPIN_LIMIT}")
        A(f"{name}:")
        issue()
        A("s_waitcnt vmcnt(0)")
        int_sum(regs, tmp)
        if rowreduce:
            for k in (8, 4, 2, 1): A(f"v_add_u32_dpp v{tmp}, v{tmp}, v{tmp} row_ror:{k} row_mask:0xf bank_mask:0xf")
        A(f"v_cmp_ne_u32 vcc, s{starget}, v{tmp}"); A("s_cmp_eq_u64 vcc, 0")
        A(f"s_cbranch_scc1 {name}_ok")
        if masked: A("s_mov_b64 exec, vcc")
        if nap: A(f"s_sleep {nap}")
        A(f"s_sub_u32 s{sSPIN}, s{sSPIN}, 1"); A(f"s_cmp_lg_u32 s{sSPIN}, 0"); A(f"s_cbranch_scc1 {name}")
        A(f"{name}_ok:")
        A("s_mov_b64 exec, -1")
    def poll2(name, issue, nloads, setA, setB, nregs, process, tmp):
        A(f"s_mov_b32 s{sSPIN}, {SPIN_LIMIT}")
        issue(setA)
        A(f"{name}_loop:")
        issue(setB)
        A(f"s_waitcnt vmcnt({nloads})")
        check_sentinel(range(setA, setA + nregs), tmp)
        A(f"s_cbranch_scc1 {name}_okA")
        issue(setA)
        A(f"s_waitcnt vmcnt({nloads})")
        check_sentinel(range(setB, setB + nregs), tmp)
        A(f"s_cbranch_scc1 {name}_okB")
        A(f"s_sub_u32 s{sSPIN}, s{sSPIN}, 1"); A(f"s_cmp_lg_u32 s{sSPIN}, 0")
        A(f"s_cbranch_scc0 {name}_okB")
        A(f"s_branch {name}_loop")
        A(f"{name}_okB:")
        process(setB)
        A(f"s_branch {name}_end")
        A(f"{name}_okA:")
        process(setA)
        A(f"{name}_end:")

    A(f"{KNAME}:")
    A("s_cmp_ge_u32 s2, 256")
    A("s_cbranch_scc1 L_end")
    A(f"s_load_dwordx16 s[8:23], s[0:1], 0")
    A(f"s_load_dwordx8 s[24:31], s[0:1], 64")
    if stamps or dbgtime: A(f"s_memrealtime s[{sSTAMP0}:{sSTAMP0+1}]")
    A(f"v_and_b32 v{vLANE}, 63, v0")
    A(f"v_lshrrev_b32 v{vTMP}, 6, v0")
    A(f"v_lshlrev_b32 v{vL16}, 4, v{vLANE}")
    A(f"v_readfirstlane_b32 s{sW}, v{vTMP}")
    A(f"s_and_b32 s{sT0}, s2, 7"); A(f"s_lshl_b32 s{sH}, s{sT0}, 2")
    A(f"s_lshr_b32 s{sT1}, s2, 3"); A(f"s_and_b32 s{sT0}, s{sT1}, 3"); A(f"s_add_u32 s{sH}, s{sH}, s{sT0}")
    A(f"s_lshr_b32 s{sSUB}, s{sT1}, 2")
    A(f"s_lshr_b32 s{sB}, s{sSUB}, 2"); A(f"s_and_b32 s{sSPLIT}, s{sSUB}, 3")
    A(f"s_lshl_b32 s{sBOXH}, s{sH}, 3"); A(f"s_add_u32 s{sBOXH}, s{sBOXH}, s{sSUB}")
    A(f"s_lshl_b32 s{sBOXC}, s{sSUB}, 5"); A(f"s_add_u32 s{sBOXC}, s{sBOXC}, s{sH}"); A(f"s_lshl_b32 s{sBOXC}, s{sBOXC}, 10")
    A(f"s_mul_i32 s{sROT}, s2, {rotk*16384}"); A(f"s_and_b32 s{sROT}, s{sROT}, 0xfffff")
    A(f"s_sub_u32 s{sHW}, s{sW}, 4")
    A(f"v_lshrrev_b32 v{vG}, 4, v{vLANE}")
    A(f"v_and_b32 v{vC}, 15, v{vLANE}")
    vWQ = vU + 20
    A(f"v_lshlrev_b32 v{vWQ}, 13, v{vG}")
    A(f"v_lshl_add_u32 v{vWQ}, v{vC}, 4, v{vWQ}")
    A("s_waitcnt lgkmcnt(0)")
    A(f"s_add_u32 s{sT4}, s{sWS}, {WS_Z}"); A(f"s_addc_u32 s{sT5}, s{sWS+1}, 0")
    A(f"s_load_dword s{sTAG}, s[{sT4}:{sT5}], 0")
    srd(SRD_A, sX, 4096)
    sPIV = 52
    vXR = vU + 8
    vF1 = vU + 21; vWD = vU + 22; vWD2 = vU + 23
    A(f"s_cmp_ge_u32 s{sW}, 4")
    A("s_cbranch_scc1 L_helper_issue")

    vms = VM(A)
    A(f"s_and_b32 s{sT0}, s{sW}, 1"); A(f"s_lshl_b32 s{sT0}, s{sT0}, 11")
    A(f"s_load_dword s{sPIV}, s[{sX}:{sX+1}], s{sT0}")
    A(f"s_lshr_b32 s{sT1}, s{sW}, 1"); A(f"s_lshl_b32 s{sT1}, s{sT1}, 10"); A(f"s_add_u32 s{sT0}, s{sT0}, s{sT1}")
    A(f"buffer_load_dwordx4 {r4(vXR)}, v{vL16}, s[{SRD_A}:{SRD_A+3}], s{sT0} offen"); vms.issue("x")
    A(f"s_lshl_b32 s{sT0}, s{sH}, 8")
    srd(SRD_Q, sWQ, 8388608 - 31 * 256, add=sT0)
    A(f"s_lshl_b32 s{sT0}, s{sSUB}, 5"); A(f"s_lshl_b32 s{sT1}, s{sW}, 3"); A(f"s_add_u32 s{sT0}, s{sT0}, s{sT1}"); A(f"s_lshl_b32 s{sOFF}, s{sT0}, 15")
    WQS = 16
    for n in range(8):
        A(f"buffer_load_dwordx4 {r4(slot(WQS+n))}, v{vWQ}, s[{SRD_Q}:{SRD_Q+3}], s{sOFF} offen {wqflag}"); vms.issue(("wq", n))
        if n < 7: A(f"s_add_u32 s{sOFF}, s{sOFF}, 32768")
    A(f"v_mov_b32 v{vX}, 0"); A(f"v_lshlrev_b32 v{vX+1}, 2, v{vLANE}")
    A(f"s_mov_b64 exec, 0xffff")
    A(f"ds_write_b32 v{vX+1}, v{vX} offset:{CNT}")
    A("s_mov_b64 exec, -1")
    srd(SRD_WS, sWS, 0x1000000)
    srd(SRD_B, sX, 0)
    A(f"s_lshl_b32 s{sT0}, s{sB}, 5"); A(f"s_add_u32 s{sT0}, s{sT0}, s{sH}"); A(f"s_lshl_b32 s{sT0}, s{sT0}, 2")
    A(f"s_add_u32 s{sT0}, s{sT0}, s{sSPLIT}"); A(f"s_lshl_b32 s{sT0}, s{sT0}, 20")
    srd(SRD_C, sK, 0x100000, add=sT0)
    srd(SRD_D, sV, 0x100000, add=sT0)
    A(f"s_lshl_b32 s{sT0}, s{sW}, 12"); A(f"s_add_u32 s{sRUN}, s{sROT}, s{sT0}")
    for r in (vF1, vWD, vWD2, vU + 28, vU + 30): A(f"v_mov_b32 v{r}, 0")
    A("s_waitcnt lgkmcnt(0)")
    A("s_barrier")
    cur = {"vm": vms}
    def kv_issue(idx, srdb, tag, state, ring):
        piece = idx >> 2
        key = (srdb, piece, state.get("epoch", 0))
        if state.get("cur") != key:
            if piece == 0: A(f"s_and_b32 s{sOFF}, s{sRUN}, 0xfffff")
            else:
                A(f"s_add_u32 s{sOFF}, s{sRUN}, {piece*16384}"); A(f"s_and_b32 s{sOFF}, s{sOFF}, 0xfffff")
            state["cur"] = key
        A(f"buffer_load_dwordx4 {r4(slot((idx + state.get('slot0', 0)) % ring))}, v{vL16}, s[{srdb}:{srdb+3}], s{sOFF} offen offset:{(idx&3)*1024} {kvflag}")
        cur["vm"].issue(tag)
    def masks():
        A(f"v_and_b32 v{vU+2}, 1, v{vC}")
        A(f"v_lshlrev_b32 v{vU+2}, 4, v{vU+2}")
        A(f"v_mov_b32 v{vU+3}, 0xffff")
        A(f"v_lshlrev_b32 v{vU+3}, v{vU+2}, v{vU+3}")
        A(f"v_bfe_u32 v{vU+4}, v{vC}, 1, 2")
        for k in range(4):
            A(f"v_cmp_eq_u32 vcc, {k}, v{vU+4}")
            A(f"v_cndmask_b32 v{vM+k}, 0, v{vU+3}, vcc")
        A(f"v_lshrrev_b32 v{vU+2}, 3, v{vC}")
        A(f"v_lshl_add_u32 v{vBG}, v{vU+2}, 2, v{vG}")
        A(f"v_mul_u32_u24 v{vXA}, {XSTR}, v{vBG}")
    masks()
    A(f"s_mov_b32 s{sBIT0}, 0xaaaaaaaa"); A(f"s_mov_b32 s{sBIT0+1}, 0xaaaaaaaa")
    A(f"s_mov_b32 s{sBIT1}, 0xcccccccc"); A(f"s_mov_b32 s{sBIT1+1}, 0xcccccccc")
    A(f"s_add_u32 s{sTAG}, s{sTAG}, 1")
    A(f"s_lshl_b32 s{sPIV}, s{sPIV}, 16")
    vms.wait("x")
    st = {}
    for n in range(WE): kv_issue(n, SRD_C, ("k", n), st, 16)
    stamp(9)
    vY = vT; vZ = vT + 8
    for k in range(4):
        A(f"v_lshlrev_b32 v{vY+2*k}, 16, v{vXR+k}"); A(f"v_and_b32 v{vY+2*k+1}, 0xffff0000, v{vXR+k}")
    for k in range(8): A(f"v_subrev_f32 v{vZ+k}, s{sPIV}, v{vY+k}")
    vS = vX; vSB = vX + 1; vS2 = vX + 2; vMEAN = vX + 6
    A(f"v_add_f32 v{vS}, v{vZ}, v{vZ+1}"); A(f"v_mul_f32 v{vSB}, v{vZ}, v{vZ}")
    A(f"v_add_f32 v{vS2}, v{vZ+2}, v{vZ+3}"); A(f"v_mul_f32 v{vS2+1}, v{vZ+1}, v{vZ+1}")
    for k in (4, 6):
        A(f"v_add_f32 v{vS}, v{vS}, v{vZ+k}"); A(f"v_add_f32 v{vS2}, v{vS2}, v{vZ+k+1}")
    for k in (2, 4, 6):
        A(f"v_fmac_f32 v{vSB}, v{vZ+k}, v{vZ+k}"); A(f"v_fmac_f32 v{vS2+1}, v{vZ+k+1}, v{vZ+k+1}")
    A(f"v_add_f32 v{vS}, v{vS}, v{vS2}"); A(f"v_add_f32 v{vSB}, v{vSB}, v{vS2+1}")
    fill = [f"s_and_b32 s{sT0}, s{sW}, 1", f"s_mul_i32 s{sT1}, s{sT0}, {4*XSTR}",
            f"s_lshr_b32 s{sT2}, s{sW}, 1", f"s_lshl_b32 s{sT3}, s{sT2}, 9", f"s_add_u32 s{sT1}, s{sT1}, s{sT3}",
            f"s_lshl_b32 s{sT0}, s{sT0}, 4", f"s_lshl_b32 s{sT2}, s{sT2}, 3", f"s_add_u32 s{sT2}, s{sT2}, s{sT0}"]
    for i, k in enumerate((8, 4, 2, 1)):
        A(f"v_add_f32_dpp v{vS}, v{vS}, v{vS} row_ror:{k} row_mask:0xf bank_mask:0xf")
        A(f"v_add_f32_dpp v{vSB}, v{vSB}, v{vSB} row_ror:{k} row_mask:0xf bank_mask:0xf")
        A(fill[2*i]); A(fill[2*i+1])
    for swap in ("v_permlane16_swap_b32", "v_permlane32_swap_b32"):
        A(f"v_mov_b32 v{vS2}, v{vS}"); A(f"v_mov_b32 v{vS2+1}, v{vSB}")
        A(f"{swap} v{vS}, v{vS2}"); A(f"{swap} v{vSB}, v{vS2+1}")
        A(f"v_add_f32 v{vS}, v{vS}, v{vS2}"); A(f"v_add_f32 v{vSB}, v{vSB}, v{vS2+1}")
    vXW = vU + 9 + 3
    A(f"v_lshlrev_b32 v{vXW}, 3, v{vLANE}")
    A(f"v_add_u32 v{vXW}, s{sT1}, v{vXW}")
    A(f"v_mov_b32 v{vS2}, s{sT2}"); A(f"v_mov_b32 v{vXW+1}, s{sT0}")
    A("s_mov_b64 exec, 1")
    A(f"ds_write_b64 v{vS2}, v[{vS}:{vS+1}] offset:{STAT}")
    A("s_mov_b64 exec, -1")
    lds_signal(C_STAT)
    lds_wait(C_STAT, 4)
    A(f"ds_read_b128 {r4(vZ)}, v{vXW+1} offset:{STAT}")
    A("s_waitcnt lgkmcnt(0)")
    A(f"v_add_f32 v{vS}, v{vZ}, v{vZ+2}"); A(f"v_add_f32 v{vSB}, v{vZ+1}, v{vZ+3}")
    A(f"v_mul_f32 v{vS}, 0x3a800000, v{vS}"); A(f"v_mul_f32 v{vSB}, 0x3a800000, v{vSB}")
    A(f"v_add_f32 v{vMEAN}, s{sPIV}, v{vS}")
    A(f"v_fma_f32 v{vS}, -v{vS}, v{vS}, v{vSB}")
    A(f"v_max_f32 v{vS}, 0, v{vS}")
    bf16r(vS, vS)
    A(f"v_add_f32 v{vS}, 0x3727c5ac, v{vS}")
    bf16r(vS, vS)
    vSQ = vX + 3; vR = vX + 4; vE = vX + 5
    A(f"v_sqrt_f32 v{vSQ}, v{vS}")
    bf16r(vMEAN, vMEAN)
    A(f"v_rcp_f32 v{vR}, v{vSQ}")
    A(f"v_fma_f32 v{vE}, -v{vSQ}, v{vSQ}, v{vS}")
    A(f"v_mul_f32 v{vE}, 0.5, v{vE}")
    A(f"v_fma_f32 v{vSQ}, v{vE}, v{vR}, v{vSQ}")
    bf16r(vSQ, vSQ)
    A(f"v_rcp_f32 v{vR}, v{vSQ}")
    for k in range(8): A(f"v_sub_f32 v{vY+k}, v{vY+k}, v{vMEAN}")
    for k in range(8): bf16r(vY + k, vY + k)
    for k in range(8): A(f"v_mul_f32 v{vZ+k}, v{vY+k}, v{vR}")
    vZ2 = vX + 8
    for k in range(8): A(f"v_fma_f32 v{vZ2+k}, -v{vZ+k}, v{vSQ}, v{vY+k}")
    for k in range(8): A(f"v_fma_f32 v{vZ+k}, v{vZ2+k}, v{vR}, v{vZ+k}")
    for g in range(4):
        A(f"v_cvt_pk_bf16_f32 v{vY+2*g}, v{vZ+g}, v{vZ+g}"); A(f"v_cvt_pk_bf16_f32 v{vY+2*g+1}, v{vZ+g+4}, v{vZ+g+4}")
    for g in range(4): A(f"ds_write_b64 v{vXW}, v[{vY+2*g}:{vY+2*g+1}] offset:{XDUP + g*XSTR}")
    lds_signal(C_XDUP)
    A(f"s_lshl_b32 s{sT0}, s{sSUB}, 7"); A(f"s_lshl_b32 s{sT1}, s{sW}, 5"); A(f"s_add_u32 s{sT0}, s{sT0}, s{sT1}")
    A(f"v_add_u32 v{vU+24}, s{sT0}, v{vXA}")
    zero4(vD)
    lds_wait(C_XDUP, 4)
    stamp(1)
    A(f"ds_read_b128 {r4(vX)}, v{vU+24} offset:{XDUP}")
    A(f"ds_read_b128 {r4(vX+4)}, v{vU+24} offset:{XDUP+16}")
    A(f"s_lshl_b32 s{sT0}, s{sW}, 10")
    A(f"v_add_u32 v{vU+25}, s{sT0}, v{vL16}")
    vms.wait(("wq", 7))
    A("s_waitcnt lgkmcnt(0)")
    for n in range(8): mfma_row(vA0 if n % 2 == 0 else vA1, vX + n, slot(WQS + n), vD)
    A(f"ds_write_b128 v{vU+25}, {r4(vD)} offset:{QD}")
    lds_signal(C_QD)
    vm = vms
    st = {}
    for n in range(WE, KPRE):
        A(f"s_waitcnt vmcnt({WE-1})")
        kv_issue(n, SRD_C, ("k", n), st, 16)
    vm.q = [("k", n) for n in range(KPRE)]
    lds_wait(C_QRDY, 1)
    A(f"v_lshlrev_b32 v{vTMP}, 4, v{vC}")
    A(f"ds_read_b128 {r4(vQ)}, v{vTMP} offset:{QPK}")
    vMX = vU + 25; vSA = vU + 26; vSC = vU + 27; vS1 = vU + 28; vLs = vU + 29; vE1 = vU + 30; vE2 = vU + 31
    A(f"v_mov_b32 v{vMX}, 0xff800000"); A(f"v_mov_b32 v{vLs}, 0")
    A(f"s_lshl_b32 s{sT0}, s{sW}, 12")
    A(f"v_lshlrev_b32 v{vSA}, 2, v{vLANE}")
    A(f"v_add_u32 v{vSA}, s{sT0}, v{vSA}")
    A("s_waitcnt lgkmcnt(0)")
    if dbg:
        A(f"s_lshl_b32 s{sT0}, s2, 14"); A(f"s_lshl_b32 s{sT1}, s{sW}, 10"); A(f"s_add_u32 s{sT0}, s{sT0}, s{sT1}"); A(f"s_add_u32 s{sT0}, s{sT0}, {WS_DBG}")
        A(f"buffer_store_dwordx4 {r4(vQ)}, v{vL16}, {WSR}, s{sT0} offen"); A("s_waitcnt vmcnt(0)")
    stamp(2)
    def kpost(T):
        o = []
        for j in range(8): o.append(f"v_add_f32_dpp v{T+j}, v{T+j}, v{T+j} row_ror:8 row_mask:0xf bank_mask:0x3")
        for j in range(8): o.append(f"v_add_f32_dpp v{T+j}, v{T+j+8}, v{T+j+8} row_ror:8 row_mask:0xf bank_mask:0xc")
        for j in range(4): o.append(f"v_add_f32_dpp v{T+j}, v{T+j}, v{T+j} row_shl:4 row_mask:0xf bank_mask:0x5")
        for j in range(4): o.append(f"v_add_f32_dpp v{T+j}, v{T+j+4}, v{T+j+4} row_shr:4 row_mask:0xf bank_mask:0xa")
        for j in range(4): o.append(f"v_add_f32_dpp v{T+8+j}, v{T+j}, v{T+j} quad_perm:[2,3,0,1] row_mask:0xf bank_mask:0xf")
        o.append(f"v_cndmask_b32 v{T}, v{T+8}, v{T+10}, s[{sBIT1}:{sBIT1+1}]")
        o.append(f"v_cndmask_b32 v{T+1}, v{T+9}, v{T+11}, s[{sBIT1}:{sBIT1+1}]")
        o.append(f"v_add_f32_dpp v{T+8}, v{T}, v{T} quad_perm:[1,0,3,2] row_mask:0xf bank_mask:0xf")
        o.append(f"v_add_f32_dpp v{T+9}, v{T+1}, v{T+1} quad_perm:[1,0,3,2] row_mask:0xf bank_mask:0xf")
        o.append(f"v_cndmask_b32 v{vSC}, v{T+8}, v{T+9}, s[{sBIT0}:{sBIT0+1}]")
        o += [f"v_cvt_pk_bf16_f32 v{vSC}, v{vSC}, v{vSC}", f"v_and_b32 v{vSC}, 0xffff0000, v{vSC}",
              f"v_mul_f32 v{vSC}, {hex(SCALE)}, v{vSC}",
              f"v_cvt_pk_bf16_f32 v{vSC}, v{vSC}, v{vSC}", f"v_and_b32 v{vSC}, 0xffff0000, v{vSC}",
              f"ds_write_b32 v{vSA}, v{vSC} offset:{SCO}",
              f"v_max_f32 v{vS1}, v{vMX}, v{vSC}",
              f"v_sub_f32 v{vE1}, v{vMX}, v{vS1}", f"v_sub_f32 v{vE2}, v{vSC}, v{vS1}",
              f"v_mul_f32 v{vE1}, {hex(LOG2E)}, v{vE1}", f"v_mul_f32 v{vE2}, {hex(LOG2E)}, v{vE2}",
              f"v_exp_f32 v{vE1}, v{vE1}", f"v_exp_f32 v{vE2}, v{vE2}",
              f"v_mov_b32 v{vMX}, v{vS1}", f"v_add_u32 v{vSA}, 256, v{vSA}",
              f"v_fma_f32 v{vLs}, v{vLs}, v{vE1}, v{vE2}"]
        return o
    def kblock(base, T, post, issue):
        n = len(post); per = (n + 15) // 16
        for j in range(16):
            vm.wait(("k", base + j))
            issue(base + j)
            b = slot(j)
            A(f"v_dot2_f32_bf16 v{T+j}, v{b}, v{vQ}, 0")
            for k in range(1, 4): A(f"v_dot2_f32_bf16 v{T+j}, v{b+k}, v{vQ+k}, v{T+j}")
            for ins in post[j*per:(j+1)*per]: A(ins)
    def retag(name, shift):
        vm.q = [((name, t[1] + shift) if (isinstance(t, tuple) and t[0] == name) else t) for t in vm.q]
    T0, T1 = vT, vX
    st = {}
    def iss_first(n, ring, pre, srdb, nm):
        if pre < ring or W > ring - 1:
            if n + W >= pre: kv_issue(n + W, srdb, (nm, n + W), st, ring)
        else:
            if 1 <= n <= W: kv_issue(ring + n - 1, srdb, (nm, ring + n - 1), st, ring)
    kblock(0, T0, [], lambda n: iss_first(n, 16, KPRE, SRD_C, "k"))
    retag("k", -16)
    A(f"s_add_u32 s{sRUN}, s{sRUN}, 65536")
    A(f"s_mov_b32 s{sCNT}, 7")
    A("L_kloop:")
    q_in = list(vm.q); st = {}
    kblock(0, T1, kpost(T0), lambda n: kv_issue(n + W, SRD_C, ("k", n + W), st, 16))
    kblock(16, T0, kpost(T1), lambda n: kv_issue(n + W, SRD_C, ("k", n + W), st, 16))
    retag("k", -32)
    assert vm.q == q_in, (vm.q, q_in)
    lds_signal(C_PROG)
    stamp_loop(16, sCNT, 7)
    A(f"s_add_u32 s{sRUN}, s{sRUN}, 131072")
    A(f"s_sub_u32 s{sCNT}, s{sCNT}, 1"); A(f"s_cmp_lg_u32 s{sCNT}, 0"); A("s_cbranch_scc1 L_kloop")
    st = {}
    sRUNV = sT2
    A(f"s_lshl_b32 s{sT0}, s{sW}, 12"); A(f"s_add_u32 s{sRUNV}, s{sROT}, s{sT0}")
    VOFF = 16 if R == 32 else 0
    def issl(j):
        if j + W < 16: kv_issue(j + W, SRD_C, ("k", j + W), st, 16)
        else:
            if st.get("epoch", 0) == 0:
                st["epoch"] = 1; st["slot0"] = VOFF; A(f"s_mov_b32 s{sRUN}, s{sRUNV}")
            kv_issue(j + W - 16, SRD_D, ("v", j + W - 16), st, R)
    kblock(0, T1, kpost(T0), issl)
    for ins in kpost(T1): A(ins)
    stamp(3)
    A(f"v_mov_b32 v{vS1}, v{vMX}")
    allreduce("v_max_f32", vS1, vE1)
    exp_diff(vE1, vMX, vS1)
    A(f"v_mul_f32 v{vLs}, v{vLs}, v{vE1}")
    allreduce("v_add_f32", vLs, vE1)
    vPAIR = vX
    A(f"v_mov_b32 v{vPAIR}, v{vS1}"); A(f"v_mov_b32 v{vPAIR+1}, v{vLs}")
    A(f"s_lshl_b32 s{sT0}, s{sW}, 3"); A(f"v_mov_b32 v{vE1}, s{sT0}")
    A("s_mov_b64 exec, 1")
    A(f"ds_write_b64 v{vE1}, v[{vPAIR}:{vPAIR+1}] offset:{MLW}")
    A("s_mov_b64 exec, -1")
    lds_signal(C_MLW)
    st = {"epoch": 1, "slot0": VOFF}
    for n in range(W, R):
        A(f"s_waitcnt vmcnt({W-1})")
        kv_issue(n, SRD_D, ("v", n), st, R)
    A(f"v_subrev_u32 v{vSA}, 4096, v{vSA}")
    vL = None; vP = vU + 31; vSN = vU + 32; vP2 = vU + 33; vMG = vX + 2; vIL = vX + 3
    A(f"ds_read_b32 v{vSN}, v{vSA} offset:{SCO}")
    zero4(vD)
    lds_wait(C_MLRDY, 1)
    A(f"v_mov_b32 v{vE1}, 0")
    A(f"ds_read_b64 v[{vMG}:{vMG+1}], v{vE1} offset:{MLF}")
    stamp(10)
    def vblock(base, issue, last=False):
        A("s_waitcnt lgkmcnt(0)")
        exp_diff(vP, vSN, vMG)
        if not last:
            A(f"v_add_u32 v{vSA}, 256, v{vSA}")
            A(f"ds_read_b32 v{vSN}, v{vSA} offset:{SCO}")
        A(f"v_mul_f32 v{vP}, v{vP}, v{vIL}")
        A(f"v_cvt_pk_bf16_f32 v{vP2}, v{vP}, v{vP}")
        for j in range(16):
            vm.wait(("v", base + j))
            issue(base + j)
            mfma_row(vA0 if j % 2 == 0 else vA1, vP2, slot((base + j + VOFF) % R), vD, dpp=j)
    NB = R // 16
    vm.q = [("v", n) for n in range(R)]
    st = {"epoch": 1, "slot0": VOFF}
    for bb in range(NB):
        vblock(16 * bb, lambda n: iss_first(n, R, R, SRD_D, "v"))
    retag("v", -R)
    A(f"s_add_u32 s{sRUN}, s{sRUN}, {65536*NB}")
    A(f"s_mov_b32 s{sCNT}, {16//NB - 2}")
    A("L_vloop:")
    q_in = list(vm.q); st = {"epoch": 1, "slot0": VOFF}
    for bb in range(NB):
        vblock(16 * bb, lambda n: kv_issue(n + W, SRD_D, ("v", n + W), st, R))
    retag("v", -R)
    assert vm.q == q_in, (vm.q, q_in)
    stamp_loop(32, sCNT, 14)
    A(f"s_add_u32 s{sRUN}, s{sRUN}, {65536*NB}")
    A(f"s_sub_u32 s{sCNT}, s{sCNT}, 1"); A(f"s_cmp_lg_u32 s{sCNT}, 0"); A("s_cbranch_scc1 L_vloop")
    st = {"epoch": 1, "slot0": VOFF}
    for bb in range(NB):
        vblock(16 * bb, lambda n: kv_issue(n + W, SRD_D, ("v", n + W), st, R) if n + W < R else None, last=(bb == NB - 1))
    A(f"v_lshlrev_b32 v{vTMP}, 5, v{vC}")
    A(f"v_lshl_add_u32 v{vTMP}, v{vG}, 4, v{vTMP}")
    A(f"s_lshl_b32 s{sT0}, s{sBOXH}, 11"); A(f"s_lshl_b32 s{sT1}, s{sW}, 9"); A(f"s_add_u32 s{sT0}, s{sT0}, s{sT1}"); A(f"s_add_u32 s{sT0}, s{sT0}, {WS_X2}")
    A("s_mov_b32 exec_hi, 0")
    A(f"buffer_store_dwordx4 {r4(vD)}, v{vTMP}, {WSR}, s{sT0} offen sc1")
    A("s_mov_b64 exec, -1")
    stamp(4)
    A("s_barrier")
    if stamps:
        A(f"s_cmp_lg_u32 s{sW}, 0"); A("s_cbranch_scc1 L_end")
        stamp_store(0)
    A("s_endpgm")

    A("L_helper_issue:")
    vmh = VM(A)
    srd(SRD_WS, sWS, 0x1000000)
    srd(SRD_Q, sV if hmode == "contig" else sX, 0x4000000 if hmode == "contig" else 0)
    A(f"v_mul_u32_u24 v{vF1}, 7168, v{vG}")
    A(f"v_lshl_add_u32 v{vF1}, v{vC}, 4, v{vF1}")
    A(f"v_mov_b32 v{vWD2}, 0x40000000")
    A(f"v_cmp_gt_u32 vcc, 14, v{vC}")
    A(f"v_cndmask_b32 v{vF1}, v{vWD2}, v{vF1}, vcc")
    A(f"s_and_b32 s{sT0}, s{sHW}, 1"); A(f"s_cmp_eq_u32 s{sT0}, 0")
    A(f"s_cselect_b32 s{sT2}, s{sWG}, s{sWU}"); A(f"s_cselect_b32 s{sT3}, s{sWG+1}, s{sWU+1}")
    A(f"s_mul_i32 s{sT0}, s{sH}, 224")
    A(f"s_add_u32 s{SRD_B}, s{sT2}, s{sT0}"); A(f"s_addc_u32 s{SRD_B+1}, s{sT3}, 0")
    A(f"s_mov_b32 s{SRD_B+2}, {1024*7168 - 31*224}"); A(f"s_mov_b32 s{SRD_B+3}, 0x20000")
    A(f"s_lshl_b32 s{sT0}, s{sSUB}, 7"); A(f"s_lshr_b32 s{sT1}, s{sHW}, 1"); A(f"s_lshl_b32 s{sT1}, s{sT1}, 6")
    A(f"s_add_u32 s{sT0}, s{sT0}, s{sT1}"); A(f"s_mul_i32 s{sRUN}, s{sT0}, 7168")
    A(f"v_lshlrev_b32 v{vWD}, 11, v{vG}")
    A(f"v_lshl_add_u32 v{vWD}, v{vC}, 4, v{vWD}")
    A(f"s_cmp_lg_u32 s{sHW}, 3"); A("s_cbranch_scc0 L_wd_oob")
    A(f"v_mov_b32 v{vWD2}, v{vWD}")
    A("L_wd_oob:")
    A(f"s_mul_i32 s{sT0}, s{sH}, {112*2048}"); A(f"s_lshl_b32 s{sT1}, s{sSUB}, 8"); A(f"s_add_u32 s{sT0}, s{sT0}, s{sT1}")
    srd(SRD_C, sWD, 111 * 2048 + 256, add=sT0)
    A(f"s_lshl_b32 s{sT0}, s{sH}, 18"); A(f"s_add_u32 s{sT0}, s{sT0}, s{sT1}")
    srd(SRD_D, sWO, 127 * 2048 + 256, add=sT0)
    sHB = sCNT
    A(f"s_lshl_b32 s{sHB}, s{sHW}, 16")
    def h_issue(n):
        if n >= 32: return
        if hmode == "contig":
            A(f"s_lshl_b32 s{sOFF}, s2, 17"); A(f"s_lshl_b32 s{sT5}, s{sHW}, 10"); A(f"s_add_u32 s{sOFF}, s{sOFF}, s{sT5}"); A(f"s_add_u32 s{sOFF}, s{sOFF}, {n*4096}")
            A(f"buffer_load_dwordx4 {r4(slot(n))}, v{vL16}, s[{SRD_Q}:{SRD_Q+3}], s{sOFF} offen {wflag}")
        elif hmode == "none":
            A(f"s_mov_b32 s{sOFF}, 0")
            A(f"buffer_load_dwordx4 {r4(slot(n))}, v{vL16}, s[{SRD_A}:{SRD_A+3}], s{sOFF} offen")
        elif n < 16:
            A(f"s_add_u32 s{sOFF}, s{sRUN}, {n*28672}")
            A(f"buffer_load_dwordx4 {r4(slot(n))}, v{vF1}, s[{SRD_B}:{SRD_B+3}], s{sOFF} offen {wflag}")
        elif n < 24:
            A(f"s_add_u32 s{sOFF}, s{sHB}, {(n-16)*8192}")
            A(f"buffer_load_dwordx4 {r4(slot(n))}, v{vWD if n < 20 else vWD2}, s[{SRD_C}:{SRD_C+3}], s{sOFF} offen {wflag}")
        else:
            A(f"s_add_u32 s{sOFF}, s{sHB}, {(n-24)*8192}")
            A(f"buffer_load_dwordx4 {r4(slot(n))}, v{vWD}, s[{SRD_D}:{SRD_D+3}], s{sOFF} offen {wflag}")
        vmh.issue(("h", n))
    A("s_waitcnt lgkmcnt(0)")
    A("s_barrier")
    A(f"s_add_u32 s{sTAG}, s{sTAG}, 1")
    A(f"s_cmp_lg_u32 s{sHW}, 0"); A("s_cbranch_scc1 L_noclear")
    for k in range(4): A(f"v_mov_b32 v{vD2+k}, -1")
    A(f"s_add_u32 s{sT1}, s{sBOXC}, {WS_X3}")
    A(f"buffer_store_dwordx4 {r4(vD2)}, v{vL16}, {WSR}, s{sT1} offen sc1")
    A(f"s_lshl_b32 s{sT0}, s{sBOXH}, 11"); A(f"s_add_u32 s{sT1}, s{sT0}, {WS_X2}")
    A(f"buffer_store_dwordx4 {r4(vD2)}, v{vL16}, {WSR}, s{sT1} offen sc1")
    A(f"buffer_store_dwordx4 {r4(vD2)}, v{vL16}, {WSR}, s{sT1} offen offset:1024 sc1")
    A(f"s_lshl_b32 s{sT1}, s{sBOXH}, 7"); A(f"s_add_u32 s{sT1}, s{sT1}, {WS_XM}")
    A("s_mov_b64 exec, 0xff")
    A(f"buffer_store_dwordx4 {r4(vD2)}, v{vL16}, {WSR}, s{sT1} offen sc1")
    A("s_mov_b64 exec, -1")
    A("L_noclear:")
    for n in range(WH): h_issue(n)
    masks()
    A(f"s_cmp_lg_u32 s{sHW}, 0"); A("s_cbranch_scc1 L_hstart")
    if prio: A(f"s_setprio {prio}")
    lds_wait(C_QD, 4)
    for w in range(4): A(f"ds_read_b128 {r4(vT+4*w)}, v{vL16} offset:{QD + w*1024}")
    A("s_waitcnt lgkmcnt(0)")
    for r in range(4):
        A(f"v_add_f32 v{vD+r}, v{vT+r}, v{vT+4+r}"); A(f"v_add_f32 v{vD2+r}, v{vT+8+r}, v{vT+12+r}")
    for r in range(4): A(f"v_add_f32 v{vD+r}, v{vD+r}, v{vD2+r}")
    A("s_waitcnt vmcnt(0)")
    A(f"v_add3_u32 v{vD2}, v{vD}, v{vD+1}, v{vD+2}"); A(f"v_add_u32 v{vD2}, v{vD2}, v{vD+3}")
    A(f"v_sub_u32 v{vD2}, s{sTAG}, v{vD2}")
    A(f"s_lshl_b32 s{sT0}, s{sBOXH}, 11")
    A(f"v_lshlrev_b32 v{vD2+1}, 2, v{vLANE}")
    A(f"buffer_store_dwordx4 {r4(vD)}, v{vL16}, {WSR}, s{sT0} offen sc1")
    A(f"buffer_store_dword v{vD2}, v{vD2+1}, {WSR}, s{sT0} offen offset:1024 sc1")
    stamp(16)
    A(f"v_lshrrev_b32 v{vU+25}, 5, v{vLANE}"); A(f"v_lshlrev_b32 v{vU+25}, 11, v{vU+25}")
    A(f"v_and_b32 v{vU+26}, 31, v{vLANE}")
    A(f"v_lshl_add_u32 v{vU+36}, v{vU+26}, 2, v{vU+25}")
    A(f"v_lshl_add_u32 v{vU+25}, v{vU+26}, 4, v{vU+25}")
    sQB = sT3; sQC = sT2
    A(f"s_lshl_b32 s{sQB}, s{sH}, 14"); A(f"s_lshl_b32 s{sT1}, s{sB}, 7"); A(f"s_add_u32 s{sQC}, s{sQB}, s{sT1}"); A(f"s_add_u32 s{sQC}, s{sQC}, 1024")
    A(f"s_lshl_b32 s{sT1}, s{sB}, 9"); A(f"s_add_u32 s{sQB}, s{sQB}, s{sT1}")
    QG = vT
    A(f"s_mov_b32 s{sSPIN}, {SPIN_LIMIT}")
    if qpoll == "light":
        A(f"v_and_b32 v{vU+26}, 7, v{vLANE}"); A(f"v_lshlrev_b32 v{vU+26}, 11, v{vU+26}")
        A(f"s_lshl_b32 s{sT1}, s{sH}, 14"); A(f"s_add_u32 s{sT1}, s{sT1}, 1008")
        A("L_qlight:")
        A(f"buffer_load_dwordx4 {r4(QG)}, v{vU+26}, {WSR}, s{sT1} offen sc1")
        A(f"buffer_load_dword v{QG+4}, v{vU+26}, {WSR}, s{sT1} offen offset:268 sc1")
        A("s_waitcnt vmcnt(0)")
        A(f"v_add3_u32 v{QG+5}, v{QG}, v{QG+1}, v{QG+2}"); A(f"v_add3_u32 v{QG+5}, v{QG+5}, v{QG+3}, v{QG+4}")
        A(f"v_cmp_ne_u32 vcc, s{sTAG}, v{QG+5}"); A("s_cmp_eq_u64 vcc, 0")
        A("s_cbranch_scc1 L_qfull")
        A(f"s_sub_u32 s{sSPIN}, s{sSPIN}, 1"); A(f"s_cmp_lg_u32 s{sSPIN}, 0"); A("s_cbranch_scc1 L_qlight")
        A("L_qfull:")
    A(f"s_lshl_b32 s{sT5}, s{sTAG}, 2")
    def xq_issue():
        A(f"s_mov_b32 s{sT0}, s{sQB}"); A(f"s_mov_b32 s{sT1}, s{sQC}")
        for k in range(4):
            A(f"buffer_load_dwordx4 {r4(QG+4*k)}, v{vU+25}, {WSR}, s{sT0} offen sc1")
            A(f"buffer_load_dword v{QG+16+k}, v{vU+36}, {WSR}, s{sT1} offen sc1")
            if k < 3: A(f"s_add_u32 s{sT0}, s{sT0}, 4096"); A(f"s_add_u32 s{sT1}, s{sT1}, 4096")
    poll_sum("L_qpoll", xq_issue, list(range(QG, QG + 20)), vU + 32, sT5)
    stamp(17)
    vQS = vU + 32
    for r in range(4):
        A(f"v_add_f32 v{vQS+4+r}, v{QG+r}, v{QG+4+r}"); A(f"v_add_f32 v{vQS+8+r}, v{QG+8+r}, v{QG+12+r}")
    for r in range(4): A(f"v_add_f32 v{vQS+r}, v{vQS+4+r}, v{vQS+8+r}")
    for r in range(4): A(f"v_mov_b32 v{vQS+4+r}, v{vQS+r}")
    for r in range(4): A(f"v_permlane32_swap_b32 v{vQS+r}, v{vQS+4+r}")
    for r in range(4): A(f"v_add_f32 v{vQS+r}, v{vQS+r}, v{vQS+4+r}")
    A(f"v_cvt_pk_bf16_f32 v{vQS+4}, v{vQS}, v{vQS+1}"); A(f"v_cvt_pk_bf16_f32 v{vQS+5}, v{vQS+2}, v{vQS+3}")
    A(f"v_and_b32 v{vU+25}, 1, v{vG}"); A(f"v_lshlrev_b32 v{vU+25}, 3, v{vU+25}"); A(f"v_lshl_add_u32 v{vU+25}, v{vC}, 4, v{vU+25}")
    A("s_mov_b32 exec_hi, 0")
    A(f"ds_write_b64 v{vU+25}, v[{vQS+4}:{vQS+5}] offset:{QPK}")
    A("s_mov_b64 exec, -1")
    lds_signal(C_QRDY)
    if prio: A("s_setprio 0")
    A("L_hstart:")
    vm = vmh
    vm.q = [("h", n) for n in range(WH)]
    for n in range(32 - WH):
        vm.wait(("h", n))
        h_issue(n + WH)
        if n in (0, 7, 15, 23): stamp({0: 13, 7: 14, 15: 15, 23: 4}[n])
    zero4(vD)
    A(f"s_lshl_b32 s{sT0}, s{sSUB}, 7"); A(f"s_lshr_b32 s{sT1}, s{sHW}, 1"); A(f"s_lshl_b32 s{sT1}, s{sT1}, 6"); A(f"s_add_u32 s{sT0}, s{sT0}, s{sT1}")
    A(f"v_add_u32 v{vU+25}, s{sT0}, v{vXA}")
    lds_wait(C_XDUP, 4)
    for q4 in range(4): A(f"ds_read_b128 {r4(vX+4*q4)}, v{vU+25} offset:{XDUP + q4*16}")
    vm.wait(("h", 15))
    A("s_waitcnt lgkmcnt(0)")
    for n in range(16): mfma_row(vA0 if n % 2 == 0 else vA1, vX + n, slot(n), vD)
    vRA = vU + 24
    A(f"s_and_b32 s{sT0}, s{sHW}, 1"); A(f"s_lshl_b32 s{sT0}, s{sT0}, 10")
    A(f"v_add_u32 v{vRA}, s{sT0}, v{vL16}")
    A(f"s_cmp_lt_u32 s{sHW}, 2"); A("s_cbranch_scc1 L_f1_keep")
    A(f"ds_write_b128 v{vRA}, {r4(vD)} offset:{RED}")
    lds_signal(C_H1)
    A("L_f1_keep:")
    stamp(2)
    A(f"s_cmp_lt_u32 s{sHW}, 2"); A("s_cbranch_scc0 L_f1_done")
    lds_wait(C_H1, 2)
    A(f"ds_read_b128 {r4(vD2)}, v{vRA} offset:{RED}")
    A("s_waitcnt lgkmcnt(0)")
    for r in range(4): A(f"v_add_f32 v{vD+r}, v{vD+r}, v{vD2+r}")
    A(f"v_cmp_gt_u32 vcc, 14, v{vC}")
    for r in range(4): A(f"v_cndmask_b32 v{vD+r}, 0, v{vD+r}, vcc")
    int_sum(range(vD, vD + 4), vD2)
    for k in (8, 4, 2, 1): A(f"v_add_u32_dpp v{vD2}, v{vD2}, v{vD2} row_ror:{k} row_mask:0xf bank_mask:0xf")
    A(f"v_sub_u32 v{vD2}, s{sTAG}, v{vD2}")
    A(f"v_cmp_eq_u32 vcc, 15, v{vC}")
    A(f"v_cndmask_b32 v{vD}, v{vD}, v{vD2}, vcc")
    A(f"s_lshl_b32 s{sT0}, s{sBOXH}, 11"); A(f"s_add_u32 s{sT0}, s{sT0}, {WS_X1}")
    A(f"buffer_store_dwordx4 {r4(vD)}, v{vRA}, {WSR}, s{sT0} offen sc1")
    A(f"s_cmp_eq_u32 s{sHW}, 0"); A("s_cbranch_scc0 L_f1_done")
    lds_wait(C_PROG, 4 * PX1, nap=32)
    A(f"s_lshl_b32 s{sT5}, s{sTAG}, 4")
    def x1_issue():
        A(f"s_lshl_b32 s{sT0}, s{sH}, 14"); A(f"s_add_u32 s{sT0}, s{sT0}, {WS_X1}")
        for s_ in range(8):
            A(f"buffer_load_dwordx4 {r4(slot(2*s_))}, v{vL16}, {WSR}, s{sT0} offen sc1")
            A(f"buffer_load_dwordx4 {r4(slot(2*s_+1))}, v{vL16}, {WSR}, s{sT0} offen offset:1024 sc1")
            if s_ < 7: A(f"s_add_u32 s{sT0}, s{sT0}, 2048")
    poll_sum("L_x1poll", x1_issue, range(slot(0), slot(0) + 64), vT, sT5, nap=32, rowreduce=True, masked=False)
    stamp(3)
    for mt in range(2):
        for r in range(4):
            A(f"v_add_f32 v{vT+4*mt+r}, v{slot(mt)+r}, v{slot(2+mt)+r}")
        for s_ in range(2, 8):
            for r in range(4): A(f"v_add_f32 v{vT+4*mt+r}, v{vT+4*mt+r}, v{slot(2*s_+mt)+r}")
    A(f"v_cmp_gt_u32 vcc, 14, v{vC}")
    for r in range(8): A(f"v_cndmask_b32 v{vT+r}, 0, v{vT+r}, vcc")
    A(f"v_lshrrev_b32 v{vU+25}, 1, v{vG}"); A(f"v_mul_u32_u24 v{vU+25}, {4*HSTR}, v{vU+25}")
    A(f"v_and_b32 v{vU+26}, 1, v{vG}"); A(f"v_lshl_add_u32 v{vU+26}, v{vC}, 1, v{vU+26}")
    A(f"v_lshl_add_u32 v{vU+25}, v{vU+26}, 2, v{vU+25}")
    for r in range(4):
        bf16r(vT + r, vT + r); bf16r(vT + 4 + r, vT + 4 + r)
        silu(vT + 8, vT + r, vT + 9, vT + 10)
        A(f"v_mul_f32 v{vT+8}, v{vT+8}, v{vT+4+r}")
        A(f"v_cvt_pk_bf16_f32 v{vT+8}, v{vT+8}, v{vT+8}")
        A(f"ds_write_b32 v{vU+25}, v{vT+8} offset:{HDUP + r*HSTR}")
    lds_signal(C_H2)
    A("L_f1_done:")
    lds_wait(C_H2, 1, nap=32)
    A(f"v_mul_u32_u24 v{vU+25}, {HSTR}, v{vBG}")
    A(f"s_lshl_b32 s{sT0}, s{sHW}, 5")
    A(f"v_add_u32 v{vU+25}, s{sT0}, v{vU+25}")
    A(f"ds_read_b128 {r4(vX)}, v{vU+25} offset:{HDUP}")
    A(f"ds_read_b128 {r4(vX+4)}, v{vU+25} offset:{HDUP+16}")
    zero4(vD)
    A("s_waitcnt vmcnt(0) lgkmcnt(0)")
    for n in range(8): mfma_row(vA0 if n % 2 == 0 else vA1, vX + n, slot(16 + n), vD)
    vRA = vU + 24
    A(f"s_lshl_b32 s{sT0}, s{sHW}, 10")
    A(f"v_add_u32 v{vRA}, s{sT0}, v{vL16}")
    vPL = vU + 27
    A(f"v_lshrrev_b32 v{vPL}, 1, v{vG}"); A(f"v_lshlrev_b32 v{vPL}, 9, v{vPL}")
    A(f"v_and_b32 v{vU+26}, 1, v{vG}"); A(f"v_lshl_add_u32 v{vPL}, v{vU+26}, 4, v{vPL}")
    A(f"v_lshl_add_u32 v{vPL}, v{vC}, 5, v{vPL}")
    A(f"s_lshr_b32 s{sK4}, s{sH}, 3")
    vGA = vU + 28; vOA = vU + 30
    A(f"v_lshlrev_b32 v{vGA}, 10, v{vG}")
    A(f"v_bfe_u32 v{vU+26}, v{vLANE}, 3, 1"); A(f"v_lshl_add_u32 v{vGA}, v{vU+26}, 9, v{vGA}")
    A(f"v_and_b32 v{vU+29}, 7, v{vLANE}"); A(f"v_lshl_add_u32 v{vGA}, v{vU+29}, 4, v{vGA}")
    A(f"v_lshlrev_b32 v{vOA}, 11, v{vU+26}")
    A(f"v_lshl_add_u32 v{vOA}, v{vU+29}, 3, v{vOA}")
    A(f"s_lshl_b32 s{sT0}, s{sSUB}, 8"); A(f"s_lshl_b32 s{sT1}, s{sK4}, 6"); A(f"s_add_u32 s{sT0}, s{sT0}, s{sT1}")
    A(f"v_add_u32 v{vOA}, s{sT0}, v{vOA}")
    A(f"s_and_b32 s{sT0}, s{sH}, 7"); A(f"s_cmp_eq_u32 s{sT0}, s{sSUB}"); A(f"s_cselect_b32 s{sISC}, 1, 0")
    A(f"s_cmp_eq_u32 s{sHW}, 0"); A("s_cbranch_scc1 L_f2_h0")
    A(f"ds_write_b128 v{vRA}, {r4(vD)} offset:{RED}")
    lds_signal(C_H3)
    A("s_branch L_tail")
    A("L_f2_h0:")
    lds_wait(C_H3, 3)
    for w in range(1, 4): A(f"ds_read_b128 {r4(vT+4*w)}, v{vL16} offset:{RED + w*1024}")
    A("s_waitcnt lgkmcnt(0)")
    for r in range(4):
        for w in range(1, 4): A(f"v_add_f32 v{vD+r}, v{vD+r}, v{vT+4*w+r}")
    int_sum(range(vD, vD + 4), vT)
    A(f"v_sub_u32 v{vT}, s{sTAG}, v{vT}")
    A(f"v_lshrrev_b32 v{vT+1}, 2, v{vPL}")
    A(f"s_lshl_b32 s{sT0}, s{sBOXC}, 1"); A(f"s_add_u32 s{sT0}, s{sT0}, {WS_XY}")
    if "xypub" not in skip:
        A(f"buffer_store_dwordx4 {r4(vD)}, v{vPL}, {WSR}, s{sT0} offen sc1")
        A(f"buffer_store_dword v{vT}, v{vT+1}, {WSR}, s{sT0} offen offset:1024 sc1")
    sGB = sT3
    def g_issue(base_const):
        def f(setbase):
            A(f"s_lshl_b32 s{sGB}, s{sSUB}, 15"); A(f"s_lshl_b32 s{sT1}, s{sK4}, 7"); A(f"s_add_u32 s{sGB}, s{sGB}, s{sT1}"); A(f"s_add_u32 s{sGB}, s{sGB}, {base_const}")
            for tt in range(8):
                A(f"buffer_load_dwordx4 {r4(setbase+4*tt)}, v{vGA}, {WSR}, s{sGB} offen sc1")
                if tt < 7: A(f"s_add_u32 s{sGB}, s{sGB}, 4096")
        return f
    def g_process(sb):
        for r in range(4):
            A(f"v_add_f32 v{vT+r}, v{sb+r}, v{sb+4+r}"); A(f"v_add_f32 v{vT+4+r}, v{sb+8+r}, v{sb+12+r}")
            A(f"v_add_f32 v{vT+8+r}, v{sb+16+r}, v{sb+20+r}"); A(f"v_add_f32 v{vT+12+r}, v{sb+24+r}, v{sb+28+r}")
        for r in range(4):
            A(f"v_add_f32 v{vT+r}, v{vT+r}, v{vT+4+r}"); A(f"v_add_f32 v{vT+8+r}, v{vT+8+r}, v{vT+12+r}")
        for r in range(4): A(f"v_add_f32 v{vT+r}, v{vT+r}, v{vT+8+r}")
    def g_finish():
        for r in range(4): A(f"v_mov_b32 v{vT+4+r}, v{vT+r}")
        for r in range(4): A(f"v_permlane16_swap_b32 v{vT+r}, v{vT+4+r}")
        for r in range(4): A(f"v_add_f32 v{vT+r}, v{vT+r}, v{vT+4+r}")
        for r in range(4): A(f"v_mov_b32 v{vT+4+r}, v{vT+r}")
        for r in range(4): A(f"v_permlane32_swap_b32 v{vT+r}, v{vT+4+r}")
        for r in range(4): A(f"v_add_f32 v{vT+r}, v{vT+r}, v{vT+4+r}")
        for r in range(4): bf16r(vT + r, vT + r)
    A("L_xm:")
    stamp(10)
    lds_wait(C_MLW, 4, nap=napml)
    if prio: A(f"s_setprio {prio}")
    vML = vT
    A(f"v_mov_b32 v{vTMP}, 0")
    A(f"ds_read_b128 {r4(vML)}, v{vTMP} offset:{MLW}")
    A(f"ds_read_b128 {r4(vML+4)}, v{vTMP} offset:{MLW+16}")
    A("s_waitcnt lgkmcnt(0)")
    vMM = vT + 8; vLL = vT + 9; vFW = vT + 10
    A(f"v_max_f32 v{vMM}, v{vML}, v{vML+2}")
    A(f"v_max3_f32 v{vMM}, v{vMM}, v{vML+4}, v{vML+6}")
    for w in range(4): exp_diff(vFW + w, vML + 2 * w, vMM)
    A(f"v_mul_f32 v{vLL}, v{vFW}, v{vML+1}")
    for w in range(1, 4): A(f"v_fmac_f32 v{vLL}, v{vFW+w}, v{vML+2*w+1}")
    A(f"s_lshl_b32 s{sT0}, s{sBOXH}, 7"); A(f"s_add_u32 s{sT0}, s{sT0}, {WS_XM}")
    A(f"v_mov_b32 v{vTMP}, 0")
    A("s_mov_b64 exec, 1")
    A(f"buffer_store_dwordx2 v[{vMM}:{vMM+1}], v{vTMP}, {WSR}, s{sT0} offen sc1")
    A("s_mov_b64 exec, -1")
    stamp(11)
    A(f"v_and_b32 v{vU+25}, 3, v{vLANE}"); A(f"v_lshlrev_b32 v{vU+25}, 7, v{vU+25}")
    A(f"s_lshl_b32 s{sT1}, s{sH}, 3"); A(f"s_lshl_b32 s{sT0}, s{sB}, 2"); A(f"s_add_u32 s{sT1}, s{sT1}, s{sT0}"); A(f"s_lshl_b32 s{sT1}, s{sT1}, 7"); A(f"s_add_u32 s{sT1}, s{sT1}, {WS_XM}")
    def xm_issue(sb): A(f"buffer_load_dwordx2 v[{sb}:{sb+1}], v{vU+25}, {WSR}, s{sT1} offen sc1")
    def xm_proc(sb):
        A(f"v_mov_b32 v{vT}, v{sb}"); A(f"v_mov_b32 v{vT+1}, v{sb+1}")
    poll2("L_xmp", xm_issue, 1, slot(0), slot(1), 2, xm_proc, vT + 4)
    A(f"v_max_f32_dpp v{vT+2}, v{vT}, v{vT} quad_perm:[1,0,3,2] row_mask:0xf bank_mask:0xf")
    A(f"v_max_f32_dpp v{vT+2}, v{vT+2}, v{vT+2} quad_perm:[2,3,0,1] row_mask:0xf bank_mask:0xf")
    exp_diff(vT + 3, vT, vT + 2)
    A(f"v_mul_f32 v{vT+3}, v{vT+3}, v{vT+1}")
    A(f"v_add_f32_dpp v{vT+3}, v{vT+3}, v{vT+3} quad_perm:[1,0,3,2] row_mask:0xf bank_mask:0xf")
    A(f"v_add_f32_dpp v{vT+3}, v{vT+3}, v{vT+3} quad_perm:[2,3,0,1] row_mask:0xf bank_mask:0xf")
    A(f"v_rcp_f32 v{vT+5}, v{vT+3}")
    A(f"v_fma_f32 v{vT+6}, -v{vT+3}, v{vT+5}, 1.0")
    A(f"v_fma_f32 v{vT+5}, v{vT+6}, v{vT+5}, v{vT+5}")
    A(f"v_mov_b32 v{vT+4}, v{vT+2}")
    A(f"v_mov_b32 v{vTMP}, 0")
    A("s_mov_b64 exec, 1")
    A(f"ds_write_b64 v{vTMP}, v[{vT+4}:{vT+5}] offset:{MLF}")
    A("s_mov_b64 exec, -1")
    lds_signal(C_MLRDY)
    if prio: A("s_setprio 0")
    stamp(12)
    A("s_waitcnt vmcnt(0)")
    A(f"s_cmp_eq_u32 s{sISC}, 0"); A("s_cbranch_scc1 L_tail")
    A(f"v_lshlrev_b32 v{vU+26}, 10, v{vG}"); A(f"v_add_u32 v{vU+26}, v{vU+26}, v{vGA}")
    A(f"v_lshlrev_b32 v{vU+25}, 11, v{vG}")
    A(f"v_bfe_u32 v{vT}, v{vLANE}, 3, 1"); A(f"v_lshl_add_u32 v{vU+25}, v{vT}, 7, v{vU+25}")
    A(f"v_lshl_add_u32 v{vU+25}, v{vU+29}, 2, v{vU+25}")
    A(f"s_lshl_b32 s{sT5}, s{sTAG}, 3")
    def gy_issue():
        A(f"s_lshl_b32 s{sGB}, s{sSUB}, 16"); A(f"s_add_u32 s{sGB}, s{sGB}, {WS_XY}")
        A(f"s_lshl_b32 s{sT1}, s{sK4}, 5"); A(f"s_add_u32 s{sT2}, s{sGB}, s{sT1}"); A(f"s_add_u32 s{sT2}, s{sT2}, 1024")
        A(f"s_lshl_b32 s{sT1}, s{sK4}, 7"); A(f"s_add_u32 s{sGB}, s{sGB}, s{sT1}")
        for tt in range(8):
            A(f"buffer_load_dwordx4 {r4(slot(tt))}, v{vU+26}, {WSR}, s{sGB} offen sc1")
            A(f"buffer_load_dword v{slot(8)+tt}, v{vU+25}, {WSR}, s{sT2} offen sc1")
            if tt < 7: A(f"s_add_u32 s{sGB}, s{sGB}, 8192"); A(f"s_add_u32 s{sT2}, s{sT2}, 8192")
    if "xyget" not in skip: poll_sum("L_gy", gy_issue, range(slot(0), slot(0) + 40), vT, sT5, nap=32)
    g_process(slot(0)); g_finish()
    vGG = vU + 32; vXO = vU + 36
    for r in range(4): silu(vGG + r, vT + r, vT + 9, vT + 10)
    A(f"buffer_load_dwordx2 v[{vU+40}:{vU+41}], v{vOA}, s[{SRD_A}:{SRD_A+3}], 0 offen")
    A("s_waitcnt vmcnt(0)")
    A(f"v_lshlrev_b32 v{vXO}, 16, v{vU+40}"); A(f"v_and_b32 v{vXO+1}, 0xffff0000, v{vU+40}")
    A(f"v_lshlrev_b32 v{vXO+2}, 16, v{vU+41}"); A(f"v_and_b32 v{vXO+3}, 0xffff0000, v{vU+41}")

    A("L_tail:")
    vX2A = vU + 44
    A(f"v_bfe_u32 v{vU+26}, v{vLANE}, 2, 2")
    A(f"v_lshrrev_b32 v{vX2A}, 5, v{vLANE}")
    A(f"v_lshl_add_u32 v{vX2A}, v{vX2A}, 2, v{vU+26}")
    A(f"v_lshlrev_b32 v{vX2A}, 11, v{vX2A}")
    A(f"v_bfe_u32 v{vU+26}, v{vLANE}, 4, 1"); A(f"v_and_b32 v{vU+46}, 3, v{vLANE}")
    A(f"v_lshl_add_u32 v{vU+46}, v{vU+26}, 2, v{vU+46}")
    A(f"v_lshl_add_u32 v{vX2A}, v{vU+46}, 4, v{vX2A}")
    A(f"s_lshl_b32 s{sT0}, s{sHW}, 7")
    A(f"v_add_u32 v{vX2A}, s{sT0}, v{vX2A}")
    vOW = vU + 47; vOR = vU + 48
    A(f"v_lshrrev_b32 v{vOW}, 5, v{vLANE}"); A(f"v_mul_u32_u24 v{vOW}, {4*OSTR}, v{vOW}")
    A(f"v_lshl_add_u32 v{vOW}, v{vU+46}, 2, v{vOW}")
    A(f"s_mul_i32 s{sT0}, s{sHW}, 384")
    A(f"v_add_u32 v{vOW}, s{sT0}, v{vOW}")
    A(f"v_mul_u32_u24 v{vOR}, {OSTR}, v{vBG}"); A(f"v_add_u32 v{vOR}, s{sT0}, v{vOR}")
    sX2 = sT3
    A(f"s_lshl_b32 s{sX2}, s{sH}, 14"); A(f"s_add_u32 s{sX2}, s{sX2}, {WS_X2}")
    zero4(vD)
    A("s_waitcnt vmcnt(0) lgkmcnt(0)")
    A("s_barrier")
    stamp(5)
    def x2_issue(sb):
        for w in range(4):
            A(f"buffer_load_dwordx4 {r4(sb+4*w)}, v{vX2A}, {WSR}, s{sX2} offen offset:{w*512} sc1")
    def x2_proc(sb):
        for r in range(4):
            A(f"v_add_f32 v{vT+r}, v{sb+r}, v{sb+4+r}"); A(f"v_add_f32 v{vT+4+r}, v{sb+8+r}, v{sb+12+r}")
        for r in range(4): A(f"v_add_f32 v{vT+r}, v{vT+r}, v{vT+4+r}")
    poll_masked("L_x2", lambda: x2_issue(slot(0)), range(slot(0), slot(0) + 16), vT + 8, nap=napx2)
    x2_proc(slot(0))
    stamp(6)
    for k in (4, 8):
        for r in range(4):
            A(f"v_add_f32_dpp v{vT+r}, v{vT+r}, v{vT+r} row_ror:{k} row_mask:0xf bank_mask:0xf")
    for r in range(4):
        A(f"v_cvt_pk_bf16_f32 v{vT+r}, v{vT+r}, v{vT+r}")
    for r in range(4):
        A(f"ds_write_b32 v{vOW}, v{vT+r} offset:{ODUP + r*OSTR}")
    A(f"ds_read_b128 {r4(vX)}, v{vOR} offset:{ODUP}")
    A(f"ds_read_b128 {r4(vX+4)}, v{vOR} offset:{ODUP+16}")
    A("s_waitcnt lgkmcnt(0)")
    for n in range(8): mfma_row(vA0 if n % 2 == 0 else vA1, vX + n, slot(24 + n), vD)
    A(f"s_cmp_eq_u32 s{sHW}, 0"); A("s_cbranch_scc1 L_x3_h0")
    A(f"ds_write_b128 v{vRA}, {r4(vD)} offset:{RED}")
    A("s_waitcnt lgkmcnt(0)")
    A("s_barrier")
    A("s_endpgm")
    A("L_x3_h0:")
    A("s_nop 1")
    A("s_barrier")
    for w in range(1, 4): A(f"ds_read_b128 {r4(vT+4*w)}, v{vL16} offset:{RED + w*1024}")
    A("s_waitcnt lgkmcnt(0)")
    for r in range(4):
        A(f"v_add_f32 v{vD+r}, v{vD+r}, v{vT+4+r}"); A(f"v_add_f32 v{vT+8+r}, v{vT+8+r}, v{vT+12+r}")
    for r in range(4): A(f"v_add_f32 v{vD+r}, v{vD+r}, v{vT+8+r}")
    A(f"s_add_u32 s{sT0}, s{sBOXC}, {WS_X3}")
    A(f"buffer_store_dwordx4 {r4(vD)}, v{vPL}, {WSR}, s{sT0} offen sc1")
    stamp(7)
    A(f"s_cmp_eq_u32 s{sISC}, 0"); A("s_cbranch_scc1 L_fin")
    poll_masked("L_g3", lambda: g_issue(WS_X3)(slot(8)), range(slot(8), slot(8) + 32), vT + 4, nap=napx3)
    g_process(slot(8))
    g_finish()
    for r in range(4):
        A(f"v_mul_f32 v{vT+r}, v{vT+r}, v{vGG+r}")
    for r in range(4): bf16r(vT + r, vT + r)
    for r in range(4): A(f"v_add_f32 v{vT+r}, v{vT+r}, v{vXO+r}")
    A(f"v_cvt_pk_bf16_f32 v{vT+4}, v{vT}, v{vT+1}")
    A(f"v_cvt_pk_bf16_f32 v{vT+5}, v{vT+2}, v{vT+3}")
    srd(SRD_B, sOUT, 4096)
    A("s_mov_b64 exec, 0xffff")
    A(f"buffer_store_dwordx2 v[{vT+4}:{vT+5}], v{vOA}, s[{SRD_B}:{SRD_B+3}], 0 offen")
    A(f"s_cmp_lg_u32 s2, 0"); A("s_cbranch_scc1 L_noepoch")
    A(f"v_mov_b32 v{vT}, s{sTAG}"); A(f"v_mov_b32 v{vT+1}, {WS_Z}")
    A("s_mov_b64 exec, 1")
    A(f"buffer_store_dword v{vT}, v{vT+1}, {WSR}, 0 offen sc1")
    A("L_noepoch:")
    A("s_mov_b64 exec, -1")
    A("L_fin:")
    if dbgtime:
        A(f"s_memrealtime s[{sT4}:{sT5}]"); A("s_waitcnt lgkmcnt(0)")
        A(f"s_sub_u32 s{sT4}, s{sT4}, s{sSTAMP0}")
        A(f"s_cmp_ge_u32 s2, 64"); A("s_cbranch_scc1 L_end")
        A(f"s_lshl_b32 s{sT0}, s2, 2"); A(f"v_mov_b32 v{vT}, s{sT4}"); A(f"v_mov_b32 v{vT+1}, s{sT0}")
        A("s_mov_b64 exec, 1")
        A(f"global_store_dword v{vT+1}, v{vT}, s[{sDBG}:{sDBG+1}]")
    if stamps:
        stamp(8)
        stamp_store(256)
    A("L_end:")
    A("s_endpgm")

    probs = A.check_branches()
    for p in probs: print("HAZARD across branch:", p, file=sys.stderr)
    out = HEADER
    out += f"; @launch grid=(256,1,1) block=(512,1,1) lds={LDS_BYTES}\n"
    out += '.amdgcn_target "amdgcn-amd-amdhsa--gfx950"\n.text\n'
    out += f".globl {KNAME}\n.p2align 8\n.type {KNAME},@function\n"
    out += A.text()
    out += f""".section .rodata,"a"
.p2align 6
.amdhsa_kernel {KNAME}
  .amdhsa_next_free_vgpr 256
  .amdhsa_next_free_sgpr 96
  .amdhsa_accum_offset 256
  .amdhsa_group_segment_fixed_size 0
  .amdhsa_kernarg_size 96
  .amdhsa_user_sgpr_count 2
  .amdhsa_user_sgpr_kernarg_segment_ptr 1
  .amdhsa_system_sgpr_workgroup_id_x 1
  .amdhsa_float_denorm_mode_32 3
.end_amdhsa_kernel
"""
    return out

if __name__ == "__main__":
    kw = eval("dict(" + (sys.argv[2] if len(sys.argv) > 2 else "") + ")")
    open(sys.argv[1], "w").write(gen(**kw))
```

```python
import sys
sys.path.insert(0, "gen")
from asmlib import Asm, VM

KNAME = "recurrent_scan__mha_block_cached__swiglu_ffn__decode_kernel"

HEADER = """; Kernarg layout for this problem (96 bytes, ptrs only, base s[0:1]):
"""

XDUP = 0; XSTR = 1040
HDUP = 8320; HSTR = 144
ODUP = 9472; OSTR = 48
CNT = 11008
C_QRDY, C_H1, C_H1B, C_H2, C_H3, C_MLW, C_MLRDY, C_STAT, C_XDUP, C_QD, C_PROG = 0, 4, 8, 12, 16, 20, 24, 28, 32, 36, 40
QD = 11264
QPK = 19456
MLW = 19712
MLF = 19744
STAT = 19776
RED = 19968
SCO = 24064
LDS_BYTES = 40448

WS_XQ = 0x000000
WS_X1 = 0x080000
WS_XY = 0x100000
WS_X2 = 0x200000
WS_X3 = 0x300000
WS_XM = 0x400000
WS_XH = 0x480000
WS_Z = 0x500000
WS_DBG = 0x800000

LOG2E = 0x3FB8AA3B
SCALE = 0x3DB504F3
SPIN_LIMIT = 400000

def gen(W=5, WH=4, WE=3, R=16, KPRE=16, qpoll="light", hmode="normal", skip="", napx2=0, napx3=0, PX1=3, DP=(0,0,0,0), dbgtime=False, lite=False, prio=2, napml=1, rotk=7, wqflag="nt", kvflag="nt", wflag="nt", dbg=False, stamps=False, sleep=1):
    A = Asm()
    sX, sK, sV, sWQ, sWO, sWG, sWU, sWD, sOUT, sDBG, sWS = 8, 10, 12, 14, 16, 20, 22, 24, 26, 28, 30
    sW, sH, sSUB, sB, sSPLIT, sHW = 3, 32, 33, 34, 35, 36
    sT0, sT1, sT2, sT3 = 37, 38, 39, 40
    sRUN, sOFF, sCNT, sROT = 41, 42, 43, 44
    sBOXH = 45
    sBIT0, sBIT1 = 46, 48
    sSPIN = 50; sSPIN2 = 51
    SRD_A, SRD_B, SRD_C, SRD_D, SRD_WS, SRD_Q = 56, 60, 64, 68, 72, 84
    sSTAMP0 = 76
    sT4, sT5 = 78, 79
    sISC, sK4, sBOXC, sTAG = 80, 81, 82, 83
    vLANE, vL16, vTMP = 1, 2, 3
    vM = 4; vA0, vA1 = 8, 12; vD = 16; vD2 = 20; vQ = 24; vT = 28; vX = 44; vU = 60
    vG, vC, vXA, vBG = vU, vU + 1, vU + 5, vU + 6
    vWQD = 92
    vSIG = 127; vST = 126
    RING = 128
    def slot(i): return RING + 4 * i
    def r4(b): return f"v[{b}:{b+3}]"
    WSR = f"s[{SRD_WS}:{SRD_WS+3}]"

    def srd(base, ptr, size, add=None):
        if add is None:
            A(f"s_mov_b32 s{base}, s{ptr}"); A(f"s_mov_b32 s{base+1}, s{ptr+1}")
        else:
            A(f"s_add_u32 s{base}, s{ptr}, s{add}"); A(f"s_addc_u32 s{base+1}, s{ptr+1}, 0")
        A(f"s_mov_b32 s{base+2}, {size}"); A(f"s_mov_b32 s{base+3}, 0x20000")
    def bf16r(dst, src):
        A(f"v_cvt_pk_bf16_f32 v{dst}, v{src}, v{src}")
        A(f"v_and_b32 v{dst}, 0xffff0000, v{dst}")
    def allreduce(op, r, tmp):
        for k in (8, 4, 2, 1):
            A(f"{op}_dpp v{r}, v{r}, v{r} row_ror:{k} row_mask:0xf bank_mask:0xf")
        A(f"v_mov_b32 v{tmp}, v{r}"); A(f"v_permlane16_swap_b32 v{r}, v{tmp}"); A(f"{op} v{r}, v{r}, v{tmp}")
        A(f"v_mov_b32 v{tmp}, v{r}"); A(f"v_permlane32_swap_b32 v{r}, v{tmp}"); A(f"{op} v{r}, v{r}, v{tmp}")
    def lds_signal(off):
        A("s_waitcnt lgkmcnt(0)")
        A(f"v_mov_b32 v{vTMP}, {CNT+off}"); A(f"v_mov_b32 v{vSIG}, 1")
        A("s_mov_b64 exec, 1")
        A(f"ds_add_u32 v{vTMP}, v{vSIG}")
        A("s_mov_b64 exec, -1")
    def lds_wait(off, n, nap=0):
        lab = A.label("Lw")
        A(f"v_mov_b32 v{vTMP}, {CNT+off}")
        A(f"s_mov_b32 s{sSPIN2}, {SPIN_LIMIT*4}")
        A(f"{lab}:")
        A(f"ds_read_b32 v{vSIG}, v{vTMP}")
        A("s_waitcnt lgkmcnt(0)")
        A(f"v_readfirstlane_b32 s{sT0}, v{vSIG}")
        A(f"s_cmp_ge_u32 s{sT0}, {n}")
        A(f"s_cbranch_scc1 {lab}_ok")
        if nap: A(f"s_sleep {nap}")
        A(f"s_sub_u32 s{sSPIN2}, s{sSPIN2}, 1")
        A(f"s_cmp_lg_u32 s{sSPIN2}, 0")
        A(f"s_cbranch_scc1 {lab}")
        A(f"{lab}_ok:")
    def mfma_row(areg, xreg, breg, dreg, dpp=None):
        for k in range(4):
            if dpp is None: A(f"v_and_b32 v{areg+k}, v{xreg}, v{vM+k}")
            else: A(f"v_and_b32_dpp v{areg+k}, v{xreg}, v{vM+k} row_newbcast:{dpp} row_mask:0xf bank_mask:0xf")
        A(f"v_mfma_f32_16x16x32_bf16 {r4(dreg)}, {r4(areg)}, {r4(breg)}, {r4(dreg)}")
    def zero4(r):
        for k in range(4): A(f"v_mov_b32 v{r+k}, 0")
    def stamp(idx):
        if stamps and (not lite or idx in (4, 8)):
            A(f"s_memrealtime s[{sT4}:{sT5}]"); A("s_waitcnt lgkmcnt(0)")
            A(f"v_writelane_b32 v{vST}, s{sT4}, {idx}")
    def stamp_loop(base, cntreg, top):
        if stamps and not lite:
            A(f"s_memrealtime s[{sT4}:{sT5}]"); A("s_waitcnt lgkmcnt(0)")
            A(f"s_sub_u32 s{sT5}, {base+top}, s{cntreg}"); A(f"s_mov_b32 m0, s{sT5}"); A("s_nop 0")
            A(f"v_writelane_b32 v{vST}, s{sT4}, m0")
    def stamp_store(off):
        if stamps:
            A(f"s_lshl_b32 s{sT0}, s2, 9"); A(f"s_add_u32 s{sT0}, s{sT0}, {0x700000+off}")
            A(f"v_lshlrev_b32 v{vTMP}, 2, v{vLANE}")
            A(f"v_writelane_b32 v{vST}, s{sSTAMP0}, 0")
            A(f"buffer_store_dword v{vST}, v{vTMP}, {WSR}, s{sT0} offen")
    def silu(dst, x, t1, t2):
        A(f"v_mul_f32 v{t1}, 0xbfb8aa3b, v{x}")
        A(f"v_exp_f32 v{t1}, v{t1}")
        A(f"v_add_f32 v{t1}, 1.0, v{t1}")
        A(f"v_rcp_f32 v{t2}, v{t1}")
        A(f"v_mul_f32 v{dst}, v{x}, v{t2}")
        bf16r(dst, dst)
    def exp_diff(dst, a, b):
        A(f"v_sub_f32 v{dst}, v{a}, v{b}")
        A(f"v_mul_f32 v{dst}, {hex(LOG2E)}, v{dst}")
        A(f"v_exp_f32 v{dst}, v{dst}")
    def check_sentinel(regs, tmp):
        regs = list(regs)
        if len(regs) >= 3:
            A(f"v_max3_u32 v{tmp}, v{regs[0]}, v{regs[1]}, v{regs[2]}"); i = 3
        else:
            A(f"v_max_u32 v{tmp}, v{regs[0]}, v{regs[1]}"); i = 2
        while i < len(regs):
            if i + 1 < len(regs): A(f"v_max3_u32 v{tmp}, v{tmp}, v{regs[i]}, v{regs[i+1]}"); i += 2
            else: A(f"v_max_u32 v{tmp}, v{tmp}, v{regs[i]}"); i += 1
        A(f"v_cmp_eq_u32 vcc, -1, v{tmp}")
        A(f"s_cmp_eq_u64 vcc, 0")
    def check_tags(regs, tmp):
        regs = list(regs)
        A(f"v_xor_b32 v{tmp}, s{sTAG}, v{regs[0]}")
        if len(regs) > 2:
            A(f"v_xor_b32 v{tmp+1}, s{sTAG}, v{regs[1]}")
            for i, r in enumerate(regs[2:]):
                A(f"v_bitop3_b32 v{tmp+(i&1)}, v{r}, s{sTAG}, v{tmp+(i&1)} bitop3:0xbe")
            A(f"v_or_b32 v{tmp}, v{tmp}, v{tmp+1}")
        else:
            for r in regs[1:]: A(f"v_bitop3_b32 v{tmp}, v{r}, s{sTAG}, v{tmp} bitop3:0xbe")
        A(f"v_cmp_ne_u32 vcc, 0, v{tmp}")
        A(f"s_cmp_eq_u64 vcc, 0")
    def poll_masked(name, issue, regs, tmp, tags=False, nap=0):
        A(f"s_mov_b32 s{sSPIN}, {SPIN_LIMIT}")
        A(f"{name}:")
        issue()
        A("s_waitcnt vmcnt(0)")
        if tags: check_tags(regs, tmp)
        else: check_sentinel(regs, tmp)
        A(f"s_cbranch_scc1 {name}_ok")
        A("s_mov_b64 exec, vcc")
        if nap: A(f"s_sleep {nap}")
        A(f"s_sub_u32 s{sSPIN}, s{sSPIN}, 1"); A(f"s_cmp_lg_u32 s{sSPIN}, 0"); A(f"s_cbranch_scc1 {name}")
        A(f"{name}_ok:")
        A("s_mov_b64 exec, -1")
    def int_sum(regs, dst):
        regs = list(regs)
        A(f"v_add3_u32 v{dst}, v{regs[0]}, v{regs[1]}, v{regs[2]}"); i = 3
        while i < len(regs):
            if i + 1 < len(regs): A(f"v_add3_u32 v{dst}, v{dst}, v{regs[i]}, v{regs[i+1]}"); i += 2
            else: A(f"v_add_u32 v{dst}, v{dst}, v{regs[i]}"); i += 1
    def poll_sum(name, issue, regs, tmp, starget, nap=0, rowreduce=False, masked=True):
        A(f"s_mov_b32 s{sSPIN}, {SPIN_LIMIT}")
        A(f"{name}:")
        issue()
        A("s_waitcnt vmcnt(0)")
        int_sum(regs, tmp)
        if rowreduce:
            for k in (8, 4, 2, 1): A(f"v_add_u32_dpp v{tmp}, v{tmp}, v{tmp} row_ror:{k} row_mask:0xf bank_mask:0xf")
        A(f"v_cmp_ne_u32 vcc, s{starget}, v{tmp}"); A("s_cmp_eq_u64 vcc, 0")
        A(f"s_cbranch_scc1 {name}_ok")
        if masked: A("s_mov_b64 exec, vcc")
        if nap: A(f"s_sleep {nap}")
        A(f"s_sub_u32 s{sSPIN}, s{sSPIN}, 1"); A(f"s_cmp_lg_u32 s{sSPIN}, 0"); A(f"s_cbranch_scc1 {name}")
        A(f"{name}_ok:")
        A("s_mov_b64 exec, -1")
    def poll2(name, issue, nloads, setA, setB, nregs, process, tmp):
        A(f"s_mov_b32 s{sSPIN}, {SPIN_LIMIT}")
        issue(setA)
        A(f"{name}_loop:")
        issue(setB)
        A(f"s_waitcnt vmcnt({nloads})")
        check_sentinel(range(setA, setA + nregs), tmp)
        A(f"s_cbranch_scc1 {name}_okA")
        issue(setA)
        A(f"s_waitcnt vmcnt({nloads})")
        check_sentinel(range(setB, setB + nregs), tmp)
        A(f"s_cbranch_scc1 {name}_okB")
        A(f"s_sub_u32 s{sSPIN}, s{sSPIN}, 1"); A(f"s_cmp_lg_u32 s{sSPIN}, 0")
        A(f"s_cbranch_scc0 {name}_okB")
        A(f"s_branch {name}_loop")
        A(f"{name}_okB:")
        process(setB)
        A(f"s_branch {name}_end")
        A(f"{name}_okA:")
        process(setA)
        A(f"{name}_end:")

    A(f"{KNAME}:")
    A("s_cmp_ge_u32 s2, 256")
    A("s_cbranch_scc1 L_end")
    A(f"s_load_dwordx16 s[8:23], s[0:1], 0")
    A(f"s_load_dwordx8 s[24:31], s[0:1], 64")
    if stamps or dbgtime: A(f"s_memrealtime s[{sSTAMP0}:{sSTAMP0+1}]")
    A(f"v_and_b32 v{vLANE}, 63, v0")
    A(f"v_lshrrev_b32 v{vTMP}, 6, v0")
    A(f"v_lshlrev_b32 v{vL16}, 4, v{vLANE}")
    A(f"v_readfirstlane_b32 s{sW}, v{vTMP}")
    A(f"s_and_b32 s{sT0}, s2, 7"); A(f"s_lshl_b32 s{sH}, s{sT0}, 2")
    A(f"s_lshr_b32 s{sT1}, s2, 3"); A(f"s_and_b32 s{sT0}, s{sT1}, 3"); A(f"s_add_u32 s{sH}, s{sH}, s{sT0}")
    A(f"s_lshr_b32 s{sSUB}, s{sT1}, 2")
    A(f"s_lshr_b32 s{sB}, s{sSUB}, 2"); A(f"s_and_b32 s{sSPLIT}, s{sSUB}, 3")
    A(f"s_lshl_b32 s{sBOXH}, s{sH}, 3"); A(f"s_add_u32 s{sBOXH}, s{sBOXH}, s{sSUB}")
    A(f"s_lshl_b32 s{sBOXC}, s{sSUB}, 5"); A(f"s_add_u32 s{sBOXC}, s{sBOXC}, s{sH}"); A(f"s_lshl_b32 s{sBOXC}, s{sBOXC}, 10")
    A(f"s_mul_i32 s{sROT}, s2, {rotk*16384}"); A(f"s_and_b32 s{sROT}, s{sROT}, 0xfffff")
    A(f"s_sub_u32 s{sHW}, s{sW}, 4")
    A(f"v_lshrrev_b32 v{vG}, 4, v{vLANE}")
    A(f"v_and_b32 v{vC}, 15, v{vLANE}")
    vWQ = vU + 20
    A(f"v_lshlrev_b32 v{vWQ}, 13, v{vG}")
    A(f"v_lshl_add_u32 v{vWQ}, v{vC}, 4, v{vWQ}")
    A("s_waitcnt lgkmcnt(0)")
    A(f"s_add_u32 s{sT4}, s{sWS}, {WS_Z}"); A(f"s_addc_u32 s{sT5}, s{sWS+1}, 0")
    A(f"s_load_dword s{sTAG}, s[{sT4}:{sT5}], 0")
    srd(SRD_A, sX, 4096)
    sPIV = 52
    vXR = vU + 8
    vF1 = vU + 21; vWD = vU + 22; vWD2 = vU + 23
    A(f"s_cmp_ge_u32 s{sW}, 4")
    A("s_cbranch_scc1 L_helper_issue")

    vms = VM(A)
    A(f"s_and_b32 s{sT0}, s{sW}, 1"); A(f"s_lshl_b32 s{sT0}, s{sT0}, 11")
    A(f"s_load_dword s{sPIV}, s[{sX}:{sX+1}], s{sT0}")
    A(f"s_lshr_b32 s{sT1}, s{sW}, 1"); A(f"s_lshl_b32 s{sT1}, s{sT1}, 10"); A(f"s_add_u32 s{sT0}, s{sT0}, s{sT1}")
    A(f"buffer_load_dwordx4 {r4(vXR)}, v{vL16}, s[{SRD_A}:{SRD_A+3}], s{sT0} offen"); vms.issue("x")
    A(f"s_lshl_b32 s{sT0}, s{sH}, 8")
    srd(SRD_Q, sWQ, 8388608 - 31 * 256, add=sT0)
    A(f"s_lshl_b32 s{sT0}, s{sSUB}, 5"); A(f"s_lshl_b32 s{sT1}, s{sW}, 3"); A(f"s_add_u32 s{sT0}, s{sT0}, s{sT1}"); A(f"s_lshl_b32 s{sOFF}, s{sT0}, 15")
    WQS = 16
    for n in range(8):
        A(f"buffer_load_dwordx4 {r4(slot(WQS+n))}, v{vWQ}, s[{SRD_Q}:{SRD_Q+3}], s{sOFF} offen {wqflag}"); vms.issue(("wq", n))
        if n < 7: A(f"s_add_u32 s{sOFF}, s{sOFF}, 32768")
    A(f"v_mov_b32 v{vX}, 0"); A(f"v_lshlrev_b32 v{vX+1}, 2, v{vLANE}")
    A(f"s_mov_b64 exec, 0xffff")
    A(f"ds_write_b32 v{vX+1}, v{vX} offset:{CNT}")
    A("s_mov_b64 exec, -1")
    srd(SRD_WS, sWS, 0x1000000)
    srd(SRD_B, sX, 0)
    A(f"s_lshl_b32 s{sT0}, s{sB}, 5"); A(f"s_add_u32 s{sT0}, s{sT0}, s{sH}"); A(f"s_lshl_b32 s{sT0}, s{sT0}, 2")
    A(f"s_add_u32 s{sT0}, s{sT0}, s{sSPLIT}"); A(f"s_lshl_b32 s{sT0}, s{sT0}, 20")
    srd(SRD_C, sK, 0x100000, add=sT0)
    srd(SRD_D, sV, 0x100000, add=sT0)
    A(f"s_lshl_b32 s{sT0}, s{sW}, 12"); A(f"s_add_u32 s{sRUN}, s{sROT}, s{sT0}")
    for r in (vF1, vWD, vWD2, vU + 28, vU + 30): A(f"v_mov_b32 v{r}, 0")
    A("s_waitcnt lgkmcnt(0)")
    A("s_barrier")
    cur = {"vm": vms}
    def kv_issue(idx, srdb, tag, state, ring):
        piece = idx >> 2
        key = (srdb, piece, state.get("epoch", 0))
        if state.get("cur") != key:
            if piece == 0: A(f"s_and_b32 s{sOFF}, s{sRUN}, 0xfffff")
            else:
                A(f"s_add_u32 s{sOFF}, s{sRUN}, {piece*16384}"); A(f"s_and_b32 s{sOFF}, s{sOFF}, 0xfffff")
            state["cur"] = key
        sl = idx if (state.get('direct') and idx < 32) else (idx + state.get('slot0', 0)) % ring
        A(f"buffer_load_dwordx4 {r4(slot(sl))}, v{vL16}, s[{srdb}:{srdb+3}], s{sOFF} offen offset:{(idx&3)*1024} {kvflag}")
        cur["vm"].issue(tag)
    def masks():
        A(f"v_and_b32 v{vU+2}, 1, v{vC}")
        A(f"v_lshlrev_b32 v{vU+2}, 4, v{vU+2}")
        A(f"v_mov_b32 v{vU+3}, 0xffff")
        A(f"v_lshlrev_b32 v{vU+3}, v{vU+2}, v{vU+3}")
        A(f"v_bfe_u32 v{vU+4}, v{vC}, 1, 2")
        for k in range(4):
            A(f"v_cmp_eq_u32 vcc, {k}, v{vU+4}")
            A(f"v_cndmask_b32 v{vM+k}, 0, v{vU+3}, vcc")
        A(f"v_lshrrev_b32 v{vU+2}, 3, v{vC}")
        A(f"v_lshl_add_u32 v{vBG}, v{vU+2}, 2, v{vG}")
        A(f"v_mul_u32_u24 v{vXA}, {XSTR}, v{vBG}")
    masks()
    A(f"s_mov_b32 s{sBIT0}, 0xaaaaaaaa"); A(f"s_mov_b32 s{sBIT0+1}, 0xaaaaaaaa")
    A(f"s_mov_b32 s{sBIT1}, 0xcccccccc"); A(f"s_mov_b32 s{sBIT1+1}, 0xcccccccc")
    A(f"s_add_u32 s{sTAG}, s{sTAG}, 1")
    A(f"s_lshl_b32 s{sPIV}, s{sPIV}, 16")
    vms.wait("x")
    st = {}
    for n in range(WE): kv_issue(n, SRD_C, ("k", n), st, 16)
    stamp(9)
    vY = vT; vZ = vT + 8
    for k in range(4):
        A(f"v_lshlrev_b32 v{vY+2*k}, 16, v{vXR+k}"); A(f"v_and_b32 v{vY+2*k+1}, 0xffff0000, v{vXR+k}")
    for k in range(8): A(f"v_subrev_f32 v{vZ+k}, s{sPIV}, v{vY+k}")
    vS = vX; vSB = vX + 1; vS2 = vX + 2; vMEAN = vX + 6
    A(f"v_add_f32 v{vS}, v{vZ}, v{vZ+1}"); A(f"v_mul_f32 v{vSB}, v{vZ}, v{vZ}")
    A(f"v_add_f32 v{vS2}, v{vZ+2}, v{vZ+3}"); A(f"v_mul_f32 v{vS2+1}, v{vZ+1}, v{vZ+1}")
    for k in (4, 6):
        A(f"v_add_f32 v{vS}, v{vS}, v{vZ+k}"); A(f"v_add_f32 v{vS2}, v{vS2}, v{vZ+k+1}")
    for k in (2, 4, 6):
        A(f"v_fmac_f32 v{vSB}, v{vZ+k}, v{vZ+k}"); A(f"v_fmac_f32 v{vS2+1}, v{vZ+k+1}, v{vZ+k+1}")
    A(f"v_add_f32 v{vS}, v{vS}, v{vS2}"); A(f"v_add_f32 v{vSB}, v{vSB}, v{vS2+1}")
    fill = [f"s_and_b32 s{sT0}, s{sW}, 1", f"s_mul_i32 s{sT1}, s{sT0}, {4*XSTR}",
            f"s_lshr_b32 s{sT2}, s{sW}, 1", f"s_lshl_b32 s{sT3}, s{sT2}, 9", f"s_add_u32 s{sT1}, s{sT1}, s{sT3}",
            f"s_lshl_b32 s{sT0}, s{sT0}, 4", f"s_lshl_b32 s{sT2}, s{sT2}, 3", f"s_add_u32 s{sT2}, s{sT2}, s{sT0}"]
    for i, k in enumerate((8, 4, 2, 1)):
        A(f"v_add_f32_dpp v{vS}, v{vS}, v{vS} row_ror:{k} row_mask:0xf bank_mask:0xf")
        A(f"v_add_f32_dpp v{vSB}, v{vSB}, v{vSB} row_ror:{k} row_mask:0xf bank_mask:0xf")
        A(fill[2*i]); A(fill[2*i+1])
    for swap in ("v_permlane16_swap_b32", "v_permlane32_swap_b32"):
        A(f"v_mov_b32 v{vS2}, v{vS}"); A(f"v_mov_b32 v{vS2+1}, v{vSB}")
        A(f"{swap} v{vS}, v{vS2}"); A(f"{swap} v{vSB}, v{vS2+1}")
        A(f"v_add_f32 v{vS}, v{vS}, v{vS2}"); A(f"v_add_f32 v{vSB}, v{vSB}, v{vS2+1}")
    vXW = vU + 9 + 3
    A(f"v_lshlrev_b32 v{vXW}, 3, v{vLANE}")
    A(f"v_add_u32 v{vXW}, s{sT1}, v{vXW}")
    A(f"v_mov_b32 v{vS2}, s{sT2}"); A(f"v_mov_b32 v{vXW+1}, s{sT0}")
    A("s_mov_b64 exec, 1")
    A(f"ds_write_b64 v{vS2}, v[{vS}:{vS+1}] offset:{STAT}")
    A("s_mov_b64 exec, -1")
    lds_signal(C_STAT)
    lds_wait(C_STAT, 4)
    A(f"ds_read_b128 {r4(vZ)}, v{vXW+1} offset:{STAT}")
    A("s_waitcnt lgkmcnt(0)")
    A(f"v_add_f32 v{vS}, v{vZ}, v{vZ+2}"); A(f"v_add_f32 v{vSB}, v{vZ+1}, v{vZ+3}")
    A(f"v_mul_f32 v{vS}, 0x3a800000, v{vS}"); A(f"v_mul_f32 v{vSB}, 0x3a800000, v{vSB}")
    A(f"v_add_f32 v{vMEAN}, s{sPIV}, v{vS}")
    A(f"v_fma_f32 v{vS}, -v{vS}, v{vS}, v{vSB}")
    A(f"v_max_f32 v{vS}, 0, v{vS}")
    bf16r(vS, vS)
    A(f"v_add_f32 v{vS}, 0x3727c5ac, v{vS}")
    bf16r(vS, vS)
    vSQ = vX + 3; vR = vX + 4; vE = vX + 5
    A(f"v_sqrt_f32 v{vSQ}, v{vS}")
    bf16r(vMEAN, vMEAN)
    A(f"v_rcp_f32 v{vR}, v{vSQ}")
    A(f"v_fma_f32 v{vE}, -v{vSQ}, v{vSQ}, v{vS}")
    A(f"v_mul_f32 v{vE}, 0.5, v{vE}")
    A(f"v_fma_f32 v{vSQ}, v{vE}, v{vR}, v{vSQ}")
    bf16r(vSQ, vSQ)
    A(f"v_rcp_f32 v{vR}, v{vSQ}")
    for k in range(8): A(f"v_sub_f32 v{vY+k}, v{vY+k}, v{vMEAN}")
    for k in range(8): bf16r(vY + k, vY + k)
    for k in range(8): A(f"v_mul_f32 v{vZ+k}, v{vY+k}, v{vR}")
    vZ2 = vX + 8
    for k in range(8): A(f"v_fma_f32 v{vZ2+k}, -v{vZ+k}, v{vSQ}, v{vY+k}")
    for k in range(8): A(f"v_fma_f32 v{vZ+k}, v{vZ2+k}, v{vR}, v{vZ+k}")
    for g in range(4):
        A(f"v_cvt_pk_bf16_f32 v{vY+2*g}, v{vZ+g}, v{vZ+g}"); A(f"v_cvt_pk_bf16_f32 v{vY+2*g+1}, v{vZ+g+4}, v{vZ+g+4}")
    for g in range(4): A(f"ds_write_b64 v{vXW}, v[{vY+2*g}:{vY+2*g+1}] offset:{XDUP + g*XSTR}")
    lds_signal(C_XDUP)
    A(f"s_lshl_b32 s{sT0}, s{sSUB}, 7"); A(f"s_lshl_b32 s{sT1}, s{sW}, 5"); A(f"s_add_u32 s{sT0}, s{sT0}, s{sT1}")
    A(f"v_add_u32 v{vU+24}, s{sT0}, v{vXA}")
    zero4(vD)
    lds_wait(C_XDUP, 4)
    stamp(1)
    A(f"ds_read_b128 {r4(vX)}, v{vU+24} offset:{XDUP}")
    A(f"ds_read_b128 {r4(vX+4)}, v{vU+24} offset:{XDUP+16}")
    A(f"s_lshl_b32 s{sT0}, s{sW}, 10")
    A(f"v_add_u32 v{vU+25}, s{sT0}, v{vL16}")
    vms.wait(("wq", 7))
    A("s_waitcnt lgkmcnt(0)")
    for n in range(8): mfma_row(vA0 if n % 2 == 0 else vA1, vX + n, slot(WQS + n), vD)
    A(f"ds_write_b128 v{vU+25}, {r4(vD)} offset:{QD}")
    lds_signal(C_QD)
    vm = vms
    st = {"direct": True}
    for n in range(WE, KPRE):
        A(f"s_waitcnt vmcnt({WE-1})")
        kv_issue(n, SRD_C, ("k", n), st, 16)
    vm.q = [("k", n) for n in range(KPRE)]
    lds_wait(C_QRDY, 1)
    A(f"v_lshlrev_b32 v{vTMP}, 4, v{vC}")
    A(f"ds_read_b128 {r4(vQ)}, v{vTMP} offset:{QPK}")
    vMX = vU + 25; vSA = vU + 26; vSC = vU + 27; vS1 = vU + 28; vLs = vU + 29; vE1 = vU + 30; vE2 = vU + 31
    A(f"v_mov_b32 v{vMX}, 0xff800000"); A(f"v_mov_b32 v{vLs}, 0")
    A(f"s_lshl_b32 s{sT0}, s{sW}, 12")
    A(f"v_lshlrev_b32 v{vSA}, 2, v{vLANE}")
    A(f"v_add_u32 v{vSA}, s{sT0}, v{vSA}")
    A("s_waitcnt lgkmcnt(0)")
    if dbg:
        A(f"s_lshl_b32 s{sT0}, s2, 14"); A(f"s_lshl_b32 s{sT1}, s{sW}, 10"); A(f"s_add_u32 s{sT0}, s{sT0}, s{sT1}"); A(f"s_add_u32 s{sT0}, s{sT0}, {WS_DBG}")
        A(f"buffer_store_dwordx4 {r4(vQ)}, v{vL16}, {WSR}, s{sT0} offen"); A("s_waitcnt vmcnt(0)")
    stamp(2)
    def kpost(T):
        o = []
        for j in range(8): o.append(f"v_add_f32_dpp v{T+j}, v{T+j}, v{T+j} row_ror:8 row_mask:0xf bank_mask:0x3")
        for j in range(8): o.append(f"v_add_f32_dpp v{T+j}, v{T+j+8}, v{T+j+8} row_ror:8 row_mask:0xf bank_mask:0xc")
        for j in range(4): o.append(f"v_add_f32_dpp v{T+j}, v{T+j}, v{T+j} row_shl:4 row_mask:0xf bank_mask:0x5")
        for j in range(4): o.append(f"v_add_f32_dpp v{T+j}, v{T+j+4}, v{T+j+4} row_shr:4 row_mask:0xf bank_mask:0xa")
        for j in range(4): o.append(f"v_add_f32_dpp v{T+8+j}, v{T+j}, v{T+j} quad_perm:[2,3,0,1] row_mask:0xf bank_mask:0xf")
        o.append(f"v_cndmask_b32 v{T}, v{T+8}, v{T+10}, s[{sBIT1}:{sBIT1+1}]")
        o.append(f"v_cndmask_b32 v{T+1}, v{T+9}, v{T+11}, s[{sBIT1}:{sBIT1+1}]")
        o.append(f"v_add_f32_dpp v{T+8}, v{T}, v{T} quad_perm:[1,0,3,2] row_mask:0xf bank_mask:0xf")
        o.append(f"v_add_f32_dpp v{T+9}, v{T+1}, v{T+1} quad_perm:[1,0,3,2] row_mask:0xf bank_mask:0xf")
        o.append(f"v_cndmask_b32 v{vSC}, v{T+8}, v{T+9}, s[{sBIT0}:{sBIT0+1}]")
        o += [f"v_cvt_pk_bf16_f32 v{vSC}, v{vSC}, v{vSC}", f"v_and_b32 v{vSC}, 0xffff0000, v{vSC}",
              f"v_mul_f32 v{vSC}, {hex(SCALE)}, v{vSC}",
              f"v_cvt_pk_bf16_f32 v{vSC}, v{vSC}, v{vSC}", f"v_and_b32 v{vSC}, 0xffff0000, v{vSC}",
              f"ds_write_b32 v{vSA}, v{vSC} offset:{SCO}",
              f"v_max_f32 v{vS1}, v{vMX}, v{vSC}",
              f"v_sub_f32 v{vE1}, v{vMX}, v{vS1}", f"v_sub_f32 v{vE2}, v{vSC}, v{vS1}",
              f"v_mul_f32 v{vE1}, {hex(LOG2E)}, v{vE1}", f"v_mul_f32 v{vE2}, {hex(LOG2E)}, v{vE2}",
              f"v_exp_f32 v{vE1}, v{vE1}", f"v_exp_f32 v{vE2}, v{vE2}",
              f"v_mov_b32 v{vMX}, v{vS1}", f"v_add_u32 v{vSA}, 256, v{vSA}",
              f"v_fma_f32 v{vLs}, v{vLs}, v{vE1}, v{vE2}"]
        return o
    def kblock(base, T, post, issue, slot0=0):
        n = len(post); per = (n + 15) // 16
        for j in range(16):
            vm.wait(("k", base + j))
            issue(base + j)
            b = slot(slot0 + j)
            A(f"v_dot2_f32_bf16 v{T+j}, v{b}, v{vQ}, 0")
            for k in range(1, 4): A(f"v_dot2_f32_bf16 v{T+j}, v{b+k}, v{vQ+k}, v{T+j}")
            for ins in post[j*per:(j+1)*per]: A(ins)
    def retag(name, shift):
        vm.q = [((name, t[1] + shift) if (isinstance(t, tuple) and t[0] == name) else t) for t in vm.q]
    T0, T1 = vT, vX
    def steady(srdb, nm, ring):
        assert DP[3] == 0
        def f(n):
            tgt = n + W - DP[n % 4]; prev = n - 1 + W - DP[(n - 1) % 4]
            for m in range(prev + 1, tgt + 1): kv_issue(m, srdb, (nm, m), st, ring)
        return f
    st = {}
    def iss_first(n, ring, pre, srdb, nm):
        if pre < ring or W > ring - 1:
            if n + W >= pre: kv_issue(n + W, srdb, (nm, n + W), st, ring)
        else:
            if 1 <= n <= W: kv_issue(ring + n - 1, srdb, (nm, ring + n - 1), st, ring)
    st = {"direct": True}
    def iss_k01(n):
        if 1 <= n <= W: kv_issue(KPRE + n - 1, SRD_C, ("k", KPRE + n - 1), st, 16)
        elif n >= KPRE and n + W >= KPRE + W: kv_issue(n + W, SRD_C, ("k", n + W), st, 16)
    assert W < KPRE or KPRE == W or True
    if KPRE <= W + 1:
        def iss_k01(n):
            if n + W >= KPRE: kv_issue(n + W, SRD_C, ("k", n + W), st, 16)
    kblock(0, T0, [], iss_k01)
    stamp(11)
    kblock(16, T1, kpost(T0), iss_k01, slot0=16)
    stamp(12)
    retag("k", -32)
    A(f"s_add_u32 s{sRUN}, s{sRUN}, 131072")
    lds_signal(C_PROG)
    A(f"s_mov_b32 s{sCNT}, 6")
    A("L_kloop:")
    q_in = list(vm.q); st = {}
    kblock(0, T0, kpost(T1), steady(SRD_C, "k", 16))
    kblock(16, T1, kpost(T0), steady(SRD_C, "k", 16))
    retag("k", -32)
    assert vm.q == q_in, (vm.q, q_in)
    lds_signal(C_PROG)
    stamp_loop(17, sCNT, 6)
    A(f"s_add_u32 s{sRUN}, s{sRUN}, 131072")
    A(f"s_sub_u32 s{sCNT}, s{sCNT}, 1"); A(f"s_cmp_lg_u32 s{sCNT}, 0"); A("s_cbranch_scc1 L_kloop")
    st = {}
    kblock(0, T0, kpost(T1), lambda n: kv_issue(n + W, SRD_C, ("k", n + W), st, 16))
    retag("k", -16)
    A(f"s_add_u32 s{sRUN}, s{sRUN}, 65536")
    st = {}
    sRUNV = sT2
    A(f"s_lshl_b32 s{sT0}, s{sW}, 12"); A(f"s_add_u32 s{sRUNV}, s{sROT}, s{sT0}")
    VOFF = 16 if R == 32 else 0
    def issl(j):
        if j + W < 16: kv_issue(j + W, SRD_C, ("k", j + W), st, 16)
        else:
            if st.get("epoch", 0) == 0:
                st["epoch"] = 1; st["slot0"] = VOFF; A(f"s_mov_b32 s{sRUN}, s{sRUNV}")
            kv_issue(j + W - 16, SRD_D, ("v", j + W - 16), st, R)
    kblock(0, T1, kpost(T0), issl)
    for ins in kpost(T1): A(ins)
    stamp(3)
    A(f"v_mov_b32 v{vS1}, v{vMX}")
    allreduce("v_max_f32", vS1, vE1)
    exp_diff(vE1, vMX, vS1)
    A(f"v_mul_f32 v{vLs}, v{vLs}, v{vE1}")
    allreduce("v_add_f32", vLs, vE1)
    vPAIR = vX
    A(f"v_mov_b32 v{vPAIR}, v{vS1}"); A(f"v_mov_b32 v{vPAIR+1}, v{vLs}")
    A(f"s_lshl_b32 s{sT0}, s{sW}, 3"); A(f"v_mov_b32 v{vE1}, s{sT0}")
    A("s_mov_b64 exec, 1")
    A(f"ds_write_b64 v{vE1}, v[{vPAIR}:{vPAIR+1}] offset:{MLW}")
    A("s_mov_b64 exec, -1")
    lds_signal(C_MLW)
    st = {"epoch": 1, "slot0": VOFF}
    for n in range(W, R):
        A(f"s_waitcnt vmcnt({W-1})")
        kv_issue(n, SRD_D, ("v", n), st, R)
    A(f"v_subrev_u32 v{vSA}, 4096, v{vSA}")
    vL = None; vP = vU + 31; vSN = vU + 32; vP2 = vU + 33; vMG = vX + 2; vIL = vX + 3
    A(f"ds_read_b32 v{vSN}, v{vSA} offset:{SCO}")
    zero4(vD)
    lds_wait(C_MLRDY, 1)
    A(f"v_mov_b32 v{vE1}, 0")
    A(f"ds_read_b64 v[{vMG}:{vMG+1}], v{vE1} offset:{MLF}")
    stamp(10)
    def vblock(base, issue, last=False):
        A("s_waitcnt lgkmcnt(0)")
        exp_diff(vP, vSN, vMG)
        if not last:
            A(f"v_add_u32 v{vSA}, 256, v{vSA}")
            A(f"ds_read_b32 v{vSN}, v{vSA} offset:{SCO}")
        A(f"v_mul_f32 v{vP}, v{vP}, v{vIL}")
        A(f"v_cvt_pk_bf16_f32 v{vP2}, v{vP}, v{vP}")
        for j in range(16):
            vm.wait(("v", base + j))
            issue(base + j)
            mfma_row(vA0 if j % 2 == 0 else vA1, vP2, slot((base + j + VOFF) % R), vD, dpp=j)
    NB = R // 16
    vm.q = [("v", n) for n in range(R)]
    st = {"epoch": 1, "slot0": VOFF}
    for bb in range(NB):
        vblock(16 * bb, lambda n: iss_first(n, R, R, SRD_D, "v"))
    stamp(13)
    retag("v", -R)
    A(f"s_add_u32 s{sRUN}, s{sRUN}, {65536*NB}")
    A(f"s_mov_b32 s{sCNT}, {16//NB - 2}")
    A("L_vloop:")
    q_in = list(vm.q); st = {"epoch": 1, "slot0": VOFF}
    for bb in range(NB):
        vblock(16 * bb, steady(SRD_D, "v", R))
    retag("v", -R)
    assert vm.q == q_in, (vm.q, q_in)
    stamp_loop(32, sCNT, 14)
    A(f"s_add_u32 s{sRUN}, s{sRUN}, {65536*NB}")
    A(f"s_sub_u32 s{sCNT}, s{sCNT}, 1"); A(f"s_cmp_lg_u32 s{sCNT}, 0"); A("s_cbranch_scc1 L_vloop")
    st = {"epoch": 1, "slot0": VOFF}
    for bb in range(NB):
        vblock(16 * bb, lambda n: kv_issue(n + W, SRD_D, ("v", n + W), st, R) if n + W < R else None, last=(bb == NB - 1))
    A(f"v_lshlrev_b32 v{vTMP}, 5, v{vC}")
    A(f"v_lshl_add_u32 v{vTMP}, v{vG}, 4, v{vTMP}")
    A(f"s_lshl_b32 s{sT0}, s{sBOXH}, 11"); A(f"s_lshl_b32 s{sT1}, s{sW}, 9"); A(f"s_add_u32 s{sT0}, s{sT0}, s{sT1}"); A(f"s_add_u32 s{sT0}, s{sT0}, {WS_X2}")
    A("s_mov_b32 exec_hi, 0")
    A(f"buffer_store_dwordx4 {r4(vD)}, v{vTMP}, {WSR}, s{sT0} offen sc1")
    A("s_mov_b64 exec, -1")
    stamp(4)
    A("s_barrier")
    if stamps:
        A(f"s_cmp_lg_u32 s{sW}, 0"); A("s_cbranch_scc1 L_end")
        stamp_store(0)
    A("s_endpgm")

    A("L_helper_issue:")
    vmh = VM(A)
    srd(SRD_WS, sWS, 0x1000000)
    srd(SRD_Q, sV if hmode == "contig" else sX, 0x4000000 if hmode == "contig" else 0)
    A(f"v_mul_u32_u24 v{vF1}, 7168, v{vG}")
    A(f"v_lshl_add_u32 v{vF1}, v{vC}, 4, v{vF1}")
    A(f"v_mov_b32 v{vWD2}, 0x40000000")
    A(f"v_cmp_gt_u32 vcc, 14, v{vC}")
    A(f"v_cndmask_b32 v{vF1}, v{vWD2}, v{vF1}, vcc")
    A(f"s_and_b32 s{sT0}, s{sHW}, 1"); A(f"s_cmp_eq_u32 s{sT0}, 0")
    A(f"s_cselect_b32 s{sT2}, s{sWG}, s{sWU}"); A(f"s_cselect_b32 s{sT3}, s{sWG+1}, s{sWU+1}")
    A(f"s_mul_i32 s{sT0}, s{sH}, 224")
    A(f"s_add_u32 s{SRD_B}, s{sT2}, s{sT0}"); A(f"s_addc_u32 s{SRD_B+1}, s{sT3}, 0")
    A(f"s_mov_b32 s{SRD_B+2}, {1024*7168 - 31*224}"); A(f"s_mov_b32 s{SRD_B+3}, 0x20000")
    A(f"s_lshl_b32 s{sT0}, s{sSUB}, 7"); A(f"s_lshr_b32 s{sT1}, s{sHW}, 1"); A(f"s_lshl_b32 s{sT1}, s{sT1}, 6")
    A(f"s_add_u32 s{sT0}, s{sT0}, s{sT1}"); A(f"s_mul_i32 s{sRUN}, s{sT0}, 7168")
    A(f"v_lshlrev_b32 v{vWD}, 11, v{vG}")
    A(f"v_lshl_add_u32 v{vWD}, v{vC}, 4, v{vWD}")
    A(f"s_cmp_lg_u32 s{sHW}, 3"); A("s_cbranch_scc0 L_wd_oob")
    A(f"v_mov_b32 v{vWD2}, v{vWD}")
    A("L_wd_oob:")
    A(f"s_mul_i32 s{sT0}, s{sH}, {112*2048}"); A(f"s_lshl_b32 s{sT1}, s{sSUB}, 8"); A(f"s_add_u32 s{sT0}, s{sT0}, s{sT1}")
    srd(SRD_C, sWD, 111 * 2048 + 256, add=sT0)
    A(f"s_lshl_b32 s{sT0}, s{sH}, 18"); A(f"s_add_u32 s{sT0}, s{sT0}, s{sT1}")
    srd(SRD_D, sWO, 127 * 2048 + 256, add=sT0)
    sHB = sCNT
    A(f"s_lshl_b32 s{sHB}, s{sHW}, 16")
    def h_issue(n):
        if n >= 32: return
        if hmode == "contig":
            A(f"s_lshl_b32 s{sOFF}, s2, 17"); A(f"s_lshl_b32 s{sT5}, s{sHW}, 10"); A(f"s_add_u32 s{sOFF}, s{sOFF}, s{sT5}"); A(f"s_add_u32 s{sOFF}, s{sOFF}, {n*4096}")
            A(f"buffer_load_dwordx4 {r4(slot(n))}, v{vL16}, s[{SRD_Q}:{SRD_Q+3}], s{sOFF} offen {wflag}")
        elif hmode == "none":
            A(f"s_mov_b32 s{sOFF}, 0")
            A(f"buffer_load_dwordx4 {r4(slot(n))}, v{vL16}, s[{SRD_A}:{SRD_A+3}], s{sOFF} offen")
        elif n < 16:
            A(f"s_add_u32 s{sOFF}, s{sRUN}, {n*28672}")
            A(f"buffer_load_dwordx4 {r4(slot(n))}, v{vF1}, s[{SRD_B}:{SRD_B+3}], s{sOFF} offen {wflag}")
        elif n < 24:
            A(f"s_add_u32 s{sOFF}, s{sHB}, {(n-16)*8192}")
            A(f"buffer_load_dwordx4 {r4(slot(n))}, v{vWD if n < 20 else vWD2}, s[{SRD_C}:{SRD_C+3}], s{sOFF} offen {wflag}")
        else:
            A(f"s_add_u32 s{sOFF}, s{sHB}, {(n-24)*8192}")
            A(f"buffer_load_dwordx4 {r4(slot(n))}, v{vWD}, s[{SRD_D}:{SRD_D+3}], s{sOFF} offen {wflag}")
        vmh.issue(("h", n))
    A("s_waitcnt lgkmcnt(0)")
    A("s_barrier")
    A(f"s_add_u32 s{sTAG}, s{sTAG}, 1")
    A(f"s_cmp_lg_u32 s{sHW}, 0"); A("s_cbranch_scc1 L_noclear")
    for k in range(4): A(f"v_mov_b32 v{vD2+k}, -1")
    A(f"s_add_u32 s{sT1}, s{sBOXC}, {WS_X3}")
    A(f"buffer_store_dwordx4 {r4(vD2)}, v{vL16}, {WSR}, s{sT1} offen sc1")
    A(f"s_lshl_b32 s{sT0}, s{sBOXH}, 11"); A(f"s_add_u32 s{sT1}, s{sT0}, {WS_X2}")
    A(f"buffer_store_dwordx4 {r4(vD2)}, v{vL16}, {WSR}, s{sT1} offen sc1")
    A(f"buffer_store_dwordx4 {r4(vD2)}, v{vL16}, {WSR}, s{sT1} offen offset:1024 sc1")
    A(f"s_lshl_b32 s{sT1}, s{sBOXH}, 7"); A(f"s_add_u32 s{sT1}, s{sT1}, {WS_XM}")
    A("s_mov_b64 exec, 0xff")
    A(f"buffer_store_dwordx4 {r4(vD2)}, v{vL16}, {WSR}, s{sT1} offen sc1")
    A("s_mov_b64 exec, -1")
    A("L_noclear:")
    for n in range(WH): h_issue(n)
    masks()
    A(f"s_cmp_lg_u32 s{sHW}, 0"); A("s_cbranch_scc1 L_hstart")
    if prio: A(f"s_setprio {prio}")
    lds_wait(C_QD, 4)
    for w in range(4): A(f"ds_read_b128 {r4(vT+4*w)}, v{vL16} offset:{QD + w*1024}")
    A("s_waitcnt lgkmcnt(0)")
    for r in range(4):
        A(f"v_add_f32 v{vD+r}, v{vT+r}, v{vT+4+r}"); A(f"v_add_f32 v{vD2+r}, v{vT+8+r}, v{vT+12+r}")
    for r in range(4): A(f"v_add_f32 v{vD+r}, v{vD+r}, v{vD2+r}")
    A("s_waitcnt vmcnt(0)")
    A(f"v_add3_u32 v{vD2}, v{vD}, v{vD+1}, v{vD+2}"); A(f"v_add_u32 v{vD2}, v{vD2}, v{vD+3}")
    A(f"v_sub_u32 v{vD2}, s{sTAG}, v{vD2}")
    A(f"s_lshl_b32 s{sT0}, s{sBOXH}, 11")
    A(f"v_lshlrev_b32 v{vD2+1}, 2, v{vLANE}")
    A(f"buffer_store_dwordx4 {r4(vD)}, v{vL16}, {WSR}, s{sT0} offen sc1")
    A(f"buffer_store_dword v{vD2}, v{vD2+1}, {WSR}, s{sT0} offen offset:1024 sc1")
    stamp(16)
    A(f"v_lshrrev_b32 v{vU+25}, 5, v{vLANE}"); A(f"v_lshlrev_b32 v{vU+25}, 11, v{vU+25}")
    A(f"v_and_b32 v{vU+26}, 31, v{vLANE}")
    A(f"v_lshl_add_u32 v{vU+36}, v{vU+26}, 2, v{vU+25}")
    A(f"v_lshl_add_u32 v{vU+25}, v{vU+26}, 4, v{vU+25}")
    sQB = sT3; sQC = sT2
    A(f"s_lshl_b32 s{sQB}, s{sH}, 14"); A(f"s_lshl_b32 s{sT1}, s{sB}, 7"); A(f"s_add_u32 s{sQC}, s{sQB}, s{sT1}"); A(f"s_add_u32 s{sQC}, s{sQC}, 1024")
    A(f"s_lshl_b32 s{sT1}, s{sB}, 9"); A(f"s_add_u32 s{sQB}, s{sQB}, s{sT1}")
    QG = vT
    A(f"s_mov_b32 s{sSPIN}, {SPIN_LIMIT}")
    if qpoll == "light":
        A(f"v_and_b32 v{vU+26}, 7, v{vLANE}"); A(f"v_lshlrev_b32 v{vU+26}, 11, v{vU+26}")
        A(f"s_lshl_b32 s{sT1}, s{sH}, 14"); A(f"s_add_u32 s{sT1}, s{sT1}, 1008")
        A("L_qlight:")
        A(f"buffer_load_dwordx4 {r4(QG)}, v{vU+26}, {WSR}, s{sT1} offen sc1")
        A(f"buffer_load_dword v{QG+4}, v{vU+26}, {WSR}, s{sT1} offen offset:268 sc1")
        A("s_waitcnt vmcnt(0)")
        A(f"v_add3_u32 v{QG+5}, v{QG}, v{QG+1}, v{QG+2}"); A(f"v_add3_u32 v{QG+5}, v{QG+5}, v{QG+3}, v{QG+4}")
        A(f"v_cmp_ne_u32 vcc, s{sTAG}, v{QG+5}"); A("s_cmp_eq_u64 vcc, 0")
        A("s_cbranch_scc1 L_qfull")
        A(f"s_sub_u32 s{sSPIN}, s{sSPIN}, 1"); A(f"s_cmp_lg_u32 s{sSPIN}, 0"); A("s_cbranch_scc1 L_qlight")
        A("L_qfull:")
    A(f"s_lshl_b32 s{sT5}, s{sTAG}, 2")
    def xq_issue():
        A(f"s_mov_b32 s{sT0}, s{sQB}"); A(f"s_mov_b32 s{sT1}, s{sQC}")
        for k in range(4):
            A(f"buffer_load_dwordx4 {r4(QG+4*k)}, v{vU+25}, {WSR}, s{sT0} offen sc1")
            A(f"buffer_load_dword v{QG+16+k}, v{vU+36}, {WSR}, s{sT1} offen sc1")
            if k < 3: A(f"s_add_u32 s{sT0}, s{sT0}, 4096"); A(f"s_add_u32 s{sT1}, s{sT1}, 4096")
    poll_sum("L_qpoll", xq_issue, list(range(QG, QG + 20)), vU + 32, sT5)
    stamp(17)
    vQS = vU + 32
    for r in range(4):
        A(f"v_add_f32 v{vQS+4+r}, v{QG+r}, v{QG+4+r}"); A(f"v_add_f32 v{vQS+8+r}, v{QG+8+r}, v{QG+12+r}")
    for r in range(4): A(f"v_add_f32 v{vQS+r}, v{vQS+4+r}, v{vQS+8+r}")
    for r in range(4): A(f"v_mov_b32 v{vQS+4+r}, v{vQS+r}")
    for r in range(4): A(f"v_permlane32_swap_b32 v{vQS+r}, v{vQS+4+r}")
    for r in range(4): A(f"v_add_f32 v{vQS+r}, v{vQS+r}, v{vQS+4+r}")
    A(f"v_cvt_pk_bf16_f32 v{vQS+4}, v{vQS}, v{vQS+1}"); A(f"v_cvt_pk_bf16_f32 v{vQS+5}, v{vQS+2}, v{vQS+3}")
    A(f"v_and_b32 v{vU+25}, 1, v{vG}"); A(f"v_lshlrev_b32 v{vU+25}, 3, v{vU+25}"); A(f"v_lshl_add_u32 v{vU+25}, v{vC}, 4, v{vU+25}")
    A("s_mov_b32 exec_hi, 0")
    A(f"ds_write_b64 v{vU+25}, v[{vQS+4}:{vQS+5}] offset:{QPK}")
    A("s_mov_b64 exec, -1")
    lds_signal(C_QRDY)
    if prio: A("s_setprio 0")
    A("L_hstart:")
    vm = vmh
    vm.q = [("h", n) for n in range(WH)]
    for n in range(32 - WH):
        vm.wait(("h", n))
        h_issue(n + WH)
        if n in (0, 7, 15, 23): stamp({0: 13, 7: 14, 15: 15, 23: 18}[n])
    zero4(vD)
    A(f"s_lshl_b32 s{sT0}, s{sSUB}, 7"); A(f"s_lshr_b32 s{sT1}, s{sHW}, 1"); A(f"s_lshl_b32 s{sT1}, s{sT1}, 6"); A(f"s_add_u32 s{sT0}, s{sT0}, s{sT1}")
    A(f"v_add_u32 v{vU+25}, s{sT0}, v{vXA}")
    lds_wait(C_XDUP, 4)
    for q4 in range(4): A(f"ds_read_b128 {r4(vX+4*q4)}, v{vU+25} offset:{XDUP + q4*16}")
    vm.wait(("h", 15))
    A("s_waitcnt lgkmcnt(0)")
    for n in range(16): mfma_row(vA0 if n % 2 == 0 else vA1, vX + n, slot(n), vD)
    vRA = vU + 24
    A(f"s_and_b32 s{sT0}, s{sHW}, 1"); A(f"s_lshl_b32 s{sT0}, s{sT0}, 10")
    A(f"v_add_u32 v{vRA}, s{sT0}, v{vL16}")
    A(f"s_cmp_lt_u32 s{sHW}, 2"); A("s_cbranch_scc1 L_f1_keep")
    A(f"ds_write_b128 v{vRA}, {r4(vD)} offset:{RED}")
    lds_signal(C_H1)
    A("L_f1_keep:")
    stamp(2)
    A(f"s_cmp_lt_u32 s{sHW}, 2"); A("s_cbranch_scc0 L_f1_done")
    lds_wait(C_H1, 2)
    A(f"ds_read_b128 {r4(vD2)}, v{vRA} offset:{RED}")
    A("s_waitcnt lgkmcnt(0)")
    for r in range(4): A(f"v_add_f32 v{vD+r}, v{vD+r}, v{vD2+r}")
    A(f"v_cmp_gt_u32 vcc, 14, v{vC}")
    for r in range(4): A(f"v_cndmask_b32 v{vD+r}, 0, v{vD+r}, vcc")
    int_sum(range(vD, vD + 4), vD2)
    for k in (8, 4, 2, 1): A(f"v_add_u32_dpp v{vD2}, v{vD2}, v{vD2} row_ror:{k} row_mask:0xf bank_mask:0xf")
    A(f"v_sub_u32 v{vD2}, s{sTAG}, v{vD2}")
    A(f"v_cmp_eq_u32 vcc, 15, v{vC}")
    A(f"v_cndmask_b32 v{vD}, v{vD}, v{vD2}, vcc")
    A(f"s_lshl_b32 s{sT0}, s{sBOXH}, 11"); A(f"s_add_u32 s{sT0}, s{sT0}, {WS_X1}")
    A(f"buffer_store_dwordx4 {r4(vD)}, v{vRA}, {WSR}, s{sT0} offen sc1")
    A(f"s_cmp_eq_u32 s{sHW}, 0"); A("s_cbranch_scc0 L_f1_done")
    lds_wait(C_PROG, 4 * PX1, nap=32)
    A(f"s_lshl_b32 s{sT5}, s{sTAG}, 4")
    def x1_issue():
        A(f"s_lshl_b32 s{sT0}, s{sH}, 14"); A(f"s_add_u32 s{sT0}, s{sT0}, {WS_X1}")
        for s_ in range(8):
            A(f"buffer_load_dwordx4 {r4(slot(2*s_))}, v{vL16}, {WSR}, s{sT0} offen sc1")
            A(f"buffer_load_dwordx4 {r4(slot(2*s_+1))}, v{vL16}, {WSR}, s{sT0} offen offset:1024 sc1")
            if s_ < 7: A(f"s_add_u32 s{sT0}, s{sT0}, 2048")
    poll_sum("L_x1poll", x1_issue, range(slot(0), slot(0) + 64), vT, sT5, nap=32, rowreduce=True, masked=False)
    stamp(3)
    for mt in range(2):
        for r in range(4):
            A(f"v_add_f32 v{vT+4*mt+r}, v{slot(mt)+r}, v{slot(2+mt)+r}")
        for s_ in range(2, 8):
            for r in range(4): A(f"v_add_f32 v{vT+4*mt+r}, v{vT+4*mt+r}, v{slot(2*s_+mt)+r}")
    A(f"v_cmp_gt_u32 vcc, 14, v{vC}")
    for r in range(8): A(f"v_cndmask_b32 v{vT+r}, 0, v{vT+r}, vcc")
    A(f"v_lshrrev_b32 v{vU+25}, 1, v{vG}"); A(f"v_mul_u32_u24 v{vU+25}, {4*HSTR}, v{vU+25}")
    A(f"v_and_b32 v{vU+26}, 1, v{vG}"); A(f"v_lshl_add_u32 v{vU+26}, v{vC}, 1, v{vU+26}")
    A(f"v_lshl_add_u32 v{vU+25}, v{vU+26}, 2, v{vU+25}")
    for r in range(4):
        bf16r(vT + r, vT + r); bf16r(vT + 4 + r, vT + 4 + r)
        silu(vT + 8, vT + r, vT + 9, vT + 10)
        A(f"v_mul_f32 v{vT+8}, v{vT+8}, v{vT+4+r}")
        A(f"v_cvt_pk_bf16_f32 v{vT+8}, v{vT+8}, v{vT+8}")
        A(f"ds_write_b32 v{vU+25}, v{vT+8} offset:{HDUP + r*HSTR}")
    lds_signal(C_H2)
    A("L_f1_done:")
    lds_wait(C_H2, 1, nap=32)
    A(f"v_mul_u32_u24 v{vU+25}, {HSTR}, v{vBG}")
    A(f"s_lshl_b32 s{sT0}, s{sHW}, 5")
    A(f"v_add_u32 v{vU+25}, s{sT0}, v{vU+25}")
    A(f"ds_read_b128 {r4(vX)}, v{vU+25} offset:{HDUP}")
    A(f"ds_read_b128 {r4(vX+4)}, v{vU+25} offset:{HDUP+16}")
    zero4(vD)
    A("s_waitcnt vmcnt(0) lgkmcnt(0)")
    for n in range(8): mfma_row(vA0 if n % 2 == 0 else vA1, vX + n, slot(16 + n), vD)
    vRA = vU + 24
    A(f"s_lshl_b32 s{sT0}, s{sHW}, 10")
    A(f"v_add_u32 v{vRA}, s{sT0}, v{vL16}")
    vPL = vU + 27
    A(f"v_lshrrev_b32 v{vPL}, 1, v{vG}"); A(f"v_lshlrev_b32 v{vPL}, 9, v{vPL}")
    A(f"v_and_b32 v{vU+26}, 1, v{vG}"); A(f"v_lshl_add_u32 v{vPL}, v{vU+26}, 4, v{vPL}")
    A(f"v_lshl_add_u32 v{vPL}, v{vC}, 5, v{vPL}")
    A(f"s_lshr_b32 s{sK4}, s{sH}, 3")
    vGA = vU + 28; vOA = vU + 30
    A(f"v_lshlrev_b32 v{vGA}, 10, v{vG}")
    A(f"v_bfe_u32 v{vU+26}, v{vLANE}, 3, 1"); A(f"v_lshl_add_u32 v{vGA}, v{vU+26}, 9, v{vGA}")
    A(f"v_and_b32 v{vU+29}, 7, v{vLANE}"); A(f"v_lshl_add_u32 v{vGA}, v{vU+29}, 4, v{vGA}")
    A(f"v_lshlrev_b32 v{vOA}, 11, v{vU+26}")
    A(f"v_lshl_add_u32 v{vOA}, v{vU+29}, 3, v{vOA}")
    A(f"s_lshl_b32 s{sT0}, s{sSUB}, 8"); A(f"s_lshl_b32 s{sT1}, s{sK4}, 6"); A(f"s_add_u32 s{sT0}, s{sT0}, s{sT1}")
    A(f"v_add_u32 v{vOA}, s{sT0}, v{vOA}")
    A(f"s_and_b32 s{sT0}, s{sH}, 7"); A(f"s_cmp_eq_u32 s{sT0}, s{sSUB}"); A(f"s_cselect_b32 s{sISC}, 1, 0")
    A(f"s_cmp_eq_u32 s{sHW}, 0"); A("s_cbranch_scc1 L_f2_h0")
    A(f"ds_write_b128 v{vRA}, {r4(vD)} offset:{RED}")
    lds_signal(C_H3)
    A("s_branch L_tail")
    A("L_f2_h0:")
    lds_wait(C_H3, 3)
    for w in range(1, 4): A(f"ds_read_b128 {r4(vT+4*w)}, v{vL16} offset:{RED + w*1024}")
    A("s_waitcnt lgkmcnt(0)")
    for r in range(4):
        for w in range(1, 4): A(f"v_add_f32 v{vD+r}, v{vD+r}, v{vT+4*w+r}")
    int_sum(range(vD, vD + 4), vT)
    A(f"v_sub_u32 v{vT}, s{sTAG}, v{vT}")
    A(f"v_lshrrev_b32 v{vT+1}, 2, v{vPL}")
    A(f"s_lshl_b32 s{sT0}, s{sBOXC}, 1"); A(f"s_add_u32 s{sT0}, s{sT0}, {WS_XY}")
    if "xypub" not in skip:
        A(f"buffer_store_dwordx4 {r4(vD)}, v{vPL}, {WSR}, s{sT0} offen sc1")
        A(f"buffer_store_dword v{vT}, v{vT+1}, {WSR}, s{sT0} offen offset:1024 sc1")
    sGB = sT3
    def g_issue(base_const):
        def f(setbase):
            A(f"s_lshl_b32 s{sGB}, s{sSUB}, 15"); A(f"s_lshl_b32 s{sT1}, s{sK4}, 7"); A(f"s_add_u32 s{sGB}, s{sGB}, s{sT1}"); A(f"s_add_u32 s{sGB}, s{sGB}, {base_const}")
            for tt in range(8):
                A(f"buffer_load_dwordx4 {r4(setbase+4*tt)}, v{vGA}, {WSR}, s{sGB} offen sc1")
                if tt < 7: A(f"s_add_u32 s{sGB}, s{sGB}, 4096")
        return f
    def g_process(sb):
        for r in range(4):
            A(f"v_add_f32 v{vT+r}, v{sb+r}, v{sb+4+r}"); A(f"v_add_f32 v{vT+4+r}, v{sb+8+r}, v{sb+12+r}")
            A(f"v_add_f32 v{vT+8+r}, v{sb+16+r}, v{sb+20+r}"); A(f"v_add_f32 v{vT+12+r}, v{sb+24+r}, v{sb+28+r}")
        for r in range(4):
            A(f"v_add_f32 v{vT+r}, v{vT+r}, v{vT+4+r}"); A(f"v_add_f32 v{vT+8+r}, v{vT+8+r}, v{vT+12+r}")
        for r in range(4): A(f"v_add_f32 v{vT+r}, v{vT+r}, v{vT+8+r}")
    def g_finish():
        for r in range(4): A(f"v_mov_b32 v{vT+4+r}, v{vT+r}")
        for r in range(4): A(f"v_permlane16_swap_b32 v{vT+r}, v{vT+4+r}")
        for r in range(4): A(f"v_add_f32 v{vT+r}, v{vT+r}, v{vT+4+r}")
        for r in range(4): A(f"v_mov_b32 v{vT+4+r}, v{vT+r}")
        for r in range(4): A(f"v_permlane32_swap_b32 v{vT+r}, v{vT+4+r}")
        for r in range(4): A(f"v_add_f32 v{vT+r}, v{vT+r}, v{vT+4+r}")
        for r in range(4): bf16r(vT + r, vT + r)
    A("L_xm:")
    stamp(10)
    lds_wait(C_MLW, 4, nap=napml)
    if prio: A(f"s_setprio {prio}")
    vML = vT
    A(f"v_mov_b32 v{vTMP}, 0")
    A(f"ds_read_b128 {r4(vML)}, v{vTMP} offset:{MLW}")
    A(f"ds_read_b128 {r4(vML+4)}, v{vTMP} offset:{MLW+16}")
    A("s_waitcnt lgkmcnt(0)")
    vMM = vT + 8; vLL = vT + 9; vFW = vT + 10
    A(f"v_max_f32 v{vMM}, v{vML}, v{vML+2}")
    A(f"v_max3_f32 v{vMM}, v{vMM}, v{vML+4}, v{vML+6}")
    for w in range(4): exp_diff(vFW + w, vML + 2 * w, vMM)
    A(f"v_mul_f32 v{vLL}, v{vFW}, v{vML+1}")
    for w in range(1, 4): A(f"v_fmac_f32 v{vLL}, v{vFW+w}, v{vML+2*w+1}")
    A(f"s_lshl_b32 s{sT0}, s{sBOXH}, 7"); A(f"s_add_u32 s{sT0}, s{sT0}, {WS_XM}")
    A(f"v_mov_b32 v{vTMP}, 0")
    A("s_mov_b64 exec, 1")
    A(f"buffer_store_dwordx2 v[{vMM}:{vMM+1}], v{vTMP}, {WSR}, s{sT0} offen sc1")
    A("s_mov_b64 exec, -1")
    stamp(11)
    A(f"v_and_b32 v{vU+25}, 3, v{vLANE}"); A(f"v_lshlrev_b32 v{vU+25}, 7, v{vU+25}")
    A(f"s_lshl_b32 s{sT1}, s{sH}, 3"); A(f"s_lshl_b32 s{sT0}, s{sB}, 2"); A(f"s_add_u32 s{sT1}, s{sT1}, s{sT0}"); A(f"s_lshl_b32 s{sT1}, s{sT1}, 7"); A(f"s_add_u32 s{sT1}, s{sT1}, {WS_XM}")
    def xm_issue(sb): A(f"buffer_load_dwordx2 v[{sb}:{sb+1}], v{vU+25}, {WSR}, s{sT1} offen sc1")
    def xm_proc(sb):
        A(f"v_mov_b32 v{vT}, v{sb}"); A(f"v_mov_b32 v{vT+1}, v{sb+1}")
    poll2("L_xmp", xm_issue, 1, slot(0), slot(1), 2, xm_proc, vT + 4)
    A(f"v_max_f32_dpp v{vT+2}, v{vT}, v{vT} quad_perm:[1,0,3,2] row_mask:0xf bank_mask:0xf")
    A(f"v_max_f32_dpp v{vT+2}, v{vT+2}, v{vT+2} quad_perm:[2,3,0,1] row_mask:0xf bank_mask:0xf")
    exp_diff(vT + 3, vT, vT + 2)
    A(f"v_mul_f32 v{vT+3}, v{vT+3}, v{vT+1}")
    A(f"v_add_f32_dpp v{vT+3}, v{vT+3}, v{vT+3} quad_perm:[1,0,3,2] row_mask:0xf bank_mask:0xf")
    A(f"v_add_f32_dpp v{vT+3}, v{vT+3}, v{vT+3} quad_perm:[2,3,0,1] row_mask:0xf bank_mask:0xf")
    A(f"v_rcp_f32 v{vT+5}, v{vT+3}")
    A(f"v_fma_f32 v{vT+6}, -v{vT+3}, v{vT+5}, 1.0")
    A(f"v_fma_f32 v{vT+5}, v{vT+6}, v{vT+5}, v{vT+5}")
    A(f"v_mov_b32 v{vT+4}, v{vT+2}")
    A(f"v_mov_b32 v{vTMP}, 0")
    A("s_mov_b64 exec, 1")
    A(f"ds_write_b64 v{vTMP}, v[{vT+4}:{vT+5}] offset:{MLF}")
    A("s_mov_b64 exec, -1")
    lds_signal(C_MLRDY)
    if prio: A("s_setprio 0")
    stamp(12)
    A("s_waitcnt vmcnt(0)")
    A(f"s_cmp_eq_u32 s{sISC}, 0"); A("s_cbranch_scc1 L_tail")
    A(f"v_lshlrev_b32 v{vU+26}, 10, v{vG}"); A(f"v_add_u32 v{vU+26}, v{vU+26}, v{vGA}")
    A(f"v_lshlrev_b32 v{vU+25}, 11, v{vG}")
    A(f"v_bfe_u32 v{vT}, v{vLANE}, 3, 1"); A(f"v_lshl_add_u32 v{vU+25}, v{vT}, 7, v{vU+25}")
    A(f"v_lshl_add_u32 v{vU+25}, v{vU+29}, 2, v{vU+25}")
    A(f"s_lshl_b32 s{sT5}, s{sTAG}, 3")
    def gy_issue():
        A(f"s_lshl_b32 s{sGB}, s{sSUB}, 16"); A(f"s_add_u32 s{sGB}, s{sGB}, {WS_XY}")
        A(f"s_lshl_b32 s{sT1}, s{sK4}, 5"); A(f"s_add_u32 s{sT2}, s{sGB}, s{sT1}"); A(f"s_add_u32 s{sT2}, s{sT2}, 1024")
        A(f"s_lshl_b32 s{sT1}, s{sK4}, 7"); A(f"s_add_u32 s{sGB}, s{sGB}, s{sT1}")
        for tt in range(8):
            A(f"buffer_load_dwordx4 {r4(slot(tt))}, v{vU+26}, {WSR}, s{sGB} offen sc1")
            A(f"buffer_load_dword v{slot(8)+tt}, v{vU+25}, {WSR}, s{sT2} offen sc1")
            if tt < 7: A(f"s_add_u32 s{sGB}, s{sGB}, 8192"); A(f"s_add_u32 s{sT2}, s{sT2}, 8192")
    if "xyget" not in skip: poll_sum("L_gy", gy_issue, range(slot(0), slot(0) + 40), vT, sT5, nap=32)
    g_process(slot(0)); g_finish()
    vGG = vU + 32; vXO = vU + 36
    for r in range(4): silu(vGG + r, vT + r, vT + 9, vT + 10)
    A(f"buffer_load_dwordx2 v[{vU+40}:{vU+41}], v{vOA}, s[{SRD_A}:{SRD_A+3}], 0 offen")
    A("s_waitcnt vmcnt(0)")
    A(f"v_lshlrev_b32 v{vXO}, 16, v{vU+40}"); A(f"v_and_b32 v{vXO+1}, 0xffff0000, v{vU+40}")
    A(f"v_lshlrev_b32 v{vXO+2}, 16, v{vU+41}"); A(f"v_and_b32 v{vXO+3}, 0xffff0000, v{vU+41}")

    A("L_tail:")
    vX2A = vU + 44
    A(f"v_bfe_u32 v{vU+26}, v{vLANE}, 2, 2")
    A(f"v_lshrrev_b32 v{vX2A}, 5, v{vLANE}")
    A(f"v_lshl_add_u32 v{vX2A}, v{vX2A}, 2, v{vU+26}")
    A(f"v_lshlrev_b32 v{vX2A}, 11, v{vX2A}")
    A(f"v_bfe_u32 v{vU+26}, v{vLANE}, 4, 1"); A(f"v_and_b32 v{vU+46}, 3, v{vLANE}")
    A(f"v_lshl_add_u32 v{vU+46}, v{vU+26}, 2, v{vU+46}")
    A(f"v_lshl_add_u32 v{vX2A}, v{vU+46}, 4, v{vX2A}")
    A(f"s_lshl_b32 s{sT0}, s{sHW}, 7")
    A(f"v_add_u32 v{vX2A}, s{sT0}, v{vX2A}")
    vOW = vU + 47; vOR = vU + 48
    A(f"v_lshrrev_b32 v{vOW}, 5, v{vLANE}"); A(f"v_mul_u32_u24 v{vOW}, {4*OSTR}, v{vOW}")
    A(f"v_lshl_add_u32 v{vOW}, v{vU+46}, 2, v{vOW}")
    A(f"s_mul_i32 s{sT0}, s{sHW}, 384")
    A(f"v_add_u32 v{vOW}, s{sT0}, v{vOW}")
    A(f"v_mul_u32_u24 v{vOR}, {OSTR}, v{vBG}"); A(f"v_add_u32 v{vOR}, s{sT0}, v{vOR}")
    sX2 = sT3
    A(f"s_lshl_b32 s{sX2}, s{sH}, 14"); A(f"s_add_u32 s{sX2}, s{sX2}, {WS_X2}")
    zero4(vD)
    A("s_waitcnt vmcnt(0) lgkmcnt(0)")
    A("s_barrier")
    stamp(5)
    def x2_issue(sb):
        for w in range(4):
            A(f"buffer_load_dwordx4 {r4(sb+4*w)}, v{vX2A}, {WSR}, s{sX2} offen offset:{w*512} sc1")
    def x2_proc(sb):
        for r in range(4):
            A(f"v_add_f32 v{vT+r}, v{sb+r}, v{sb+4+r}"); A(f"v_add_f32 v{vT+4+r}, v{sb+8+r}, v{sb+12+r}")
        for r in range(4): A(f"v_add_f32 v{vT+r}, v{vT+r}, v{vT+4+r}")
    poll_masked("L_x2", lambda: x2_issue(slot(0)), range(slot(0), slot(0) + 16), vT + 8, nap=napx2)
    x2_proc(slot(0))
    stamp(6)
    for k in (4, 8):
        for r in range(4):
            A(f"v_add_f32_dpp v{vT+r}, v{vT+r}, v{vT+r} row_ror:{k} row_mask:0xf bank_mask:0xf")
    for r in range(4):
        A(f"v_cvt_pk_bf16_f32 v{vT+r}, v{vT+r}, v{vT+r}")
    for r in range(4):
        A(f"ds_write_b32 v{vOW}, v{vT+r} offset:{ODUP + r*OSTR}")
    A(f"ds_read_b128 {r4(vX)}, v{vOR} offset:{ODUP}")
    A(f"ds_read_b128 {r4(vX+4)}, v{vOR} offset:{ODUP+16}")
    A("s_waitcnt lgkmcnt(0)")
    for n in range(8): mfma_row(vA0 if n % 2 == 0 else vA1, vX + n, slot(24 + n), vD)
    A(f"s_cmp_eq_u32 s{sHW}, 0"); A("s_cbranch_scc1 L_x3_h0")
    A(f"ds_write_b128 v{vRA}, {r4(vD)} offset:{RED}")
    A("s_waitcnt lgkmcnt(0)")
    A("s_barrier")
    A("s_endpgm")
    A("L_x3_h0:")
    A("s_nop 1")
    A("s_barrier")
    for w in range(1, 4): A(f"ds_read_b128 {r4(vT+4*w)}, v{vL16} offset:{RED + w*1024}")
    A("s_waitcnt lgkmcnt(0)")
    for r in range(4):
        A(f"v_add_f32 v{vD+r}, v{vD+r}, v{vT+4+r}"); A(f"v_add_f32 v{vT+8+r}, v{vT+8+r}, v{vT+12+r}")
    for r in range(4): A(f"v_add_f32 v{vD+r}, v{vD+r}, v{vT+8+r}")
    A(f"s_add_u32 s{sT0}, s{sBOXC}, {WS_X3}")
    A(f"buffer_store_dwordx4 {r4(vD)}, v{vPL}, {WSR}, s{sT0} offen sc1")
    stamp(7)
    A(f"s_cmp_eq_u32 s{sISC}, 0"); A("s_cbranch_scc1 L_fin")
    poll_masked("L_g3", lambda: g_issue(WS_X3)(slot(8)), range(slot(8), slot(8) + 32), vT + 4, nap=napx3)
    g_process(slot(8))
    g_finish()
    for r in range(4):
        A(f"v_mul_f32 v{vT+r}, v{vT+r}, v{vGG+r}")
    for r in range(4): bf16r(vT + r, vT + r)
    for r in range(4): A(f"v_add_f32 v{vT+r}, v{vT+r}, v{vXO+r}")
    A(f"v_cvt_pk_bf16_f32 v{vT+4}, v{vT}, v{vT+1}")
    A(f"v_cvt_pk_bf16_f32 v{vT+5}, v{vT+2}, v{vT+3}")
    srd(SRD_B, sOUT, 4096)
    A("s_mov_b64 exec, 0xffff")
    A(f"buffer_store_dwordx2 v[{vT+4}:{vT+5}], v{vOA}, s[{SRD_B}:{SRD_B+3}], 0 offen")
    A(f"s_cmp_lg_u32 s2, 0"); A("s_cbranch_scc1 L_noepoch")
    A(f"v_mov_b32 v{vT}, s{sTAG}"); A(f"v_mov_b32 v{vT+1}, {WS_Z}")
    A("s_mov_b64 exec, 1")
    A(f"buffer_store_dword v{vT}, v{vT+1}, {WSR}, 0 offen sc1")
    A("L_noepoch:")
    A("s_mov_b64 exec, -1")
    A("L_fin:")
    if dbgtime:
        A(f"s_memrealtime s[{sT4}:{sT5}]"); A("s_waitcnt lgkmcnt(0)")
        A(f"s_sub_u32 s{sT4}, s{sT4}, s{sSTAMP0}")
        A(f"s_cmp_ge_u32 s2, 64"); A("s_cbranch_scc1 L_end")
        A(f"s_lshl_b32 s{sT0}, s2, 2"); A(f"v_mov_b32 v{vT}, s{sT4}"); A(f"v_mov_b32 v{vT+1}, s{sT0}")
        A("s_mov_b64 exec, 1")
        A(f"global_store_dword v{vT+1}, v{vT}, s[{sDBG}:{sDBG+1}]")
    if stamps:
        stamp(8)
        stamp_store(256)
    A("L_end:")
    A("s_endpgm")

    probs = A.check_branches()
    for p in probs: print("HAZARD across branch:", p, file=sys.stderr)
    out = HEADER
    out += f"; @launch grid=(256,1,1) block=(512,1,1) lds={LDS_BYTES}\n"
    out += '.amdgcn_target "amdgcn-amd-amdhsa--gfx950"\n.text\n'
    out += f".globl {KNAME}\n.p2align 8\n.type {KNAME},@function\n"
    out += A.text()
    out += f""".section .rodata,"a"
.p2align 6
.amdhsa_kernel {KNAME}
  .amdhsa_next_free_vgpr 256
  .amdhsa_next_free_sgpr 96
  .amdhsa_accum_offset 256
  .amdhsa_group_segment_fixed_size 0
  .amdhsa_kernarg_size 96
  .amdhsa_user_sgpr_count 2
  .amdhsa_user_sgpr_kernarg_segment_ptr 1
  .amdhsa_system_sgpr_workgroup_id_x 1
  .amdhsa_float_denorm_mode_32 3
.end_amdhsa_kernel
"""
    return out

if __name__ == "__main__":
    kw = eval("dict(" + (sys.argv[2] if len(sys.argv) > 2 else "") + ")")
    open(sys.argv[1], "w").write(gen(**kw))
```

```python
import sys
sys.path.insert(0, "gen")
from asmlib import Asm, VM

KNAME = "recurrent_scan__mha_block_cached__swiglu_ffn__decode_kernel"

HEADER = """; Kernarg layout for this problem (96 bytes, ptrs only, base s[0:1]):
"""

XDUP = 0; XSTR = 1040
HDUP = 8320; HSTR = 144
ODUP = 9472; OSTR = 48
CNT = 11008
C_QRDY, C_H1, C_H1B, C_H2, C_H3, C_MLW, C_MLRDY, C_STAT, C_XDUP, C_QD, C_PROG = 0, 4, 8, 12, 16, 20, 24, 28, 32, 36, 40
QD = 11264
QPK = 19456
MLW = 19712
MLF = 19744
STAT = 19776
RED = 19968
SCO = 24064
LDS_BYTES = 40448

WS_XQ = 0x000000
WS_X1 = 0x080000
WS_XY = 0x100000
WS_X2 = 0x200000
WS_X3 = 0x300000
WS_XM = 0x400000
WS_XH = 0x480000
WS_Z = 0x500000
WS_DBG = 0x800000

LOG2E = 0x3FB8AA3B
SCALE = 0x3DB504F3
SPIN_LIMIT = 400000

def gen(W=5, WH=4, WE=3, R=16, KPRE=16, qpoll="light", hmode="normal", skip="", napx2=0, napx3=0, PX1=3, depth=2, W2=0, N2=0, DP=(0,0,0,0), dbgtime=False, lite=False, prio=2, napml=1, rotk=7, wqflag="nt", kvflag="nt", wflag="nt", dbg=False, stamps=False, sleep=1):
    A = Asm()
    sX, sK, sV, sWQ, sWO, sWG, sWU, sWD, sOUT, sDBG, sWS = 8, 10, 12, 14, 16, 20, 22, 24, 26, 28, 30
    sW, sH, sSUB, sB, sSPLIT, sHW = 3, 32, 33, 34, 35, 36
    sT0, sT1, sT2, sT3 = 37, 38, 39, 40
    sRUN, sOFF, sCNT, sROT = 41, 42, 43, 44
    sBOXH = 45
    sBIT0, sBIT1 = 46, 48
    sSPIN = 50; sSPIN2 = 51
    SRD_A, SRD_B, SRD_C, SRD_D, SRD_WS, SRD_Q = 56, 60, 64, 68, 72, 84
    sSTAMP0 = 76
    sT4, sT5 = 78, 79
    sISC, sK4, sBOXC, sTAG = 80, 81, 82, 83
    vLANE, vL16, vTMP = 1, 2, 3
    vM = 4; vA0, vA1 = 8, 12; vD = 16; vD2 = 20; vQ = 24; vT = 28; vX = 44; vU = 60
    vG, vC, vXA, vBG = vU, vU + 1, vU + 5, vU + 6
    vWQD = 92
    vSIG = 127; vST = 126
    RING = 128
    def slot(i): return RING + 4 * i
    def r4(b): return f"v[{b}:{b+3}]"
    WSR = f"s[{SRD_WS}:{SRD_WS+3}]"

    def srd(base, ptr, size, add=None):
        if add is None:
            A(f"s_mov_b32 s{base}, s{ptr}"); A(f"s_mov_b32 s{base+1}, s{ptr+1}")
        else:
            A(f"s_add_u32 s{base}, s{ptr}, s{add}"); A(f"s_addc_u32 s{base+1}, s{ptr+1}, 0")
        A(f"s_mov_b32 s{base+2}, {size}"); A(f"s_mov_b32 s{base+3}, 0x20000")
    def bf16r(dst, src):
        A(f"v_cvt_pk_bf16_f32 v{dst}, v{src}, v{src}")
        A(f"v_and_b32 v{dst}, 0xffff0000, v{dst}")
    def allreduce(op, r, tmp):
        for k in (8, 4, 2, 1):
            A(f"{op}_dpp v{r}, v{r}, v{r} row_ror:{k} row_mask:0xf bank_mask:0xf")
        A(f"v_mov_b32 v{tmp}, v{r}"); A(f"v_permlane16_swap_b32 v{r}, v{tmp}"); A(f"{op} v{r}, v{r}, v{tmp}")
        A(f"v_mov_b32 v{tmp}, v{r}"); A(f"v_permlane32_swap_b32 v{r}, v{tmp}"); A(f"{op} v{r}, v{r}, v{tmp}")
    def lds_signal(off):
        A("s_waitcnt lgkmcnt(0)")
        A(f"v_mov_b32 v{vTMP}, {CNT+off}"); A(f"v_mov_b32 v{vSIG}, 1")
        A("s_mov_b64 exec, 1")
        A(f"ds_add_u32 v{vTMP}, v{vSIG}")
        A("s_mov_b64 exec, -1")
    def lds_wait(off, n, nap=0):
        lab = A.label("Lw")
        A(f"v_mov_b32 v{vTMP}, {CNT+off}")
        A(f"s_mov_b32 s{sSPIN2}, {SPIN_LIMIT*4}")
        A(f"{lab}:")
        A(f"ds_read_b32 v{vSIG}, v{vTMP}")
        A("s_waitcnt lgkmcnt(0)")
        A(f"v_readfirstlane_b32 s{sT0}, v{vSIG}")
        A(f"s_cmp_ge_u32 s{sT0}, {n}")
        A(f"s_cbranch_scc1 {lab}_ok")
        if nap: A(f"s_sleep {nap}")
        A(f"s_sub_u32 s{sSPIN2}, s{sSPIN2}, 1")
        A(f"s_cmp_lg_u32 s{sSPIN2}, 0")
        A(f"s_cbranch_scc1 {lab}")
        A(f"{lab}_ok:")
    def mfma_row(areg, xreg, breg, dreg, dpp=None):
        for k in range(4):
            if dpp is None: A(f"v_and_b32 v{areg+k}, v{xreg}, v{vM+k}")
            else: A(f"v_and_b32_dpp v{areg+k}, v{xreg}, v{vM+k} row_newbcast:{dpp} row_mask:0xf bank_mask:0xf")
        A(f"v_mfma_f32_16x16x32_bf16 {r4(dreg)}, {r4(areg)}, {r4(breg)}, {r4(dreg)}")
    def mfma_rows(xregs, bregs, dreg):
        n = len(xregs)
        for k in range(4): A(f"v_and_b32 v{vA0+k}, v{xregs[0]}, v{vM+k}")
        for i in range(n):
            cur = vA0 if i % 2 == 0 else vA1; nxt = vA1 if i % 2 == 0 else vA0
            if i + 1 < n:
                for k in range(4): A(f"v_and_b32 v{nxt+k}, v{xregs[i+1]}, v{vM+k}")
            A(f"v_mfma_f32_16x16x32_bf16 {r4(dreg)}, {r4(cur)}, {r4(bregs[i])}, {r4(dreg)}")
    def zero4(r):
        for k in range(4): A(f"v_mov_b32 v{r+k}, 0")
    def stamp(idx):
        if stamps and (not lite or idx in (4, 8)):
            A(f"s_memrealtime s[{sT4}:{sT5}]"); A("s_waitcnt lgkmcnt(0)")
            A(f"v_writelane_b32 v{vST}, s{sT4}, {idx}")
    def stamp_loop(base, cntreg, top):
        if stamps and not lite:
            A(f"s_memrealtime s[{sT4}:{sT5}]"); A("s_waitcnt lgkmcnt(0)")
            A(f"s_sub_u32 s{sT5}, {base+top}, s{cntreg}"); A(f"s_mov_b32 m0, s{sT5}"); A("s_nop 0")
            A(f"v_writelane_b32 v{vST}, s{sT4}, m0")
    def stamp_store(off):
        if stamps:
            A(f"s_lshl_b32 s{sT0}, s2, 9"); A(f"s_add_u32 s{sT0}, s{sT0}, {0x700000+off}")
            A(f"v_lshlrev_b32 v{vTMP}, 2, v{vLANE}")
            A(f"v_writelane_b32 v{vST}, s{sSTAMP0}, 0")
            A(f"buffer_store_dword v{vST}, v{vTMP}, {WSR}, s{sT0} offen")
    def silu(dst, x, t1, t2):
        A(f"v_mul_f32 v{t1}, 0xbfb8aa3b, v{x}")
        A(f"v_exp_f32 v{t1}, v{t1}")
        A(f"v_add_f32 v{t1}, 1.0, v{t1}")
        A(f"v_rcp_f32 v{t2}, v{t1}")
        A(f"v_mul_f32 v{dst}, v{x}, v{t2}")
        bf16r(dst, dst)
    def exp_diff(dst, a, b):
        A(f"v_sub_f32 v{dst}, v{a}, v{b}")
        A(f"v_mul_f32 v{dst}, {hex(LOG2E)}, v{dst}")
        A(f"v_exp_f32 v{dst}, v{dst}")
    def check_sentinel(regs, tmp):
        regs = list(regs)
        if len(regs) >= 3:
            A(f"v_max3_u32 v{tmp}, v{regs[0]}, v{regs[1]}, v{regs[2]}"); i = 3
        else:
            A(f"v_max_u32 v{tmp}, v{regs[0]}, v{regs[1]}"); i = 2
        while i < len(regs):
            if i + 1 < len(regs): A(f"v_max3_u32 v{tmp}, v{tmp}, v{regs[i]}, v{regs[i+1]}"); i += 2
            else: A(f"v_max_u32 v{tmp}, v{tmp}, v{regs[i]}"); i += 1
        A(f"v_cmp_eq_u32 vcc, -1, v{tmp}")
        A(f"s_cmp_eq_u64 vcc, 0")
    def check_tags(regs, tmp):
        regs = list(regs)
        A(f"v_xor_b32 v{tmp}, s{sTAG}, v{regs[0]}")
        if len(regs) > 2:
            A(f"v_xor_b32 v{tmp+1}, s{sTAG}, v{regs[1]}")
            for i, r in enumerate(regs[2:]):
                A(f"v_bitop3_b32 v{tmp+(i&1)}, v{r}, s{sTAG}, v{tmp+(i&1)} bitop3:0xbe")
            A(f"v_or_b32 v{tmp}, v{tmp}, v{tmp+1}")
        else:
            for r in regs[1:]: A(f"v_bitop3_b32 v{tmp}, v{r}, s{sTAG}, v{tmp} bitop3:0xbe")
        A(f"v_cmp_ne_u32 vcc, 0, v{tmp}")
        A(f"s_cmp_eq_u64 vcc, 0")
    def poll_masked(name, issue, regs, tmp, tags=False, nap=0):
        A(f"s_mov_b32 s{sSPIN}, {SPIN_LIMIT}")
        A(f"{name}:")
        issue()
        A("s_waitcnt vmcnt(0)")
        if tags: check_tags(regs, tmp)
        else: check_sentinel(regs, tmp)
        A(f"s_cbranch_scc1 {name}_ok")
        A("s_mov_b64 exec, vcc")
        if nap: A(f"s_sleep {nap}")
        A(f"s_sub_u32 s{sSPIN}, s{sSPIN}, 1"); A(f"s_cmp_lg_u32 s{sSPIN}, 0"); A(f"s_cbranch_scc1 {name}")
        A(f"{name}_ok:")
        A("s_mov_b64 exec, -1")
    def poll_pipe(name, issue, nloads, regs, tmp, depth):
        A(f"s_mov_b32 s{sSPIN}, {SPIN_LIMIT}")
        for _ in range(depth): issue()
        A(f"{name}:")
        A(f"s_waitcnt vmcnt({nloads * (depth - 1)})")
        check_sentinel(regs, tmp)
        A(f"s_cbranch_scc1 {name}_ok")
        A("s_mov_b64 exec, vcc")
        issue()
        A(f"s_sub_u32 s{sSPIN}, s{sSPIN}, 1"); A(f"s_cmp_lg_u32 s{sSPIN}, 0"); A(f"s_cbranch_scc1 {name}")
        A(f"{name}_ok:")
        A("s_mov_b64 exec, -1")
    def int_sum(regs, dst):
        regs = list(regs)
        A(f"v_add3_u32 v{dst}, v{regs[0]}, v{regs[1]}, v{regs[2]}"); i = 3
        while i < len(regs):
            if i + 1 < len(regs): A(f"v_add3_u32 v{dst}, v{dst}, v{regs[i]}, v{regs[i+1]}"); i += 2
            else: A(f"v_add_u32 v{dst}, v{dst}, v{regs[i]}"); i += 1
    def poll_sum(name, issue, regs, tmp, starget, nap=0, rowreduce=False, masked=True):
        A(f"s_mov_b32 s{sSPIN}, {SPIN_LIMIT}")
        A(f"{name}:")
        issue()
        A("s_waitcnt vmcnt(0)")
        int_sum(regs, tmp)
        if rowreduce:
            for k in (8, 4, 2, 1): A(f"v_add_u32_dpp v{tmp}, v{tmp}, v{tmp} row_ror:{k} row_mask:0xf bank_mask:0xf")
        A(f"v_cmp_ne_u32 vcc, s{starget}, v{tmp}"); A("s_cmp_eq_u64 vcc, 0")
        A(f"s_cbranch_scc1 {name}_ok")
        if masked: A("s_mov_b64 exec, vcc")
        if nap: A(f"s_sleep {nap}")
        A(f"s_sub_u32 s{sSPIN}, s{sSPIN}, 1"); A(f"s_cmp_lg_u32 s{sSPIN}, 0"); A(f"s_cbranch_scc1 {name}")
        A(f"{name}_ok:")
        A("s_mov_b64 exec, -1")
    def poll2(name, issue, nloads, setA, setB, nregs, process, tmp):
        A(f"s_mov_b32 s{sSPIN}, {SPIN_LIMIT}")
        issue(setA)
        A(f"{name}_loop:")
        issue(setB)
        A(f"s_waitcnt vmcnt({nloads})")
        check_sentinel(range(setA, setA + nregs), tmp)
        A(f"s_cbranch_scc1 {name}_okA")
        issue(setA)
        A(f"s_waitcnt vmcnt({nloads})")
        check_sentinel(range(setB, setB + nregs), tmp)
        A(f"s_cbranch_scc1 {name}_okB")
        A(f"s_sub_u32 s{sSPIN}, s{sSPIN}, 1"); A(f"s_cmp_lg_u32 s{sSPIN}, 0")
        A(f"s_cbranch_scc0 {name}_okB")
        A(f"s_branch {name}_loop")
        A(f"{name}_okB:")
        process(setB)
        A(f"s_branch {name}_end")
        A(f"{name}_okA:")
        process(setA)
        A(f"{name}_end:")

    A(f"{KNAME}:")
    A("s_cmp_ge_u32 s2, 256")
    A("s_cbranch_scc1 L_end")
    A(f"s_load_dwordx16 s[8:23], s[0:1], 0")
    A(f"s_load_dwordx8 s[24:31], s[0:1], 64")
    if stamps or dbgtime: A(f"s_memrealtime s[{sSTAMP0}:{sSTAMP0+1}]")
    A(f"v_and_b32 v{vLANE}, 63, v0")
    A(f"v_lshrrev_b32 v{vTMP}, 6, v0")
    A(f"v_lshlrev_b32 v{vL16}, 4, v{vLANE}")
    A(f"v_readfirstlane_b32 s{sW}, v{vTMP}")
    A(f"s_and_b32 s{sT0}, s2, 7"); A(f"s_lshl_b32 s{sH}, s{sT0}, 2")
    A(f"s_lshr_b32 s{sT1}, s2, 3"); A(f"s_and_b32 s{sT0}, s{sT1}, 3"); A(f"s_add_u32 s{sH}, s{sH}, s{sT0}")
    A(f"s_lshr_b32 s{sSUB}, s{sT1}, 2")
    A(f"s_lshr_b32 s{sB}, s{sSUB}, 2"); A(f"s_and_b32 s{sSPLIT}, s{sSUB}, 3")
    A(f"s_lshl_b32 s{sBOXH}, s{sH}, 3"); A(f"s_add_u32 s{sBOXH}, s{sBOXH}, s{sSUB}")
    A(f"s_lshl_b32 s{sBOXC}, s{sSUB}, 5"); A(f"s_add_u32 s{sBOXC}, s{sBOXC}, s{sH}"); A(f"s_lshl_b32 s{sBOXC}, s{sBOXC}, 10")
    A(f"s_mul_i32 s{sROT}, s2, {rotk*16384}"); A(f"s_and_b32 s{sROT}, s{sROT}, 0xfffff")
    A(f"s_sub_u32 s{sHW}, s{sW}, 4")
    A(f"v_lshrrev_b32 v{vG}, 4, v{vLANE}")
    A(f"v_and_b32 v{vC}, 15, v{vLANE}")
    vWQ = vU + 20
    A(f"v_lshlrev_b32 v{vWQ}, 13, v{vG}")
    A(f"v_lshl_add_u32 v{vWQ}, v{vC}, 4, v{vWQ}")
    A("s_waitcnt lgkmcnt(0)")
    A(f"s_add_u32 s{sT4}, s{sWS}, {WS_Z}"); A(f"s_addc_u32 s{sT5}, s{sWS+1}, 0")
    A(f"s_load_dword s{sTAG}, s[{sT4}:{sT5}], 0")
    srd(SRD_A, sX, 4096)
    sPIV = 52
    vXR = vU + 8
    vF1 = vU + 21; vWD = vU + 22; vWD2 = vU + 23
    A(f"s_cmp_ge_u32 s{sW}, 4")
    A("s_cbranch_scc1 L_helper_issue")

    vms = VM(A)
    A(f"s_and_b32 s{sT0}, s{sW}, 1"); A(f"s_lshl_b32 s{sT0}, s{sT0}, 11")
    A(f"s_load_dword s{sPIV}, s[{sX}:{sX+1}], s{sT0}")
    A(f"s_lshr_b32 s{sT1}, s{sW}, 1"); A(f"s_lshl_b32 s{sT1}, s{sT1}, 10"); A(f"s_add_u32 s{sT0}, s{sT0}, s{sT1}")
    A(f"buffer_load_dwordx4 {r4(vXR)}, v{vL16}, s[{SRD_A}:{SRD_A+3}], s{sT0} offen"); vms.issue("x")
    A(f"s_lshl_b32 s{sT0}, s{sH}, 8")
    srd(SRD_Q, sWQ, 8388608 - 31 * 256, add=sT0)
    A(f"s_lshl_b32 s{sT0}, s{sSUB}, 5"); A(f"s_lshl_b32 s{sT1}, s{sW}, 3"); A(f"s_add_u32 s{sT0}, s{sT0}, s{sT1}"); A(f"s_lshl_b32 s{sOFF}, s{sT0}, 15")
    WQS = 16
    for n in range(8):
        A(f"buffer_load_dwordx4 {r4(slot(WQS+n))}, v{vWQ}, s[{SRD_Q}:{SRD_Q+3}], s{sOFF} offen {wqflag}"); vms.issue(("wq", n))
        if n < 7: A(f"s_add_u32 s{sOFF}, s{sOFF}, 32768")
    A(f"v_mov_b32 v{vX}, 0"); A(f"v_lshlrev_b32 v{vX+1}, 2, v{vLANE}")
    A(f"s_mov_b64 exec, 0xffff")
    A(f"ds_write_b32 v{vX+1}, v{vX} offset:{CNT}")
    A("s_mov_b64 exec, -1")
    srd(SRD_WS, sWS, 0x1000000)
    srd(SRD_B, sX, 0)
    A(f"s_lshl_b32 s{sT0}, s{sB}, 5"); A(f"s_add_u32 s{sT0}, s{sT0}, s{sH}"); A(f"s_lshl_b32 s{sT0}, s{sT0}, 2")
    A(f"s_add_u32 s{sT0}, s{sT0}, s{sSPLIT}"); A(f"s_lshl_b32 s{sT0}, s{sT0}, 20")
    srd(SRD_C, sK, 0x100000, add=sT0)
    srd(SRD_D, sV, 0x100000, add=sT0)
    A(f"s_lshl_b32 s{sT0}, s{sW}, 12"); A(f"s_add_u32 s{sRUN}, s{sROT}, s{sT0}")
    for r in (vF1, vWD, vWD2, vU + 28, vU + 30): A(f"v_mov_b32 v{r}, 0")
    A("s_waitcnt lgkmcnt(0)")
    A("s_barrier")
    cur = {"vm": vms}
    def kv_issue(idx, srdb, tag, state, ring):
        piece = idx >> 2
        key = (srdb, piece, state.get("epoch", 0))
        if state.get("cur") != key:
            if piece == 0: A(f"s_and_b32 s{sOFF}, s{sRUN}, 0xfffff")
            else:
                A(f"s_add_u32 s{sOFF}, s{sRUN}, {piece*16384}"); A(f"s_and_b32 s{sOFF}, s{sOFF}, 0xfffff")
            state["cur"] = key
        sl = idx if (state.get('direct') and idx < 32) else (idx + state.get('slot0', 0)) % ring
        A(f"buffer_load_dwordx4 {r4(slot(sl))}, v{vL16}, s[{srdb}:{srdb+3}], s{sOFF} offen offset:{(idx&3)*1024} {kvflag}")
        cur["vm"].issue(tag)
    def masks():
        A(f"v_and_b32 v{vU+2}, 1, v{vC}")
        A(f"v_lshlrev_b32 v{vU+2}, 4, v{vU+2}")
        A(f"v_mov_b32 v{vU+3}, 0xffff")
        A(f"v_lshlrev_b32 v{vU+3}, v{vU+2}, v{vU+3}")
        A(f"v_bfe_u32 v{vU+4}, v{vC}, 1, 2")
        for k in range(4):
            A(f"v_cmp_eq_u32 vcc, {k}, v{vU+4}")
            A(f"v_cndmask_b32 v{vM+k}, 0, v{vU+3}, vcc")
        A(f"v_lshrrev_b32 v{vU+2}, 3, v{vC}")
        A(f"v_lshl_add_u32 v{vBG}, v{vU+2}, 2, v{vG}")
        A(f"v_mul_u32_u24 v{vXA}, {XSTR}, v{vBG}")
    masks()
    A(f"s_mov_b32 s{sBIT0}, 0xaaaaaaaa"); A(f"s_mov_b32 s{sBIT0+1}, 0xaaaaaaaa")
    A(f"s_mov_b32 s{sBIT1}, 0xcccccccc"); A(f"s_mov_b32 s{sBIT1+1}, 0xcccccccc")
    A(f"s_add_u32 s{sTAG}, s{sTAG}, 1")
    A(f"s_lshl_b32 s{sPIV}, s{sPIV}, 16")
    vms.wait("x")
    st = {}
    for n in range(WE): kv_issue(n, SRD_C, ("k", n), st, 16)
    stamp(9)
    vY = vT; vZ = vT + 8
    for k in range(4):
        A(f"v_lshlrev_b32 v{vY+2*k}, 16, v{vXR+k}"); A(f"v_and_b32 v{vY+2*k+1}, 0xffff0000, v{vXR+k}")
    for k in range(8): A(f"v_subrev_f32 v{vZ+k}, s{sPIV}, v{vY+k}")
    vS = vX; vSB = vX + 1; vS2 = vX + 2; vMEAN = vX + 6
    A(f"v_add_f32 v{vS}, v{vZ}, v{vZ+1}"); A(f"v_mul_f32 v{vSB}, v{vZ}, v{vZ}")
    A(f"v_add_f32 v{vS2}, v{vZ+2}, v{vZ+3}"); A(f"v_mul_f32 v{vS2+1}, v{vZ+1}, v{vZ+1}")
    for k in (4, 6):
        A(f"v_add_f32 v{vS}, v{vS}, v{vZ+k}"); A(f"v_add_f32 v{vS2}, v{vS2}, v{vZ+k+1}")
    for k in (2, 4, 6):
        A(f"v_fmac_f32 v{vSB}, v{vZ+k}, v{vZ+k}"); A(f"v_fmac_f32 v{vS2+1}, v{vZ+k+1}, v{vZ+k+1}")
    A(f"v_add_f32 v{vS}, v{vS}, v{vS2}"); A(f"v_add_f32 v{vSB}, v{vSB}, v{vS2+1}")
    fill = [f"s_and_b32 s{sT0}, s{sW}, 1", f"s_mul_i32 s{sT1}, s{sT0}, {4*XSTR}",
            f"s_lshr_b32 s{sT2}, s{sW}, 1", f"s_lshl_b32 s{sT3}, s{sT2}, 9", f"s_add_u32 s{sT1}, s{sT1}, s{sT3}",
            f"s_lshl_b32 s{sT0}, s{sT0}, 4", f"s_lshl_b32 s{sT2}, s{sT2}, 3", f"s_add_u32 s{sT2}, s{sT2}, s{sT0}"]
    for i, k in enumerate((8, 4, 2, 1)):
        A(f"v_add_f32_dpp v{vS}, v{vS}, v{vS} row_ror:{k} row_mask:0xf bank_mask:0xf")
        A(f"v_add_f32_dpp v{vSB}, v{vSB}, v{vSB} row_ror:{k} row_mask:0xf bank_mask:0xf")
        A(fill[2*i]); A(fill[2*i+1])
    for swap in ("v_permlane16_swap_b32", "v_permlane32_swap_b32"):
        A(f"v_mov_b32 v{vS2}, v{vS}"); A(f"v_mov_b32 v{vS2+1}, v{vSB}")
        A(f"{swap} v{vS}, v{vS2}"); A(f"{swap} v{vSB}, v{vS2+1}")
        A(f"v_add_f32 v{vS}, v{vS}, v{vS2}"); A(f"v_add_f32 v{vSB}, v{vSB}, v{vS2+1}")
    vXW = vU + 9 + 3
    A(f"v_lshlrev_b32 v{vXW}, 3, v{vLANE}")
    A(f"v_add_u32 v{vXW}, s{sT1}, v{vXW}")
    A(f"v_mov_b32 v{vS2}, s{sT2}"); A(f"v_mov_b32 v{vXW+1}, s{sT0}")
    A("s_mov_b64 exec, 1")
    A(f"ds_write_b64 v{vS2}, v[{vS}:{vS+1}] offset:{STAT}")
    A("s_mov_b64 exec, -1")
    lds_signal(C_STAT)
    lds_wait(C_STAT, 4)
    A(f"ds_read_b128 {r4(vZ)}, v{vXW+1} offset:{STAT}")
    A("s_waitcnt lgkmcnt(0)")
    A(f"v_add_f32 v{vS}, v{vZ}, v{vZ+2}"); A(f"v_add_f32 v{vSB}, v{vZ+1}, v{vZ+3}")
    A(f"v_mul_f32 v{vS}, 0x3a800000, v{vS}"); A(f"v_mul_f32 v{vSB}, 0x3a800000, v{vSB}")
    A(f"v_add_f32 v{vMEAN}, s{sPIV}, v{vS}")
    A(f"v_fma_f32 v{vS}, -v{vS}, v{vS}, v{vSB}")
    A(f"v_max_f32 v{vS}, 0, v{vS}")
    bf16r(vS, vS)
    A(f"v_add_f32 v{vS}, 0x3727c5ac, v{vS}")
    bf16r(vS, vS)
    vSQ = vX + 3; vR = vX + 4; vE = vX + 5
    A(f"v_sqrt_f32 v{vSQ}, v{vS}")
    bf16r(vMEAN, vMEAN)
    A(f"v_rcp_f32 v{vR}, v{vSQ}")
    A(f"v_fma_f32 v{vE}, -v{vSQ}, v{vSQ}, v{vS}")
    A(f"v_mul_f32 v{vE}, 0.5, v{vE}")
    A(f"v_fma_f32 v{vSQ}, v{vE}, v{vR}, v{vSQ}")
    bf16r(vSQ, vSQ)
    A(f"v_rcp_f32 v{vR}, v{vSQ}")
    for k in range(8): A(f"v_sub_f32 v{vY+k}, v{vY+k}, v{vMEAN}")
    for k in range(8): bf16r(vY + k, vY + k)
    for k in range(8): A(f"v_mul_f32 v{vZ+k}, v{vY+k}, v{vR}")
    vZ2 = vX + 8
    for k in range(8): A(f"v_fma_f32 v{vZ2+k}, -v{vZ+k}, v{vSQ}, v{vY+k}")
    for k in range(8): A(f"v_fma_f32 v{vZ+k}, v{vZ2+k}, v{vR}, v{vZ+k}")
    for g in range(4):
        A(f"v_cvt_pk_bf16_f32 v{vY+2*g}, v{vZ+g}, v{vZ+g}"); A(f"v_cvt_pk_bf16_f32 v{vY+2*g+1}, v{vZ+g+4}, v{vZ+g+4}")
    for g in range(4): A(f"ds_write_b64 v{vXW}, v[{vY+2*g}:{vY+2*g+1}] offset:{XDUP + g*XSTR}")
    lds_signal(C_XDUP)
    A(f"s_lshl_b32 s{sT0}, s{sSUB}, 7"); A(f"s_lshl_b32 s{sT1}, s{sW}, 5"); A(f"s_add_u32 s{sT0}, s{sT0}, s{sT1}")
    A(f"v_add_u32 v{vU+24}, s{sT0}, v{vXA}")
    zero4(vD)
    lds_wait(C_XDUP, 4)
    stamp(1)
    A(f"ds_read_b128 {r4(vX)}, v{vU+24} offset:{XDUP}")
    A(f"ds_read_b128 {r4(vX+4)}, v{vU+24} offset:{XDUP+16}")
    A(f"s_lshl_b32 s{sT0}, s{sW}, 10")
    A(f"v_add_u32 v{vU+25}, s{sT0}, v{vL16}")
    vms.wait(("wq", 7))
    A("s_waitcnt lgkmcnt(0)")
    mfma_rows([vX + n for n in range(8)], [slot(WQS + n) for n in range(8)], vD)
    A(f"ds_write_b128 v{vU+25}, {r4(vD)} offset:{QD}")
    lds_signal(C_QD)
    vm = vms
    st = {"direct": True}
    for n in range(WE, KPRE):
        A(f"s_waitcnt vmcnt({WE-1})")
        kv_issue(n, SRD_C, ("k", n), st, 16)
    vm.q = [("k", n) for n in range(KPRE)]
    lds_wait(C_QRDY, 1)
    A(f"v_lshlrev_b32 v{vTMP}, 4, v{vC}")
    A(f"ds_read_b128 {r4(vQ)}, v{vTMP} offset:{QPK}")
    vMX = vU + 25; vSA = vU + 26; vSC = vU + 27; vS1 = vU + 28; vLs = vU + 29; vE1 = vU + 30; vE2 = vU + 31
    A(f"v_mov_b32 v{vMX}, 0xff800000"); A(f"v_mov_b32 v{vLs}, 0")
    A(f"s_lshl_b32 s{sT0}, s{sW}, 12")
    A(f"v_lshlrev_b32 v{vSA}, 2, v{vLANE}")
    A(f"v_add_u32 v{vSA}, s{sT0}, v{vSA}")
    A("s_waitcnt lgkmcnt(0)")
    if dbg:
        A(f"s_lshl_b32 s{sT0}, s2, 14"); A(f"s_lshl_b32 s{sT1}, s{sW}, 10"); A(f"s_add_u32 s{sT0}, s{sT0}, s{sT1}"); A(f"s_add_u32 s{sT0}, s{sT0}, {WS_DBG}")
        A(f"buffer_store_dwordx4 {r4(vQ)}, v{vL16}, {WSR}, s{sT0} offen"); A("s_waitcnt vmcnt(0)")
    stamp(2)
    def kpost(T):
        o = []
        for j in range(8): o.append(f"v_add_f32_dpp v{T+j}, v{T+j}, v{T+j} row_ror:8 row_mask:0xf bank_mask:0x3")
        for j in range(8): o.append(f"v_add_f32_dpp v{T+j}, v{T+j+8}, v{T+j+8} row_ror:8 row_mask:0xf bank_mask:0xc")
        for j in range(4): o.append(f"v_add_f32_dpp v{T+j}, v{T+j}, v{T+j} row_shl:4 row_mask:0xf bank_mask:0x5")
        for j in range(4): o.append(f"v_add_f32_dpp v{T+j}, v{T+j+4}, v{T+j+4} row_shr:4 row_mask:0xf bank_mask:0xa")
        for j in range(4): o.append(f"v_add_f32_dpp v{T+8+j}, v{T+j}, v{T+j} quad_perm:[2,3,0,1] row_mask:0xf bank_mask:0xf")
        o.append(f"v_cndmask_b32 v{T}, v{T+8}, v{T+10}, s[{sBIT1}:{sBIT1+1}]")
        o.append(f"v_cndmask_b32 v{T+1}, v{T+9}, v{T+11}, s[{sBIT1}:{sBIT1+1}]")
        o.append(f"v_add_f32_dpp v{T+8}, v{T}, v{T} quad_perm:[1,0,3,2] row_mask:0xf bank_mask:0xf")
        o.append(f"v_add_f32_dpp v{T+9}, v{T+1}, v{T+1} quad_perm:[1,0,3,2] row_mask:0xf bank_mask:0xf")
        o.append(f"v_cndmask_b32 v{vSC}, v{T+8}, v{T+9}, s[{sBIT0}:{sBIT0+1}]")
        o += [f"v_cvt_pk_bf16_f32 v{vSC}, v{vSC}, v{vSC}", f"v_and_b32 v{vSC}, 0xffff0000, v{vSC}",
              f"v_mul_f32 v{vSC}, {hex(SCALE)}, v{vSC}",
              f"v_cvt_pk_bf16_f32 v{vSC}, v{vSC}, v{vSC}", f"v_and_b32 v{vSC}, 0xffff0000, v{vSC}",
              f"ds_write_b32 v{vSA}, v{vSC} offset:{SCO}",
              f"v_max_f32 v{vS1}, v{vMX}, v{vSC}",
              f"v_sub_f32 v{vE1}, v{vMX}, v{vS1}", f"v_sub_f32 v{vE2}, v{vSC}, v{vS1}",
              f"v_mul_f32 v{vE1}, {hex(LOG2E)}, v{vE1}", f"v_mul_f32 v{vE2}, {hex(LOG2E)}, v{vE2}",
              f"v_exp_f32 v{vE1}, v{vE1}", f"v_exp_f32 v{vE2}, v{vE2}",
              f"v_mov_b32 v{vMX}, v{vS1}", f"v_add_u32 v{vSA}, 256, v{vSA}",
              f"v_fma_f32 v{vLs}, v{vLs}, v{vE1}, v{vE2}"]
        return o
    def kblock(base, T, post, issue, slot0=0):
        n = len(post); per = (n + 15) // 16
        for j in range(16):
            vm.wait(("k", base + j))
            issue(base + j)
            b = slot(slot0 + j)
            A(f"v_dot2_f32_bf16 v{T+j}, v{b}, v{vQ}, 0")
            for k in range(1, 4): A(f"v_dot2_f32_bf16 v{T+j}, v{b+k}, v{vQ+k}, v{T+j}")
            for ins in post[j*per:(j+1)*per]: A(ins)
    def retag(name, shift):
        vm.q = [((name, t[1] + shift) if (isinstance(t, tuple) and t[0] == name) else t) for t in vm.q]
    T0, T1 = vT, vX
    def steady(srdb, nm, ring):
        assert DP[3] == 0
        def f(n):
            tgt = n + W - DP[n % 4]; prev = n - 1 + W - DP[(n - 1) % 4]
            for m in range(prev + 1, tgt + 1): kv_issue(m, srdb, (nm, m), st, ring)
        return f
    st = {}
    def iss_first(n, ring, pre, srdb, nm):
        if pre < ring or W > ring - 1:
            if n + W >= pre: kv_issue(n + W, srdb, (nm, n + W), st, ring)
        else:
            if 1 <= n <= W: kv_issue(ring + n - 1, srdb, (nm, ring + n - 1), st, ring)
    st = {"direct": True}
    def iss_k01(n):
        if 1 <= n <= W: kv_issue(KPRE + n - 1, SRD_C, ("k", KPRE + n - 1), st, 16)
        elif n >= KPRE and n + W >= KPRE + W: kv_issue(n + W, SRD_C, ("k", n + W), st, 16)
    assert W < KPRE or KPRE == W or True
    if KPRE <= W + 1:
        def iss_k01(n):
            if n + W >= KPRE: kv_issue(n + W, SRD_C, ("k", n + W), st, 16)
    kblock(0, T0, [], iss_k01)
    stamp(11)
    kblock(16, T1, kpost(T0), iss_k01, slot0=16)
    stamp(12)
    retag("k", -32)
    A(f"s_add_u32 s{sRUN}, s{sRUN}, 131072")
    lds_signal(C_PROG)
    A(f"s_mov_b32 s{sCNT}, 6")
    A("L_kloop:")
    q_in = list(vm.q); st = {}
    kblock(0, T0, kpost(T1), steady(SRD_C, "k", 16))
    kblock(16, T1, kpost(T0), steady(SRD_C, "k", 16))
    retag("k", -32)
    assert vm.q == q_in, (vm.q, q_in)
    lds_signal(C_PROG)
    stamp_loop(17, sCNT, 6)
    A(f"s_add_u32 s{sRUN}, s{sRUN}, 131072")
    A(f"s_sub_u32 s{sCNT}, s{sCNT}, 1"); A(f"s_cmp_lg_u32 s{sCNT}, 0"); A("s_cbranch_scc1 L_kloop")
    st = {}
    kblock(0, T0, kpost(T1), lambda n: kv_issue(n + W, SRD_C, ("k", n + W), st, 16))
    retag("k", -16)
    A(f"s_add_u32 s{sRUN}, s{sRUN}, 65536")
    st = {}
    sRUNV = sT2
    A(f"s_lshl_b32 s{sT0}, s{sW}, 12"); A(f"s_add_u32 s{sRUNV}, s{sROT}, s{sT0}")
    VOFF = 16 if R == 32 else 0
    def issl(j):
        if j + W < 16: kv_issue(j + W, SRD_C, ("k", j + W), st, 16)
        else:
            if st.get("epoch", 0) == 0:
                st["epoch"] = 1; st["slot0"] = VOFF; A(f"s_mov_b32 s{sRUN}, s{sRUNV}")
            kv_issue(j + W - 16, SRD_D, ("v", j + W - 16), st, R)
    kblock(0, T1, kpost(T0), issl)
    for ins in kpost(T1): A(ins)
    stamp(3)
    A(f"v_mov_b32 v{vS1}, v{vMX}")
    allreduce("v_max_f32", vS1, vE1)
    exp_diff(vE1, vMX, vS1)
    A(f"v_mul_f32 v{vLs}, v{vLs}, v{vE1}")
    allreduce("v_add_f32", vLs, vE1)
    vPAIR = vX
    A(f"v_mov_b32 v{vPAIR}, v{vS1}"); A(f"v_mov_b32 v{vPAIR+1}, v{vLs}")
    A(f"s_lshl_b32 s{sT0}, s{sW}, 3"); A(f"v_mov_b32 v{vE1}, s{sT0}")
    A("s_mov_b64 exec, 1")
    A(f"ds_write_b64 v{vE1}, v[{vPAIR}:{vPAIR+1}] offset:{MLW}")
    A("s_mov_b64 exec, -1")
    lds_signal(C_MLW)
    st = {"epoch": 1, "slot0": VOFF}
    for n in range(W, R):
        A(f"s_waitcnt vmcnt({W-1})")
        kv_issue(n, SRD_D, ("v", n), st, R)
    A(f"v_subrev_u32 v{vSA}, 4096, v{vSA}")
    vL = None; vP = vU + 31; vSN = vU + 32; vP2 = vU + 33; vMG = vX + 2; vIL = vX + 3
    A(f"ds_read_b32 v{vSN}, v{vSA} offset:{SCO}")
    zero4(vD)
    lds_wait(C_MLRDY, 1)
    A(f"v_mov_b32 v{vE1}, 0")
    A(f"ds_read_b64 v[{vMG}:{vMG+1}], v{vE1} offset:{MLF}")
    stamp(10)
    def vblock(base, issue, last=False):
        A("s_waitcnt lgkmcnt(0)")
        exp_diff(vP, vSN, vMG)
        if not last:
            A(f"v_add_u32 v{vSA}, 256, v{vSA}")
            A(f"ds_read_b32 v{vSN}, v{vSA} offset:{SCO}")
        A(f"v_mul_f32 v{vP}, v{vP}, v{vIL}")
        A(f"v_cvt_pk_bf16_f32 v{vP2}, v{vP}, v{vP}")
        for j in range(16):
            vm.wait(("v", base + j))
            issue(base + j)
            mfma_row(vA0 if j % 2 == 0 else vA1, vP2, slot((base + j + VOFF) % R), vD, dpp=j)
    NB = R // 16
    vm.q = [("v", n) for n in range(R)]
    st = {"epoch": 1, "slot0": VOFF}
    for bb in range(NB):
        vblock(16 * bb, lambda n: iss_first(n, R, R, SRD_D, "v"))
    stamp(13)
    retag("v", -R)
    A(f"s_add_u32 s{sRUN}, s{sRUN}, {65536*NB}")
    assert not (W2 and NB != 1)
    nloop = 16 // NB - 2 - (N2 if W2 else 0)
    A(f"s_mov_b32 s{sCNT}, {nloop}")
    A("L_vloop:")
    q_in = list(vm.q); st = {"epoch": 1, "slot0": VOFF}
    for bb in range(NB):
        vblock(16 * bb, steady(SRD_D, "v", R))
    retag("v", -R)
    assert vm.q == q_in, (vm.q, q_in)
    stamp_loop(32, sCNT, nloop)
    A(f"s_add_u32 s{sRUN}, s{sRUN}, {65536*NB}")
    A(f"s_sub_u32 s{sCNT}, s{sCNT}, 1"); A(f"s_cmp_lg_u32 s{sCNT}, 0"); A("s_cbranch_scc1 L_vloop")
    WL = W
    if W2:
        WL = W2
        st = {"epoch": 1, "slot0": VOFF}
        def iss_grow(n):
            lo = W if n == 0 else n + W2
            for m in range(lo, n + W2 + 1): kv_issue(m, SRD_D, ("v", m), st, R)
        vblock(0, iss_grow)
        retag("v", -16)
        A(f"s_add_u32 s{sRUN}, s{sRUN}, 65536")
        if N2 > 1:
            A(f"s_mov_b32 s{sCNT}, {N2 - 1}")
            A("L_vloop2:")
            q_in = list(vm.q); st = {"epoch": 1, "slot0": VOFF}
            vblock(0, lambda n: kv_issue(n + W2, SRD_D, ("v", n + W2), st, R))
            retag("v", -16)
            assert vm.q == q_in
            A(f"s_add_u32 s{sRUN}, s{sRUN}, 65536")
            A(f"s_sub_u32 s{sCNT}, s{sCNT}, 1"); A(f"s_cmp_lg_u32 s{sCNT}, 0"); A("s_cbranch_scc1 L_vloop2")
    st = {"epoch": 1, "slot0": VOFF}
    for bb in range(NB):
        vblock(16 * bb, lambda n: kv_issue(n + WL, SRD_D, ("v", n + WL), st, R) if n + WL < R else None, last=(bb == NB - 1))
    A(f"v_lshlrev_b32 v{vTMP}, 5, v{vC}")
    A(f"v_lshl_add_u32 v{vTMP}, v{vG}, 4, v{vTMP}")
    A(f"s_lshl_b32 s{sT0}, s{sBOXH}, 11"); A(f"s_lshl_b32 s{sT1}, s{sW}, 9"); A(f"s_add_u32 s{sT0}, s{sT0}, s{sT1}"); A(f"s_add_u32 s{sT0}, s{sT0}, {WS_X2}")
    A("s_mov_b32 exec_hi, 0")
    A(f"buffer_store_dwordx4 {r4(vD)}, v{vTMP}, {WSR}, s{sT0} offen sc1")
    A("s_mov_b64 exec, -1")
    stamp(4)
    A("s_barrier")
    if stamps:
        A(f"s_cmp_lg_u32 s{sW}, 0"); A("s_cbranch_scc1 L_end")
        stamp_store(0)
    A("s_endpgm")

    A("L_helper_issue:")
    vmh = VM(A)
    srd(SRD_WS, sWS, 0x1000000)
    srd(SRD_Q, sV if hmode == "contig" else sX, 0x4000000 if hmode == "contig" else 0)
    A(f"v_mul_u32_u24 v{vF1}, 7168, v{vG}")
    A(f"v_lshl_add_u32 v{vF1}, v{vC}, 4, v{vF1}")
    A(f"v_mov_b32 v{vWD2}, 0x40000000")
    A(f"v_cmp_gt_u32 vcc, 14, v{vC}")
    A(f"v_cndmask_b32 v{vF1}, v{vWD2}, v{vF1}, vcc")
    A(f"s_and_b32 s{sT0}, s{sHW}, 1"); A(f"s_cmp_eq_u32 s{sT0}, 0")
    A(f"s_cselect_b32 s{sT2}, s{sWG}, s{sWU}"); A(f"s_cselect_b32 s{sT3}, s{sWG+1}, s{sWU+1}")
    A(f"s_mul_i32 s{sT0}, s{sH}, 224")
    A(f"s_add_u32 s{SRD_B}, s{sT2}, s{sT0}"); A(f"s_addc_u32 s{SRD_B+1}, s{sT3}, 0")
    A(f"s_mov_b32 s{SRD_B+2}, {1024*7168 - 31*224}"); A(f"s_mov_b32 s{SRD_B+3}, 0x20000")
    A(f"s_lshl_b32 s{sT0}, s{sSUB}, 7"); A(f"s_lshr_b32 s{sT1}, s{sHW}, 1"); A(f"s_lshl_b32 s{sT1}, s{sT1}, 6")
    A(f"s_add_u32 s{sT0}, s{sT0}, s{sT1}"); A(f"s_mul_i32 s{sRUN}, s{sT0}, 7168")
    A(f"v_lshlrev_b32 v{vWD}, 11, v{vG}")
    A(f"v_lshl_add_u32 v{vWD}, v{vC}, 4, v{vWD}")
    A(f"s_cmp_lg_u32 s{sHW}, 3"); A("s_cbranch_scc0 L_wd_oob")
    A(f"v_mov_b32 v{vWD2}, v{vWD}")
    A("L_wd_oob:")
    A(f"s_mul_i32 s{sT0}, s{sH}, {112*2048}"); A(f"s_lshl_b32 s{sT1}, s{sSUB}, 8"); A(f"s_add_u32 s{sT0}, s{sT0}, s{sT1}")
    srd(SRD_C, sWD, 111 * 2048 + 256, add=sT0)
    A(f"s_lshl_b32 s{sT0}, s{sH}, 18"); A(f"s_add_u32 s{sT0}, s{sT0}, s{sT1}")
    srd(SRD_D, sWO, 127 * 2048 + 256, add=sT0)
    sHB = sCNT
    A(f"s_lshl_b32 s{sHB}, s{sHW}, 16")
    def h_issue(n):
        if n >= 32: return
        if hmode == "contig":
            A(f"s_lshl_b32 s{sOFF}, s2, 17"); A(f"s_lshl_b32 s{sT5}, s{sHW}, 10"); A(f"s_add_u32 s{sOFF}, s{sOFF}, s{sT5}"); A(f"s_add_u32 s{sOFF}, s{sOFF}, {n*4096}")
            A(f"buffer_load_dwordx4 {r4(slot(n))}, v{vL16}, s[{SRD_Q}:{SRD_Q+3}], s{sOFF} offen {wflag}")
        elif hmode == "none":
            A(f"s_mov_b32 s{sOFF}, 0")
            A(f"buffer_load_dwordx4 {r4(slot(n))}, v{vL16}, s[{SRD_A}:{SRD_A+3}], s{sOFF} offen")
        elif n < 16:
            A(f"s_add_u32 s{sOFF}, s{sRUN}, {n*28672}")
            A(f"buffer_load_dwordx4 {r4(slot(n))}, v{vF1}, s[{SRD_B}:{SRD_B+3}], s{sOFF} offen {wflag}")
        elif n < 24:
            A(f"s_add_u32 s{sOFF}, s{sHB}, {(n-16)*8192}")
            A(f"buffer_load_dwordx4 {r4(slot(n))}, v{vWD if n < 20 else vWD2}, s[{SRD_C}:{SRD_C+3}], s{sOFF} offen {wflag}")
        else:
            A(f"s_add_u32 s{sOFF}, s{sHB}, {(n-24)*8192}")
            A(f"buffer_load_dwordx4 {r4(slot(n))}, v{vWD}, s[{SRD_D}:{SRD_D+3}], s{sOFF} offen {wflag}")
        vmh.issue(("h", n))
    A("s_waitcnt lgkmcnt(0)")
    A("s_barrier")
    A(f"s_add_u32 s{sTAG}, s{sTAG}, 1")
    A(f"s_cmp_lg_u32 s{sHW}, 0"); A("s_cbranch_scc1 L_noclear")
    for k in range(4): A(f"v_mov_b32 v{vD2+k}, -1")
    A(f"s_add_u32 s{sT1}, s{sBOXC}, {WS_X3}")
    A(f"buffer_store_dwordx4 {r4(vD2)}, v{vL16}, {WSR}, s{sT1} offen sc1")
    A(f"s_lshl_b32 s{sT0}, s{sBOXH}, 11"); A(f"s_add_u32 s{sT1}, s{sT0}, {WS_X2}")
    A(f"buffer_store_dwordx4 {r4(vD2)}, v{vL16}, {WSR}, s{sT1} offen sc1")
    A(f"buffer_store_dwordx4 {r4(vD2)}, v{vL16}, {WSR}, s{sT1} offen offset:1024 sc1")
    A(f"s_lshl_b32 s{sT1}, s{sBOXH}, 7"); A(f"s_add_u32 s{sT1}, s{sT1}, {WS_XM}")
    A("s_mov_b64 exec, 0xff")
    A(f"buffer_store_dwordx4 {r4(vD2)}, v{vL16}, {WSR}, s{sT1} offen sc1")
    A("s_mov_b64 exec, -1")
    A("L_noclear:")
    for n in range(WH): h_issue(n)
    masks()
    A(f"s_cmp_lg_u32 s{sHW}, 0"); A("s_cbranch_scc1 L_hstart")
    if prio: A(f"s_setprio {prio}")
    lds_wait(C_QD, 4)
    for w in range(4): A(f"ds_read_b128 {r4(vT+4*w)}, v{vL16} offset:{QD + w*1024}")
    A("s_waitcnt lgkmcnt(0)")
    for r in range(4):
        A(f"v_add_f32 v{vD+r}, v{vT+r}, v{vT+4+r}"); A(f"v_add_f32 v{vD2+r}, v{vT+8+r}, v{vT+12+r}")
    for r in range(4): A(f"v_add_f32 v{vD+r}, v{vD+r}, v{vD2+r}")
    A("s_waitcnt vmcnt(0)")
    A(f"v_add3_u32 v{vD2}, v{vD}, v{vD+1}, v{vD+2}"); A(f"v_add_u32 v{vD2}, v{vD2}, v{vD+3}")
    A(f"v_sub_u32 v{vD2}, s{sTAG}, v{vD2}")
    A(f"s_lshl_b32 s{sT0}, s{sBOXH}, 11")
    A(f"v_lshlrev_b32 v{vD2+1}, 2, v{vLANE}")
    A(f"buffer_store_dwordx4 {r4(vD)}, v{vL16}, {WSR}, s{sT0} offen sc1")
    A(f"buffer_store_dword v{vD2}, v{vD2+1}, {WSR}, s{sT0} offen offset:1024 sc1")
    stamp(16)
    A(f"v_lshrrev_b32 v{vU+25}, 5, v{vLANE}"); A(f"v_lshlrev_b32 v{vU+25}, 11, v{vU+25}")
    A(f"v_and_b32 v{vU+26}, 31, v{vLANE}")
    A(f"v_lshl_add_u32 v{vU+36}, v{vU+26}, 2, v{vU+25}")
    A(f"v_lshl_add_u32 v{vU+25}, v{vU+26}, 4, v{vU+25}")
    sQB = sT3; sQC = sT2
    A(f"s_lshl_b32 s{sQB}, s{sH}, 14"); A(f"s_lshl_b32 s{sT1}, s{sB}, 7"); A(f"s_add_u32 s{sQC}, s{sQB}, s{sT1}"); A(f"s_add_u32 s{sQC}, s{sQC}, 1024")
    A(f"s_lshl_b32 s{sT1}, s{sB}, 9"); A(f"s_add_u32 s{sQB}, s{sQB}, s{sT1}")
    QG = vT
    A(f"s_mov_b32 s{sSPIN}, {SPIN_LIMIT}")
    if qpoll == "light":
        A(f"v_and_b32 v{vU+26}, 7, v{vLANE}"); A(f"v_lshlrev_b32 v{vU+26}, 11, v{vU+26}")
        A(f"s_lshl_b32 s{sT1}, s{sH}, 14"); A(f"s_add_u32 s{sT1}, s{sT1}, 1008")
        A("L_qlight:")
        A(f"buffer_load_dwordx4 {r4(QG)}, v{vU+26}, {WSR}, s{sT1} offen sc1")
        A(f"buffer_load_dword v{QG+4}, v{vU+26}, {WSR}, s{sT1} offen offset:268 sc1")
        A("s_waitcnt vmcnt(0)")
        A(f"v_add3_u32 v{QG+5}, v{QG}, v{QG+1}, v{QG+2}"); A(f"v_add3_u32 v{QG+5}, v{QG+5}, v{QG+3}, v{QG+4}")
        A(f"v_cmp_ne_u32 vcc, s{sTAG}, v{QG+5}"); A("s_cmp_eq_u64 vcc, 0")
        A("s_cbranch_scc1 L_qfull")
        A(f"s_sub_u32 s{sSPIN}, s{sSPIN}, 1"); A(f"s_cmp_lg_u32 s{sSPIN}, 0"); A("s_cbranch_scc1 L_qlight")
        A("L_qfull:")
    A(f"s_lshl_b32 s{sT5}, s{sTAG}, 2")
    def xq_issue():
        A(f"s_mov_b32 s{sT0}, s{sQB}"); A(f"s_mov_b32 s{sT1}, s{sQC}")
        for k in range(4):
            A(f"buffer_load_dwordx4 {r4(QG+4*k)}, v{vU+25}, {WSR}, s{sT0} offen sc1")
            A(f"buffer_load_dword v{QG+16+k}, v{vU+36}, {WSR}, s{sT1} offen sc1")
            if k < 3: A(f"s_add_u32 s{sT0}, s{sT0}, 4096"); A(f"s_add_u32 s{sT1}, s{sT1}, 4096")
    poll_sum("L_qpoll", xq_issue, list(range(QG, QG + 20)), vU + 32, sT5)
    stamp(17)
    vQS = vU + 32
    for r in range(4):
        A(f"v_add_f32 v{vQS+4+r}, v{QG+r}, v{QG+4+r}"); A(f"v_add_f32 v{vQS+8+r}, v{QG+8+r}, v{QG+12+r}")
    for r in range(4): A(f"v_add_f32 v{vQS+r}, v{vQS+4+r}, v{vQS+8+r}")
    for r in range(4): A(f"v_mov_b32 v{vQS+4+r}, v{vQS+r}")
    for r in range(4): A(f"v_permlane32_swap_b32 v{vQS+r}, v{vQS+4+r}")
    for r in range(4): A(f"v_add_f32 v{vQS+r}, v{vQS+r}, v{vQS+4+r}")
    A(f"v_cvt_pk_bf16_f32 v{vQS+4}, v{vQS}, v{vQS+1}"); A(f"v_cvt_pk_bf16_f32 v{vQS+5}, v{vQS+2}, v{vQS+3}")
    A(f"v_and_b32 v{vU+25}, 1, v{vG}"); A(f"v_lshlrev_b32 v{vU+25}, 3, v{vU+25}"); A(f"v_lshl_add_u32 v{vU+25}, v{vC}, 4, v{vU+25}")
    A("s_mov_b32 exec_hi, 0")
    A(f"ds_write_b64 v{vU+25}, v[{vQS+4}:{vQS+5}] offset:{QPK}")
    A("s_mov_b64 exec, -1")
    lds_signal(C_QRDY)
    if prio: A("s_setprio 0")
    A("L_hstart:")
    vm = vmh
    vm.q = [("h", n) for n in range(WH)]
    for n in range(32 - WH):
        vm.wait(("h", n))
        h_issue(n + WH)
        if n in (0, 7, 15, 23): stamp({0: 13, 7: 14, 15: 15, 23: 18}[n])
    zero4(vD)
    A(f"s_lshl_b32 s{sT0}, s{sSUB}, 7"); A(f"s_lshr_b32 s{sT1}, s{sHW}, 1"); A(f"s_lshl_b32 s{sT1}, s{sT1}, 6"); A(f"s_add_u32 s{sT0}, s{sT0}, s{sT1}")
    A(f"v_add_u32 v{vU+25}, s{sT0}, v{vXA}")
    lds_wait(C_XDUP, 4)
    for q4 in range(4): A(f"ds_read_b128 {r4(vX+4*q4)}, v{vU+25} offset:{XDUP + q4*16}")
    vm.wait(("h", 15))
    A("s_waitcnt lgkmcnt(0)")
    for n in range(16): mfma_row(vA0 if n % 2 == 0 else vA1, vX + n, slot(n), vD)
    vRA = vU + 24
    A(f"s_and_b32 s{sT0}, s{sHW}, 1"); A(f"s_lshl_b32 s{sT0}, s{sT0}, 10")
    A(f"v_add_u32 v{vRA}, s{sT0}, v{vL16}")
    A(f"s_cmp_lt_u32 s{sHW}, 2"); A("s_cbranch_scc1 L_f1_keep")
    A(f"ds_write_b128 v{vRA}, {r4(vD)} offset:{RED}")
    lds_signal(C_H1)
    A("L_f1_keep:")
    stamp(2)
    A(f"s_cmp_lt_u32 s{sHW}, 2"); A("s_cbranch_scc0 L_f1_done")
    lds_wait(C_H1, 2)
    A(f"ds_read_b128 {r4(vD2)}, v{vRA} offset:{RED}")
    A("s_waitcnt lgkmcnt(0)")
    for r in range(4): A(f"v_add_f32 v{vD+r}, v{vD+r}, v{vD2+r}")
    A(f"v_cmp_gt_u32 vcc, 14, v{vC}")
    for r in range(4): A(f"v_cndmask_b32 v{vD+r}, 0, v{vD+r}, vcc")
    int_sum(range(vD, vD + 4), vD2)
    for k in (8, 4, 2, 1): A(f"v_add_u32_dpp v{vD2}, v{vD2}, v{vD2} row_ror:{k} row_mask:0xf bank_mask:0xf")
    A(f"v_sub_u32 v{vD2}, s{sTAG}, v{vD2}")
    A(f"v_cmp_eq_u32 vcc, 15, v{vC}")
    A(f"v_cndmask_b32 v{vD}, v{vD}, v{vD2}, vcc")
    A(f"s_lshl_b32 s{sT0}, s{sBOXH}, 11"); A(f"s_add_u32 s{sT0}, s{sT0}, {WS_X1}")
    A(f"buffer_store_dwordx4 {r4(vD)}, v{vRA}, {WSR}, s{sT0} offen sc1")
    A(f"s_cmp_eq_u32 s{sHW}, 0"); A("s_cbranch_scc0 L_f1_done")
    lds_wait(C_PROG, 4 * PX1, nap=32)
    A(f"s_lshl_b32 s{sT5}, s{sTAG}, 4")
    def x1_issue():
        A(f"s_lshl_b32 s{sT0}, s{sH}, 14"); A(f"s_add_u32 s{sT0}, s{sT0}, {WS_X1}")
        for s_ in range(8):
            A(f"buffer_load_dwordx4 {r4(slot(2*s_))}, v{vL16}, {WSR}, s{sT0} offen sc1")
            A(f"buffer_load_dwordx4 {r4(slot(2*s_+1))}, v{vL16}, {WSR}, s{sT0} offen offset:1024 sc1")
            if s_ < 7: A(f"s_add_u32 s{sT0}, s{sT0}, 2048")
    poll_sum("L_x1poll", x1_issue, range(slot(0), slot(0) + 64), vT, sT5, nap=32, rowreduce=True, masked=False)
    stamp(3)
    for mt in range(2):
        for r in range(4):
            A(f"v_add_f32 v{vT+4*mt+r}, v{slot(mt)+r}, v{slot(2+mt)+r}")
        for s_ in range(2, 8):
            for r in range(4): A(f"v_add_f32 v{vT+4*mt+r}, v{vT+4*mt+r}, v{slot(2*s_+mt)+r}")
    A(f"v_cmp_gt_u32 vcc, 14, v{vC}")
    for r in range(8): A(f"v_cndmask_b32 v{vT+r}, 0, v{vT+r}, vcc")
    A(f"v_lshrrev_b32 v{vU+25}, 1, v{vG}"); A(f"v_mul_u32_u24 v{vU+25}, {4*HSTR}, v{vU+25}")
    A(f"v_and_b32 v{vU+26}, 1, v{vG}"); A(f"v_lshl_add_u32 v{vU+26}, v{vC}, 1, v{vU+26}")
    A(f"v_lshl_add_u32 v{vU+25}, v{vU+26}, 2, v{vU+25}")
    for r in range(4):
        bf16r(vT + r, vT + r); bf16r(vT + 4 + r, vT + 4 + r)
        silu(vT + 8, vT + r, vT + 9, vT + 10)
        A(f"v_mul_f32 v{vT+8}, v{vT+8}, v{vT+4+r}")
        A(f"v_cvt_pk_bf16_f32 v{vT+8}, v{vT+8}, v{vT+8}")
        A(f"ds_write_b32 v{vU+25}, v{vT+8} offset:{HDUP + r*HSTR}")
    lds_signal(C_H2)
    A("L_f1_done:")
    lds_wait(C_H2, 1, nap=32)
    A(f"v_mul_u32_u24 v{vU+25}, {HSTR}, v{vBG}")
    A(f"s_lshl_b32 s{sT0}, s{sHW}, 5")
    A(f"v_add_u32 v{vU+25}, s{sT0}, v{vU+25}")
    A(f"ds_read_b128 {r4(vX)}, v{vU+25} offset:{HDUP}")
    A(f"ds_read_b128 {r4(vX+4)}, v{vU+25} offset:{HDUP+16}")
    zero4(vD)
    A("s_waitcnt vmcnt(0) lgkmcnt(0)")
    for n in range(8): mfma_row(vA0 if n % 2 == 0 else vA1, vX + n, slot(16 + n), vD)
    vRA = vU + 24
    A(f"s_lshl_b32 s{sT0}, s{sHW}, 10")
    A(f"v_add_u32 v{vRA}, s{sT0}, v{vL16}")
    vPL = vU + 27
    A(f"v_lshrrev_b32 v{vPL}, 1, v{vG}"); A(f"v_lshlrev_b32 v{vPL}, 9, v{vPL}")
    A(f"v_and_b32 v{vU+26}, 1, v{vG}"); A(f"v_lshl_add_u32 v{vPL}, v{vU+26}, 4, v{vPL}")
    A(f"v_lshl_add_u32 v{vPL}, v{vC}, 5, v{vPL}")
    A(f"s_lshr_b32 s{sK4}, s{sH}, 3")
    vGA = vU + 28; vOA = vU + 30
    A(f"v_lshlrev_b32 v{vGA}, 10, v{vG}")
    A(f"v_bfe_u32 v{vU+26}, v{vLANE}, 3, 1"); A(f"v_lshl_add_u32 v{vGA}, v{vU+26}, 9, v{vGA}")
    A(f"v_and_b32 v{vU+29}, 7, v{vLANE}"); A(f"v_lshl_add_u32 v{vGA}, v{vU+29}, 4, v{vGA}")
    A(f"v_lshlrev_b32 v{vOA}, 11, v{vU+26}")
    A(f"v_lshl_add_u32 v{vOA}, v{vU+29}, 3, v{vOA}")
    A(f"s_lshl_b32 s{sT0}, s{sSUB}, 8"); A(f"s_lshl_b32 s{sT1}, s{sK4}, 6"); A(f"s_add_u32 s{sT0}, s{sT0}, s{sT1}")
    A(f"v_add_u32 v{vOA}, s{sT0}, v{vOA}")
    A(f"s_and_b32 s{sT0}, s{sH}, 7"); A(f"s_cmp_eq_u32 s{sT0}, s{sSUB}"); A(f"s_cselect_b32 s{sISC}, 1, 0")
    A(f"s_cmp_eq_u32 s{sHW}, 0"); A("s_cbranch_scc1 L_f2_h0")
    A(f"ds_write_b128 v{vRA}, {r4(vD)} offset:{RED}")
    lds_signal(C_H3)
    A("s_branch L_tail")
    A("L_f2_h0:")
    lds_wait(C_H3, 3)
    for w in range(1, 4): A(f"ds_read_b128 {r4(vT+4*w)}, v{vL16} offset:{RED + w*1024}")
    A("s_waitcnt lgkmcnt(0)")
    for r in range(4):
        for w in range(1, 4): A(f"v_add_f32 v{vD+r}, v{vD+r}, v{vT+4*w+r}")
    int_sum(range(vD, vD + 4), vT)
    A(f"v_sub_u32 v{vT}, s{sTAG}, v{vT}")
    A(f"v_lshrrev_b32 v{vT+1}, 2, v{vPL}")
    A(f"s_lshl_b32 s{sT0}, s{sBOXC}, 1"); A(f"s_add_u32 s{sT0}, s{sT0}, {WS_XY}")
    if "xypub" not in skip:
        A(f"buffer_store_dwordx4 {r4(vD)}, v{vPL}, {WSR}, s{sT0} offen sc1")
        A(f"buffer_store_dword v{vT}, v{vT+1}, {WSR}, s{sT0} offen offset:1024 sc1")
    sGB = sT3
    def g_issue(base_const):
        def f(setbase):
            A(f"s_lshl_b32 s{sGB}, s{sSUB}, 15"); A(f"s_lshl_b32 s{sT1}, s{sK4}, 7"); A(f"s_add_u32 s{sGB}, s{sGB}, s{sT1}"); A(f"s_add_u32 s{sGB}, s{sGB}, {base_const}")
            for tt in range(8):
                A(f"buffer_load_dwordx4 {r4(setbase+4*tt)}, v{vGA}, {WSR}, s{sGB} offen sc1")
                if tt < 7: A(f"s_add_u32 s{sGB}, s{sGB}, 4096")
        return f
    def g_process(sb):
        for r in range(4):
            A(f"v_add_f32 v{vT+r}, v{sb+r}, v{sb+4+r}"); A(f"v_add_f32 v{vT+4+r}, v{sb+8+r}, v{sb+12+r}")
            A(f"v_add_f32 v{vT+8+r}, v{sb+16+r}, v{sb+20+r}"); A(f"v_add_f32 v{vT+12+r}, v{sb+24+r}, v{sb+28+r}")
        for r in range(4):
            A(f"v_add_f32 v{vT+r}, v{vT+r}, v{vT+4+r}"); A(f"v_add_f32 v{vT+8+r}, v{vT+8+r}, v{vT+12+r}")
        for r in range(4): A(f"v_add_f32 v{vT+r}, v{vT+r}, v{vT+8+r}")
    def g_finish():
        for r in range(4): A(f"v_mov_b32 v{vT+4+r}, v{vT+r}")
        for r in range(4): A(f"v_permlane16_swap_b32 v{vT+r}, v{vT+4+r}")
        for r in range(4): A(f"v_add_f32 v{vT+r}, v{vT+r}, v{vT+4+r}")
        for r in range(4): A(f"v_mov_b32 v{vT+4+r}, v{vT+r}")
        for r in range(4): A(f"v_permlane32_swap_b32 v{vT+r}, v{vT+4+r}")
        for r in range(4): A(f"v_add_f32 v{vT+r}, v{vT+r}, v{vT+4+r}")
        for r in range(4): bf16r(vT + r, vT + r)
    A("L_xm:")
    stamp(10)
    lds_wait(C_MLW, 4, nap=napml)
    if prio: A(f"s_setprio {prio}")
    vML = vT
    A(f"v_mov_b32 v{vTMP}, 0")
    A(f"ds_read_b128 {r4(vML)}, v{vTMP} offset:{MLW}")
    A(f"ds_read_b128 {r4(vML+4)}, v{vTMP} offset:{MLW+16}")
    A("s_waitcnt lgkmcnt(0)")
    vMM = vT + 8; vLL = vT + 9; vFW = vT + 10
    A(f"v_max_f32 v{vMM}, v{vML}, v{vML+2}")
    A(f"v_max3_f32 v{vMM}, v{vMM}, v{vML+4}, v{vML+6}")
    for w in range(4): exp_diff(vFW + w, vML + 2 * w, vMM)
    A(f"v_mul_f32 v{vLL}, v{vFW}, v{vML+1}")
    for w in range(1, 4): A(f"v_fmac_f32 v{vLL}, v{vFW+w}, v{vML+2*w+1}")
    A(f"s_lshl_b32 s{sT0}, s{sBOXH}, 7"); A(f"s_add_u32 s{sT0}, s{sT0}, {WS_XM}")
    A(f"v_mov_b32 v{vTMP}, 0")
    A("s_mov_b64 exec, 1")
    A(f"buffer_store_dwordx2 v[{vMM}:{vMM+1}], v{vTMP}, {WSR}, s{sT0} offen sc1")
    A("s_mov_b64 exec, -1")
    stamp(11)
    A(f"v_and_b32 v{vU+25}, 3, v{vLANE}"); A(f"v_lshlrev_b32 v{vU+25}, 7, v{vU+25}")
    A(f"s_lshl_b32 s{sT1}, s{sH}, 3"); A(f"s_lshl_b32 s{sT0}, s{sB}, 2"); A(f"s_add_u32 s{sT1}, s{sT1}, s{sT0}"); A(f"s_lshl_b32 s{sT1}, s{sT1}, 7"); A(f"s_add_u32 s{sT1}, s{sT1}, {WS_XM}")
    def xm_issue(sb): A(f"buffer_load_dwordx2 v[{sb}:{sb+1}], v{vU+25}, {WSR}, s{sT1} offen sc1")
    def xm_proc(sb):
        A(f"v_mov_b32 v{vT}, v{sb}"); A(f"v_mov_b32 v{vT+1}, v{sb+1}")
    poll2("L_xmp", xm_issue, 1, slot(0), slot(1), 2, xm_proc, vT + 4)
    A(f"v_max_f32_dpp v{vT+2}, v{vT}, v{vT} quad_perm:[1,0,3,2] row_mask:0xf bank_mask:0xf")
    A(f"v_max_f32_dpp v{vT+2}, v{vT+2}, v{vT+2} quad_perm:[2,3,0,1] row_mask:0xf bank_mask:0xf")
    exp_diff(vT + 3, vT, vT + 2)
    A(f"v_mul_f32 v{vT+3}, v{vT+3}, v{vT+1}")
    A(f"v_add_f32_dpp v{vT+3}, v{vT+3}, v{vT+3} quad_perm:[1,0,3,2] row_mask:0xf bank_mask:0xf")
    A(f"v_add_f32_dpp v{vT+3}, v{vT+3}, v{vT+3} quad_perm:[2,3,0,1] row_mask:0xf bank_mask:0xf")
    A(f"v_rcp_f32 v{vT+5}, v{vT+3}")
    A(f"v_fma_f32 v{vT+6}, -v{vT+3}, v{vT+5}, 1.0")
    A(f"v_fma_f32 v{vT+5}, v{vT+6}, v{vT+5}, v{vT+5}")
    A(f"v_mov_b32 v{vT+4}, v{vT+2}")
    A(f"v_mov_b32 v{vTMP}, 0")
    A("s_mov_b64 exec, 1")
    A(f"ds_write_b64 v{vTMP}, v[{vT+4}:{vT+5}] offset:{MLF}")
    A("s_mov_b64 exec, -1")
    lds_signal(C_MLRDY)
    if prio: A("s_setprio 0")
    stamp(12)
    A("s_waitcnt vmcnt(0)")
    A(f"s_cmp_eq_u32 s{sISC}, 0"); A("s_cbranch_scc1 L_tail")
    A(f"v_lshlrev_b32 v{vU+26}, 10, v{vG}"); A(f"v_add_u32 v{vU+26}, v{vU+26}, v{vGA}")
    A(f"v_lshlrev_b32 v{vU+25}, 11, v{vG}")
    A(f"v_bfe_u32 v{vT}, v{vLANE}, 3, 1"); A(f"v_lshl_add_u32 v{vU+25}, v{vT}, 7, v{vU+25}")
    A(f"v_lshl_add_u32 v{vU+25}, v{vU+29}, 2, v{vU+25}")
    A(f"s_lshl_b32 s{sT5}, s{sTAG}, 3")
    def gy_issue():
        A(f"s_lshl_b32 s{sGB}, s{sSUB}, 16"); A(f"s_add_u32 s{sGB}, s{sGB}, {WS_XY}")
        A(f"s_lshl_b32 s{sT1}, s{sK4}, 5"); A(f"s_add_u32 s{sT2}, s{sGB}, s{sT1}"); A(f"s_add_u32 s{sT2}, s{sT2}, 1024")
        A(f"s_lshl_b32 s{sT1}, s{sK4}, 7"); A(f"s_add_u32 s{sGB}, s{sGB}, s{sT1}")
        for tt in range(8):
            A(f"buffer_load_dwordx4 {r4(slot(tt))}, v{vU+26}, {WSR}, s{sGB} offen sc1")
            A(f"buffer_load_dword v{slot(8)+tt}, v{vU+25}, {WSR}, s{sT2} offen sc1")
            if tt < 7: A(f"s_add_u32 s{sGB}, s{sGB}, 8192"); A(f"s_add_u32 s{sT2}, s{sT2}, 8192")
    if "xyget" not in skip: poll_sum("L_gy", gy_issue, range(slot(0), slot(0) + 40), vT, sT5, nap=32)
    g_process(slot(0)); g_finish()
    vGG = vU + 32; vXO = vU + 36
    for r in range(4): silu(vGG + r, vT + r, vT + 9, vT + 10)
    A(f"buffer_load_dwordx2 v[{vU+40}:{vU+41}], v{vOA}, s[{SRD_A}:{SRD_A+3}], 0 offen")
    A("s_waitcnt vmcnt(0)")
    A(f"v_lshlrev_b32 v{vXO}, 16, v{vU+40}"); A(f"v_and_b32 v{vXO+1}, 0xffff0000, v{vU+40}")
    A(f"v_lshlrev_b32 v{vXO+2}, 16, v{vU+41}"); A(f"v_and_b32 v{vXO+3}, 0xffff0000, v{vU+41}")

    A("L_tail:")
    vX2A = vU + 44
    A(f"v_bfe_u32 v{vU+26}, v{vLANE}, 2, 2")
    A(f"v_lshrrev_b32 v{vX2A}, 5, v{vLANE}")
    A(f"v_lshl_add_u32 v{vX2A}, v{vX2A}, 2, v{vU+26}")
    A(f"v_lshlrev_b32 v{vX2A}, 11, v{vX2A}")
    A(f"v_bfe_u32 v{vU+26}, v{vLANE}, 4, 1"); A(f"v_and_b32 v{vU+46}, 3, v{vLANE}")
    A(f"v_lshl_add_u32 v{vU+46}, v{vU+26}, 2, v{vU+46}")
    A(f"v_lshl_add_u32 v{vX2A}, v{vU+46}, 4, v{vX2A}")
    A(f"s_lshl_b32 s{sT0}, s{sHW}, 7")
    A(f"v_add_u32 v{vX2A}, s{sT0}, v{vX2A}")
    vOW = vU + 47; vOR = vU + 48
    A(f"v_lshrrev_b32 v{vOW}, 5, v{vLANE}"); A(f"v_mul_u32_u24 v{vOW}, {4*OSTR}, v{vOW}")
    A(f"v_lshl_add_u32 v{vOW}, v{vU+46}, 2, v{vOW}")
    A(f"s_mul_i32 s{sT0}, s{sHW}, 384")
    A(f"v_add_u32 v{vOW}, s{sT0}, v{vOW}")
    A(f"v_mul_u32_u24 v{vOR}, {OSTR}, v{vBG}"); A(f"v_add_u32 v{vOR}, s{sT0}, v{vOR}")
    sX2 = sT3
    A(f"s_lshl_b32 s{sX2}, s{sH}, 14"); A(f"s_add_u32 s{sX2}, s{sX2}, {WS_X2}")
    zero4(vD)
    A("s_waitcnt vmcnt(0) lgkmcnt(0)")
    A("s_barrier")
    stamp(5)
    def x2_issue(sb):
        for w in range(4):
            A(f"buffer_load_dwordx4 {r4(sb+4*w)}, v{vX2A}, {WSR}, s{sX2} offen offset:{w*512} sc1")
    def x2_proc(sb):
        for r in range(4):
            A(f"v_add_f32 v{vT+r}, v{sb+r}, v{sb+4+r}"); A(f"v_add_f32 v{vT+4+r}, v{sb+8+r}, v{sb+12+r}")
        for r in range(4): A(f"v_add_f32 v{vT+r}, v{vT+r}, v{vT+4+r}")
    if depth > 1: poll_pipe("L_x2", lambda: x2_issue(slot(0)), 4, range(slot(0), slot(0) + 16), vT + 8, depth)
    else: poll_masked("L_x2", lambda: x2_issue(slot(0)), range(slot(0), slot(0) + 16), vT + 8, nap=napx2)
    x2_proc(slot(0))
    stamp(6)
    for k in (4, 8):
        for r in range(4):
            A(f"v_add_f32_dpp v{vT+r}, v{vT+r}, v{vT+r} row_ror:{k} row_mask:0xf bank_mask:0xf")
    for r in range(4):
        A(f"v_cvt_pk_bf16_f32 v{vT+r}, v{vT+r}, v{vT+r}")
    for r in range(4):
        A(f"ds_write_b32 v{vOW}, v{vT+r} offset:{ODUP + r*OSTR}")
    A(f"ds_read_b128 {r4(vX)}, v{vOR} offset:{ODUP}")
    A(f"ds_read_b128 {r4(vX+4)}, v{vOR} offset:{ODUP+16}")
    A("s_waitcnt lgkmcnt(0)")
    mfma_rows([vX + n for n in range(8)], [slot(24 + n) for n in range(8)], vD)
    A(f"s_cmp_eq_u32 s{sHW}, 0"); A("s_cbranch_scc1 L_x3_h0")
    A(f"ds_write_b128 v{vRA}, {r4(vD)} offset:{RED}")
    A("s_waitcnt lgkmcnt(0)")
    A("s_barrier")
    A("s_endpgm")
    A("L_x3_h0:")
    A("s_nop 1")
    A("s_barrier")
    for w in range(1, 4): A(f"ds_read_b128 {r4(vT+4*w)}, v{vL16} offset:{RED + w*1024}")
    A("s_waitcnt lgkmcnt(0)")
    for r in range(4):
        A(f"v_add_f32 v{vD+r}, v{vD+r}, v{vT+4+r}"); A(f"v_add_f32 v{vT+8+r}, v{vT+8+r}, v{vT+12+r}")
    for r in range(4): A(f"v_add_f32 v{vD+r}, v{vD+r}, v{vT+8+r}")
    A(f"s_add_u32 s{sT0}, s{sBOXC}, {WS_X3}")
    A(f"buffer_store_dwordx4 {r4(vD)}, v{vPL}, {WSR}, s{sT0} offen sc1")
    stamp(7)
    A(f"s_cmp_eq_u32 s{sISC}, 0"); A("s_cbranch_scc1 L_fin")
    if depth > 1: poll_pipe("L_g3", lambda: g_issue(WS_X3)(slot(8)), 8, range(slot(8), slot(8) + 32), vT + 4, depth)
    else: poll_masked("L_g3", lambda: g_issue(WS_X3)(slot(8)), range(slot(8), slot(8) + 32), vT + 4, nap=napx3)
    g_process(slot(8))
    g_finish()
    for r in range(4):
        A(f"v_mul_f32 v{vT+r}, v{vT+r}, v{vGG+r}")
    for r in range(4): bf16r(vT + r, vT + r)
    for r in range(4): A(f"v_add_f32 v{vT+r}, v{vT+r}, v{vXO+r}")
    A(f"v_cvt_pk_bf16_f32 v{vT+4}, v{vT}, v{vT+1}")
    A(f"v_cvt_pk_bf16_f32 v{vT+5}, v{vT+2}, v{vT+3}")
    srd(SRD_B, sOUT, 4096)
    A("s_mov_b64 exec, 0xffff")
    A(f"buffer_store_dwordx2 v[{vT+4}:{vT+5}], v{vOA}, s[{SRD_B}:{SRD_B+3}], 0 offen")
    A(f"s_cmp_lg_u32 s2, 0"); A("s_cbranch_scc1 L_noepoch")
    A(f"v_mov_b32 v{vT}, s{sTAG}"); A(f"v_mov_b32 v{vT+1}, {WS_Z}")
    A("s_mov_b64 exec, 1")
    A(f"buffer_store_dword v{vT}, v{vT+1}, {WSR}, 0 offen sc1")
    A("L_noepoch:")
    A("s_mov_b64 exec, -1")
    A("L_fin:")
    if dbgtime:
        A(f"s_memrealtime s[{sT4}:{sT5}]"); A("s_waitcnt lgkmcnt(0)")
        A(f"s_sub_u32 s{sT4}, s{sT4}, s{sSTAMP0}")
        A(f"s_cmp_ge_u32 s2, 64"); A("s_cbranch_scc1 L_end")
        A(f"s_lshl_b32 s{sT0}, s2, 2"); A(f"v_mov_b32 v{vT}, s{sT4}"); A(f"v_mov_b32 v{vT+1}, s{sT0}")
        A("s_mov_b64 exec, 1")
        A(f"global_store_dword v{vT+1}, v{vT}, s[{sDBG}:{sDBG+1}]")
    if stamps:
        stamp(8)
        stamp_store(256)
    A("L_end:")
    A("s_endpgm")

    probs = A.check_branches()
    for p in probs: print("HAZARD across branch:", p, file=sys.stderr)
    out = HEADER
    out += f"; @launch grid=(256,1,1) block=(512,1,1) lds={LDS_BYTES}\n"
    out += '.amdgcn_target "amdgcn-amd-amdhsa--gfx950"\n.text\n'
    out += f".globl {KNAME}\n.p2align 8\n.type {KNAME},@function\n"
    out += A.text()
    out += f""".section .rodata,"a"
.p2align 6
.amdhsa_kernel {KNAME}
  .amdhsa_next_free_vgpr 256
  .amdhsa_next_free_sgpr 96
  .amdhsa_accum_offset 256
  .amdhsa_group_segment_fixed_size 0
  .amdhsa_kernarg_size 96
  .amdhsa_user_sgpr_count 2
  .amdhsa_user_sgpr_kernarg_segment_ptr 1
  .amdhsa_system_sgpr_workgroup_id_x 1
  .amdhsa_float_denorm_mode_32 3
.end_amdhsa_kernel
"""
    return out

if __name__ == "__main__":
    kw = eval("dict(" + (sys.argv[2] if len(sys.argv) > 2 else "") + ")")
    open(sys.argv[1], "w").write(gen(**kw))
```

```python
import sys
sys.path.insert(0, "gen")
from asmlib import Asm, VM

KNAME = "recurrent_scan__mha_block_cached__swiglu_ffn__decode_kernel"

HEADER = """; Kernarg layout for this problem (96 bytes, ptrs only, base s[0:1]):
"""

XDUP = 0; XSTR = 1040
HDUP = 8320; HSTR = 144
ODUP = 9472; OSTR = 48
CNT = 11008
C_QRDY, C_H1, C_H1B, C_H2, C_H3, C_MLW, C_MLRDY, C_STAT, C_XDUP, C_QD, C_PROG, C_G, C_R3, C_YP = 0, 4, 8, 12, 16, 20, 24, 28, 32, 36, 40, 44, 48, 52
QD = 11264
QPK = 19456
MLW = 19712
MLF = 19744
STAT = 19776
RED = 19968
SCO = 24064
LDS_BYTES = 40448

WS_XQ = 0x000000
WS_X1 = 0x080000
WS_XY = 0x100000
WS_X2 = 0x200000
WS_X3 = 0x300000
WS_XM = 0x400000
WS_XH = 0x480000
WS_Z = 0x500000
WS_DBG = 0x800000

LOG2E = 0x3FB8AA3B
SCALE = 0x3DB504F3
SPIN_LIMIT = 400000

def gen(W=5, WH=4, WE=3, R=16, KPRE=16, qpoll="light", hmode="normal", skip="", napx2=0, napx3=0, PX1=3, napgy=8, depth=2, W2=0, N2=0, DP=(0,0,0,0), dbgtime=False, lite=False, prio=2, napml=1, rotk=7, wqflag="nt", kvflag="nt", wflag="nt", dbg=False, stamps=False, sleep=1):
    A = Asm()
    sX, sK, sV, sWQ, sWO, sWG, sWU, sWD, sOUT, sDBG, sWS = 8, 10, 12, 14, 16, 20, 22, 24, 26, 28, 30
    sW, sH, sSUB, sB, sSPLIT, sHW = 3, 32, 33, 34, 35, 36
    sT0, sT1, sT2, sT3 = 37, 38, 39, 40
    sRUN, sOFF, sCNT, sROT = 41, 42, 43, 44
    sBOXH = 45
    sBIT0, sBIT1 = 46, 48
    sSPIN = 50; sSPIN2 = 51
    SRD_A, SRD_B, SRD_C, SRD_D, SRD_WS, SRD_Q = 56, 60, 64, 68, 72, 84
    sSTAMP0 = 76
    sT4, sT5 = 78, 79
    sISC, sK4, sBOXC, sTAG = 80, 81, 82, 83
    vLANE, vL16, vTMP = 1, 2, 3
    vM = 4; vA0, vA1 = 8, 12; vD = 16; vD2 = 20; vQ = 24; vT = 28; vX = 44; vU = 60
    vG, vC, vXA, vBG = vU, vU + 1, vU + 5, vU + 6
    vWQD = 92
    vSIG = 127; vST = 126
    RING = 128
    def slot(i): return RING + 4 * i
    def r4(b): return f"v[{b}:{b+3}]"
    WSR = f"s[{SRD_WS}:{SRD_WS+3}]"

    def srd(base, ptr, size, add=None):
        if add is None:
            A(f"s_mov_b32 s{base}, s{ptr}"); A(f"s_mov_b32 s{base+1}, s{ptr+1}")
        else:
            A(f"s_add_u32 s{base}, s{ptr}, s{add}"); A(f"s_addc_u32 s{base+1}, s{ptr+1}, 0")
        A(f"s_mov_b32 s{base+2}, {size}"); A(f"s_mov_b32 s{base+3}, 0x20000")
    def bf16r(dst, src):
        A(f"v_cvt_pk_bf16_f32 v{dst}, v{src}, v{src}")
        A(f"v_and_b32 v{dst}, 0xffff0000, v{dst}")
    def allreduce(op, r, tmp):
        for k in (8, 4, 2, 1):
            A(f"{op}_dpp v{r}, v{r}, v{r} row_ror:{k} row_mask:0xf bank_mask:0xf")
        A(f"v_mov_b32 v{tmp}, v{r}"); A(f"v_permlane16_swap_b32 v{r}, v{tmp}"); A(f"{op} v{r}, v{r}, v{tmp}")
        A(f"v_mov_b32 v{tmp}, v{r}"); A(f"v_permlane32_swap_b32 v{r}, v{tmp}"); A(f"{op} v{r}, v{r}, v{tmp}")
    def lds_signal(off):
        A("s_waitcnt lgkmcnt(0)")
        A(f"v_mov_b32 v{vTMP}, {CNT+off}"); A(f"v_mov_b32 v{vSIG}, 1")
        A("s_mov_b64 exec, 1")
        A(f"ds_add_u32 v{vTMP}, v{vSIG}")
        A("s_mov_b64 exec, -1")
    def lds_wait(off, n, nap=0):
        lab = A.label("Lw")
        A(f"v_mov_b32 v{vTMP}, {CNT+off}")
        A(f"s_mov_b32 s{sSPIN2}, {SPIN_LIMIT*4}")
        A(f"{lab}:")
        A(f"ds_read_b32 v{vSIG}, v{vTMP}")
        A("s_waitcnt lgkmcnt(0)")
        A(f"v_readfirstlane_b32 s{sT0}, v{vSIG}")
        A(f"s_cmp_ge_u32 s{sT0}, {n}")
        A(f"s_cbranch_scc1 {lab}_ok")
        if nap: A(f"s_sleep {nap}")
        A(f"s_sub_u32 s{sSPIN2}, s{sSPIN2}, 1")
        A(f"s_cmp_lg_u32 s{sSPIN2}, 0")
        A(f"s_cbranch_scc1 {lab}")
        A(f"{lab}_ok:")
    def mfma_row(areg, xreg, breg, dreg, dpp=None):
        for k in range(4):
            if dpp is None: A(f"v_and_b32 v{areg+k}, v{xreg}, v{vM+k}")
            else: A(f"v_and_b32_dpp v{areg+k}, v{xreg}, v{vM+k} row_newbcast:{dpp} row_mask:0xf bank_mask:0xf")
        A(f"v_mfma_f32_16x16x32_bf16 {r4(dreg)}, {r4(areg)}, {r4(breg)}, {r4(dreg)}")
    def mfma_rows(xregs, bregs, dreg):
        n = len(xregs)
        for k in range(4): A(f"v_and_b32 v{vA0+k}, v{xregs[0]}, v{vM+k}")
        for i in range(n):
            cur = vA0 if i % 2 == 0 else vA1; nxt = vA1 if i % 2 == 0 else vA0
            if i + 1 < n:
                for k in range(4): A(f"v_and_b32 v{nxt+k}, v{xregs[i+1]}, v{vM+k}")
            A(f"v_mfma_f32_16x16x32_bf16 {r4(dreg)}, {r4(cur)}, {r4(bregs[i])}, {r4(dreg)}")
    def zero4(r):
        for k in range(4): A(f"v_mov_b32 v{r+k}, 0")
    def stamp(idx):
        if stamps and (not lite or idx in (4, 8)):
            A(f"s_memrealtime s[{sT4}:{sT5}]"); A("s_waitcnt lgkmcnt(0)")
            A(f"v_writelane_b32 v{vST}, s{sT4}, {idx}")
    def stamp_loop(base, cntreg, top):
        if stamps and not lite:
            A(f"s_memrealtime s[{sT4}:{sT5}]"); A("s_waitcnt lgkmcnt(0)")
            A(f"s_sub_u32 s{sT5}, {base+top}, s{cntreg}"); A(f"s_mov_b32 m0, s{sT5}"); A("s_nop 0")
            A(f"v_writelane_b32 v{vST}, s{sT4}, m0")
    def stamp_store(off):
        if stamps:
            A(f"s_lshl_b32 s{sT0}, s2, 9"); A(f"s_add_u32 s{sT0}, s{sT0}, {0x700000+off}")
            A(f"v_lshlrev_b32 v{vTMP}, 2, v{vLANE}")
            A(f"v_writelane_b32 v{vST}, s{sSTAMP0}, 0")
            A(f"buffer_store_dword v{vST}, v{vTMP}, {WSR}, s{sT0} offen")
    def silu(dst, x, t1, t2):
        A(f"v_mul_f32 v{t1}, 0xbfb8aa3b, v{x}")
        A(f"v_exp_f32 v{t1}, v{t1}")
        A(f"v_add_f32 v{t1}, 1.0, v{t1}")
        A(f"v_rcp_f32 v{t2}, v{t1}")
        A(f"v_mul_f32 v{dst}, v{x}, v{t2}")
        bf16r(dst, dst)
    def exp_diff(dst, a, b):
        A(f"v_sub_f32 v{dst}, v{a}, v{b}")
        A(f"v_mul_f32 v{dst}, {hex(LOG2E)}, v{dst}")
        A(f"v_exp_f32 v{dst}, v{dst}")
    def check_sentinel(regs, tmp):
        regs = list(regs)
        if len(regs) >= 3:
            A(f"v_max3_u32 v{tmp}, v{regs[0]}, v{regs[1]}, v{regs[2]}"); i = 3
        else:
            A(f"v_max_u32 v{tmp}, v{regs[0]}, v{regs[1]}"); i = 2
        while i < len(regs):
            if i + 1 < len(regs): A(f"v_max3_u32 v{tmp}, v{tmp}, v{regs[i]}, v{regs[i+1]}"); i += 2
            else: A(f"v_max_u32 v{tmp}, v{tmp}, v{regs[i]}"); i += 1
        A(f"v_cmp_eq_u32 vcc, -1, v{tmp}")
        A(f"s_cmp_eq_u64 vcc, 0")
    def check_tags(regs, tmp):
        regs = list(regs)
        A(f"v_xor_b32 v{tmp}, s{sTAG}, v{regs[0]}")
        if len(regs) > 2:
            A(f"v_xor_b32 v{tmp+1}, s{sTAG}, v{regs[1]}")
            for i, r in enumerate(regs[2:]):
                A(f"v_bitop3_b32 v{tmp+(i&1)}, v{r}, s{sTAG}, v{tmp+(i&1)} bitop3:0xbe")
            A(f"v_or_b32 v{tmp}, v{tmp}, v{tmp+1}")
        else:
            for r in regs[1:]: A(f"v_bitop3_b32 v{tmp}, v{r}, s{sTAG}, v{tmp} bitop3:0xbe")
        A(f"v_cmp_ne_u32 vcc, 0, v{tmp}")
        A(f"s_cmp_eq_u64 vcc, 0")
    def poll_masked(name, issue, regs, tmp, tags=False, nap=0):
        A(f"s_mov_b32 s{sSPIN}, {SPIN_LIMIT}")
        A(f"{name}:")
        issue()
        A("s_waitcnt vmcnt(0)")
        if tags: check_tags(regs, tmp)
        else: check_sentinel(regs, tmp)
        A(f"s_cbranch_scc1 {name}_ok")
        A("s_mov_b64 exec, vcc")
        if nap: A(f"s_sleep {nap}")
        A(f"s_sub_u32 s{sSPIN}, s{sSPIN}, 1"); A(f"s_cmp_lg_u32 s{sSPIN}, 0"); A(f"s_cbranch_scc1 {name}")
        A(f"{name}_ok:")
        A("s_mov_b64 exec, -1")
    def poll_pipe(name, issue, nloads, regs, tmp, depth):
        A(f"s_mov_b32 s{sSPIN}, {SPIN_LIMIT}")
        for _ in range(depth): issue()
        A(f"{name}:")
        A(f"s_waitcnt vmcnt({nloads * (depth - 1)})")
        check_sentinel(regs, tmp)
        A(f"s_cbranch_scc1 {name}_ok")
        A("s_mov_b64 exec, vcc")
        issue()
        A(f"s_sub_u32 s{sSPIN}, s{sSPIN}, 1"); A(f"s_cmp_lg_u32 s{sSPIN}, 0"); A(f"s_cbranch_scc1 {name}")
        A(f"{name}_ok:")
        A("s_mov_b64 exec, -1")
    def int_sum(regs, dst):
        regs = list(regs)
        A(f"v_add3_u32 v{dst}, v{regs[0]}, v{regs[1]}, v{regs[2]}"); i = 3
        while i < len(regs):
            if i + 1 < len(regs): A(f"v_add3_u32 v{dst}, v{dst}, v{regs[i]}, v{regs[i+1]}"); i += 2
            else: A(f"v_add_u32 v{dst}, v{dst}, v{regs[i]}"); i += 1
    def poll_sum(name, issue, regs, tmp, starget, nap=0, rowreduce=False, masked=True):
        A(f"s_mov_b32 s{sSPIN}, {SPIN_LIMIT}")
        A(f"{name}:")
        issue()
        A("s_waitcnt vmcnt(0)")
        int_sum(regs, tmp)
        if rowreduce:
            for k in (8, 4, 2, 1): A(f"v_add_u32_dpp v{tmp}, v{tmp}, v{tmp} row_ror:{k} row_mask:0xf bank_mask:0xf")
        A(f"v_cmp_ne_u32 vcc, s{starget}, v{tmp}"); A("s_cmp_eq_u64 vcc, 0")
        A(f"s_cbranch_scc1 {name}_ok")
        if masked: A("s_mov_b64 exec, vcc")
        if nap: A(f"s_sleep {nap}")
        A(f"s_sub_u32 s{sSPIN}, s{sSPIN}, 1"); A(f"s_cmp_lg_u32 s{sSPIN}, 0"); A(f"s_cbranch_scc1 {name}")
        A(f"{name}_ok:")
        A("s_mov_b64 exec, -1")
    def poll2(name, issue, nloads, setA, setB, nregs, process, tmp):
        A(f"s_mov_b32 s{sSPIN}, {SPIN_LIMIT}")
        issue(setA)
        A(f"{name}_loop:")
        issue(setB)
        A(f"s_waitcnt vmcnt({nloads})")
        check_sentinel(range(setA, setA + nregs), tmp)
        A(f"s_cbranch_scc1 {name}_okA")
        issue(setA)
        A(f"s_waitcnt vmcnt({nloads})")
        check_sentinel(range(setB, setB + nregs), tmp)
        A(f"s_cbranch_scc1 {name}_okB")
        A(f"s_sub_u32 s{sSPIN}, s{sSPIN}, 1"); A(f"s_cmp_lg_u32 s{sSPIN}, 0")
        A(f"s_cbranch_scc0 {name}_okB")
        A(f"s_branch {name}_loop")
        A(f"{name}_okB:")
        process(setB)
        A(f"s_branch {name}_end")
        A(f"{name}_okA:")
        process(setA)
        A(f"{name}_end:")

    def g_process(sb):
        for r in range(4):
            A(f"v_add_f32 v{vT+r}, v{sb+r}, v{sb+4+r}"); A(f"v_add_f32 v{vT+4+r}, v{sb+8+r}, v{sb+12+r}")
            A(f"v_add_f32 v{vT+8+r}, v{sb+16+r}, v{sb+20+r}"); A(f"v_add_f32 v{vT+12+r}, v{sb+24+r}, v{sb+28+r}")
        for r in range(4):
            A(f"v_add_f32 v{vT+r}, v{vT+r}, v{vT+4+r}"); A(f"v_add_f32 v{vT+8+r}, v{vT+8+r}, v{vT+12+r}")
        for r in range(4): A(f"v_add_f32 v{vT+r}, v{vT+r}, v{vT+8+r}")
    def g_finish():
        for r in range(4): A(f"v_mov_b32 v{vT+4+r}, v{vT+r}")
        for r in range(4): A(f"v_permlane16_swap_b32 v{vT+r}, v{vT+4+r}")
        for r in range(4): A(f"v_add_f32 v{vT+r}, v{vT+r}, v{vT+4+r}")
        for r in range(4): A(f"v_mov_b32 v{vT+4+r}, v{vT+r}")
        for r in range(4): A(f"v_permlane32_swap_b32 v{vT+r}, v{vT+4+r}")
        for r in range(4): A(f"v_add_f32 v{vT+r}, v{vT+r}, v{vT+4+r}")
        for r in range(4): bf16r(vT + r, vT + r)
    def GATE():
        A(f"v_lshlrev_b32 v{vU+26}, 10, v{vG}"); A(f"v_add_u32 v{vU+26}, v{vU+26}, v{(vU + 28)}")
        A(f"v_lshlrev_b32 v{vU+25}, 11, v{vG}")
        A(f"v_bfe_u32 v{vT}, v{vLANE}, 3, 1"); A(f"v_lshl_add_u32 v{vU+25}, v{vT}, 7, v{vU+25}")
        A(f"v_lshl_add_u32 v{vU+25}, v{vU+29}, 2, v{vU+25}")
        A(f"s_lshl_b32 s{sT5}, s{sTAG}, 3")
        def gy_issue():
            A(f"s_lshl_b32 s{sT3}, s{sSUB}, 16"); A(f"s_add_u32 s{sT3}, s{sT3}, {WS_XY}")
            A(f"s_lshl_b32 s{sT1}, s{sK4}, 5"); A(f"s_add_u32 s{sT2}, s{sT3}, s{sT1}"); A(f"s_add_u32 s{sT2}, s{sT2}, 1024")
            A(f"s_lshl_b32 s{sT1}, s{sK4}, 7"); A(f"s_add_u32 s{sT3}, s{sT3}, s{sT1}")
            for tt in range(8):
                A(f"buffer_load_dwordx4 {r4(slot(8+tt))}, v{vU+26}, {WSR}, s{sT3} offen sc1")
                A(f"buffer_load_dword v{slot(16)+tt}, v{vU+25}, {WSR}, s{sT2} offen sc1")
                if tt < 7: A(f"s_add_u32 s{sT3}, s{sT3}, 8192"); A(f"s_add_u32 s{sT2}, s{sT2}, 8192")
        if "xyget" not in skip: poll_sum("L_gy", gy_issue, range(slot(8), slot(8) + 40), vT, sT5, nap=napgy)
        g_process(slot(8)); g_finish()
        for r in range(4): silu(vD + r, vT + r, vT + 9, vT + 10)
        A("s_mov_b64 exec, 0xffff")
        A(f"ds_write_b128 v{vL16}, {r4(vD)} offset:{RED}")
        A("s_mov_b64 exec, -1")
        lds_signal(C_G)
        pass

    A(f"{KNAME}:")
    A("s_cmp_ge_u32 s2, 256")
    A("s_cbranch_scc1 L_end")
    A(f"s_load_dwordx16 s[8:23], s[0:1], 0")
    A(f"s_load_dwordx8 s[24:31], s[0:1], 64")
    if stamps or dbgtime: A(f"s_memrealtime s[{sSTAMP0}:{sSTAMP0+1}]")
    A(f"v_and_b32 v{vLANE}, 63, v0")
    A(f"v_lshrrev_b32 v{vTMP}, 6, v0")
    A(f"v_lshlrev_b32 v{vL16}, 4, v{vLANE}")
    A(f"v_readfirstlane_b32 s{sW}, v{vTMP}")
    A(f"s_and_b32 s{sT0}, s2, 7"); A(f"s_lshl_b32 s{sH}, s{sT0}, 2")
    A(f"s_lshr_b32 s{sT1}, s2, 3"); A(f"s_and_b32 s{sT0}, s{sT1}, 3"); A(f"s_add_u32 s{sH}, s{sH}, s{sT0}")
    A(f"s_lshr_b32 s{sSUB}, s{sT1}, 2")
    A(f"s_lshr_b32 s{sB}, s{sSUB}, 2"); A(f"s_and_b32 s{sSPLIT}, s{sSUB}, 3")
    A(f"s_lshl_b32 s{sBOXH}, s{sH}, 3"); A(f"s_add_u32 s{sBOXH}, s{sBOXH}, s{sSUB}")
    A(f"s_lshl_b32 s{sBOXC}, s{sSUB}, 5"); A(f"s_add_u32 s{sBOXC}, s{sBOXC}, s{sH}"); A(f"s_lshl_b32 s{sBOXC}, s{sBOXC}, 10")
    A(f"s_mul_i32 s{sROT}, s2, {rotk*16384}"); A(f"s_and_b32 s{sROT}, s{sROT}, 0xfffff")
    A(f"s_sub_u32 s{sHW}, s{sW}, 4")
    A(f"v_lshrrev_b32 v{vG}, 4, v{vLANE}")
    A(f"v_and_b32 v{vC}, 15, v{vLANE}")
    vWQ = vU + 20
    A(f"v_lshlrev_b32 v{vWQ}, 13, v{vG}")
    A(f"v_lshl_add_u32 v{vWQ}, v{vC}, 4, v{vWQ}")
    A("s_waitcnt lgkmcnt(0)")
    A(f"s_add_u32 s{sT4}, s{sWS}, {WS_Z}"); A(f"s_addc_u32 s{sT5}, s{sWS+1}, 0")
    A(f"s_load_dword s{sTAG}, s[{sT4}:{sT5}], 0")
    srd(SRD_A, sX, 4096)
    sPIV = 52
    vXR = vU + 8
    vF1 = vU + 21; vWD = vU + 22; vWD2 = vU + 23
    A(f"s_cmp_ge_u32 s{sW}, 4")
    A("s_cbranch_scc1 L_helper_issue")

    vms = VM(A)
    A(f"s_and_b32 s{sT0}, s{sW}, 1"); A(f"s_lshl_b32 s{sT0}, s{sT0}, 11")
    A(f"s_load_dword s{sPIV}, s[{sX}:{sX+1}], s{sT0}")
    A(f"s_lshr_b32 s{sT1}, s{sW}, 1"); A(f"s_lshl_b32 s{sT1}, s{sT1}, 10"); A(f"s_add_u32 s{sT0}, s{sT0}, s{sT1}")
    A(f"buffer_load_dwordx4 {r4(vXR)}, v{vL16}, s[{SRD_A}:{SRD_A+3}], s{sT0} offen"); vms.issue("x")
    A(f"s_lshl_b32 s{sT0}, s{sH}, 8")
    srd(SRD_Q, sWQ, 8388608 - 31 * 256, add=sT0)
    A(f"s_lshl_b32 s{sT0}, s{sSUB}, 5"); A(f"s_lshl_b32 s{sT1}, s{sW}, 3"); A(f"s_add_u32 s{sT0}, s{sT0}, s{sT1}"); A(f"s_lshl_b32 s{sOFF}, s{sT0}, 15")
    WQS = 16
    for n in range(8):
        A(f"buffer_load_dwordx4 {r4(slot(WQS+n))}, v{vWQ}, s[{SRD_Q}:{SRD_Q+3}], s{sOFF} offen {wqflag}"); vms.issue(("wq", n))
        if n < 7: A(f"s_add_u32 s{sOFF}, s{sOFF}, 32768")
    A(f"v_mov_b32 v{vX}, 0"); A(f"v_lshlrev_b32 v{vX+1}, 2, v{vLANE}")
    A(f"s_mov_b64 exec, 0xffff")
    A(f"ds_write_b32 v{vX+1}, v{vX} offset:{CNT}")
    A("s_mov_b64 exec, -1")
    srd(SRD_WS, sWS, 0x1000000)
    srd(SRD_B, sX, 0)
    A(f"s_lshl_b32 s{sT0}, s{sB}, 5"); A(f"s_add_u32 s{sT0}, s{sT0}, s{sH}"); A(f"s_lshl_b32 s{sT0}, s{sT0}, 2")
    A(f"s_add_u32 s{sT0}, s{sT0}, s{sSPLIT}"); A(f"s_lshl_b32 s{sT0}, s{sT0}, 20")
    srd(SRD_C, sK, 0x100000, add=sT0)
    srd(SRD_D, sV, 0x100000, add=sT0)
    A(f"s_lshl_b32 s{sT0}, s{sW}, 12"); A(f"s_add_u32 s{sRUN}, s{sROT}, s{sT0}")
    for r in (vF1, vWD, vWD2, vU + 28, vU + 30): A(f"v_mov_b32 v{r}, 0")
    A("s_waitcnt lgkmcnt(0)")
    A("s_barrier")
    cur = {"vm": vms}
    def kv_issue(idx, srdb, tag, state, ring):
        piece = idx >> 2
        key = (srdb, piece, state.get("epoch", 0))
        if state.get("cur") != key:
            if piece == 0: A(f"s_and_b32 s{sOFF}, s{sRUN}, 0xfffff")
            else:
                A(f"s_add_u32 s{sOFF}, s{sRUN}, {piece*16384}"); A(f"s_and_b32 s{sOFF}, s{sOFF}, 0xfffff")
            state["cur"] = key
        sl = idx if (state.get('direct') and idx < 32) else (idx + state.get('slot0', 0)) % ring
        A(f"buffer_load_dwordx4 {r4(slot(sl))}, v{vL16}, s[{srdb}:{srdb+3}], s{sOFF} offen offset:{(idx&3)*1024} {kvflag}")
        cur["vm"].issue(tag)
    def masks():
        A(f"v_and_b32 v{vU+2}, 1, v{vC}")
        A(f"v_lshlrev_b32 v{vU+2}, 4, v{vU+2}")
        A(f"v_mov_b32 v{vU+3}, 0xffff")
        A(f"v_lshlrev_b32 v{vU+3}, v{vU+2}, v{vU+3}")
        A(f"v_bfe_u32 v{vU+4}, v{vC}, 1, 2")
        for k in range(4):
            A(f"v_cmp_eq_u32 vcc, {k}, v{vU+4}")
            A(f"v_cndmask_b32 v{vM+k}, 0, v{vU+3}, vcc")
        A(f"v_lshrrev_b32 v{vU+2}, 3, v{vC}")
        A(f"v_lshl_add_u32 v{vBG}, v{vU+2}, 2, v{vG}")
        A(f"v_mul_u32_u24 v{vXA}, {XSTR}, v{vBG}")
    masks()
    A(f"s_mov_b32 s{sBIT0}, 0xaaaaaaaa"); A(f"s_mov_b32 s{sBIT0+1}, 0xaaaaaaaa")
    A(f"s_mov_b32 s{sBIT1}, 0xcccccccc"); A(f"s_mov_b32 s{sBIT1+1}, 0xcccccccc")
    A(f"s_add_u32 s{sTAG}, s{sTAG}, 1")
    A(f"s_lshl_b32 s{sPIV}, s{sPIV}, 16")
    vms.wait("x")
    st = {}
    for n in range(WE): kv_issue(n, SRD_C, ("k", n), st, 16)
    stamp(9)
    vY = vT; vZ = vT + 8
    for k in range(4):
        A(f"v_lshlrev_b32 v{vY+2*k}, 16, v{vXR+k}"); A(f"v_and_b32 v{vY+2*k+1}, 0xffff0000, v{vXR+k}")
    for k in range(8): A(f"v_subrev_f32 v{vZ+k}, s{sPIV}, v{vY+k}")
    vS = vX; vSB = vX + 1; vS2 = vX + 2; vMEAN = vX + 6
    A(f"v_add_f32 v{vS}, v{vZ}, v{vZ+1}"); A(f"v_mul_f32 v{vSB}, v{vZ}, v{vZ}")
    A(f"v_add_f32 v{vS2}, v{vZ+2}, v{vZ+3}"); A(f"v_mul_f32 v{vS2+1}, v{vZ+1}, v{vZ+1}")
    for k in (4, 6):
        A(f"v_add_f32 v{vS}, v{vS}, v{vZ+k}"); A(f"v_add_f32 v{vS2}, v{vS2}, v{vZ+k+1}")
    for k in (2, 4, 6):
        A(f"v_fmac_f32 v{vSB}, v{vZ+k}, v{vZ+k}"); A(f"v_fmac_f32 v{vS2+1}, v{vZ+k+1}, v{vZ+k+1}")
    A(f"v_add_f32 v{vS}, v{vS}, v{vS2}"); A(f"v_add_f32 v{vSB}, v{vSB}, v{vS2+1}")
    fill = [f"s_and_b32 s{sT0}, s{sW}, 1", f"s_mul_i32 s{sT1}, s{sT0}, {4*XSTR}",
            f"s_lshr_b32 s{sT2}, s{sW}, 1", f"s_lshl_b32 s{sT3}, s{sT2}, 9", f"s_add_u32 s{sT1}, s{sT1}, s{sT3}",
            f"s_lshl_b32 s{sT0}, s{sT0}, 4", f"s_lshl_b32 s{sT2}, s{sT2}, 3", f"s_add_u32 s{sT2}, s{sT2}, s{sT0}"]
    for i, k in enumerate((8, 4, 2, 1)):
        A(f"v_add_f32_dpp v{vS}, v{vS}, v{vS} row_ror:{k} row_mask:0xf bank_mask:0xf")
        A(f"v_add_f32_dpp v{vSB}, v{vSB}, v{vSB} row_ror:{k} row_mask:0xf bank_mask:0xf")
        A(fill[2*i]); A(fill[2*i+1])
    for swap in ("v_permlane16_swap_b32", "v_permlane32_swap_b32"):
        A(f"v_mov_b32 v{vS2}, v{vS}"); A(f"v_mov_b32 v{vS2+1}, v{vSB}")
        A(f"{swap} v{vS}, v{vS2}"); A(f"{swap} v{vSB}, v{vS2+1}")
        A(f"v_add_f32 v{vS}, v{vS}, v{vS2}"); A(f"v_add_f32 v{vSB}, v{vSB}, v{vS2+1}")
    vXW = vU + 9 + 3
    A(f"v_lshlrev_b32 v{vXW}, 3, v{vLANE}")
    A(f"v_add_u32 v{vXW}, s{sT1}, v{vXW}")
    A(f"v_mov_b32 v{vS2}, s{sT2}"); A(f"v_mov_b32 v{vXW+1}, s{sT0}")
    A("s_mov_b64 exec, 1")
    A(f"ds_write_b64 v{vS2}, v[{vS}:{vS+1}] offset:{STAT}")
    A("s_mov_b64 exec, -1")
    lds_signal(C_STAT)
    lds_wait(C_STAT, 4)
    A(f"ds_read_b128 {r4(vZ)}, v{vXW+1} offset:{STAT}")
    A("s_waitcnt lgkmcnt(0)")
    A(f"v_add_f32 v{vS}, v{vZ}, v{vZ+2}"); A(f"v_add_f32 v{vSB}, v{vZ+1}, v{vZ+3}")
    A(f"v_mul_f32 v{vS}, 0x3a800000, v{vS}"); A(f"v_mul_f32 v{vSB}, 0x3a800000, v{vSB}")
    A(f"v_add_f32 v{vMEAN}, s{sPIV}, v{vS}")
    A(f"v_fma_f32 v{vS}, -v{vS}, v{vS}, v{vSB}")
    A(f"v_max_f32 v{vS}, 0, v{vS}")
    bf16r(vS, vS)
    A(f"v_add_f32 v{vS}, 0x3727c5ac, v{vS}")
    bf16r(vS, vS)
    vSQ = vX + 3; vR = vX + 4; vE = vX + 5
    A(f"v_sqrt_f32 v{vSQ}, v{vS}")
    bf16r(vMEAN, vMEAN)
    A(f"v_rcp_f32 v{vR}, v{vSQ}")
    A(f"v_fma_f32 v{vE}, -v{vSQ}, v{vSQ}, v{vS}")
    A(f"v_mul_f32 v{vE}, 0.5, v{vE}")
    A(f"v_fma_f32 v{vSQ}, v{vE}, v{vR}, v{vSQ}")
    bf16r(vSQ, vSQ)
    A(f"v_rcp_f32 v{vR}, v{vSQ}")
    for k in range(8): A(f"v_sub_f32 v{vY+k}, v{vY+k}, v{vMEAN}")
    for k in range(8): bf16r(vY + k, vY + k)
    for k in range(8): A(f"v_mul_f32 v{vZ+k}, v{vY+k}, v{vR}")
    vZ2 = vX + 8
    for k in range(8): A(f"v_fma_f32 v{vZ2+k}, -v{vZ+k}, v{vSQ}, v{vY+k}")
    for k in range(8): A(f"v_fma_f32 v{vZ+k}, v{vZ2+k}, v{vR}, v{vZ+k}")
    for g in range(4):
        A(f"v_cvt_pk_bf16_f32 v{vY+2*g}, v{vZ+g}, v{vZ+g}"); A(f"v_cvt_pk_bf16_f32 v{vY+2*g+1}, v{vZ+g+4}, v{vZ+g+4}")
    for g in range(4): A(f"ds_write_b64 v{vXW}, v[{vY+2*g}:{vY+2*g+1}] offset:{XDUP + g*XSTR}")
    lds_signal(C_XDUP)
    A(f"s_lshl_b32 s{sT0}, s{sSUB}, 7"); A(f"s_lshl_b32 s{sT1}, s{sW}, 5"); A(f"s_add_u32 s{sT0}, s{sT0}, s{sT1}")
    A(f"v_add_u32 v{vU+24}, s{sT0}, v{vXA}")
    zero4(vD)
    lds_wait(C_XDUP, 4)
    stamp(1)
    A(f"ds_read_b128 {r4(vX)}, v{vU+24} offset:{XDUP}")
    A(f"ds_read_b128 {r4(vX+4)}, v{vU+24} offset:{XDUP+16}")
    A(f"s_lshl_b32 s{sT0}, s{sW}, 10")
    A(f"v_add_u32 v{vU+25}, s{sT0}, v{vL16}")
    vms.wait(("wq", 7))
    A("s_waitcnt lgkmcnt(0)")
    mfma_rows([vX + n for n in range(8)], [slot(WQS + n) for n in range(8)], vD)
    A(f"ds_write_b128 v{vU+25}, {r4(vD)} offset:{QD}")
    lds_signal(C_QD)
    vm = vms
    st = {"direct": True}
    for n in range(WE, KPRE):
        A(f"s_waitcnt vmcnt({WE-1})")
        kv_issue(n, SRD_C, ("k", n), st, 16)
    vm.q = [("k", n) for n in range(KPRE)]
    if "qwait" not in skip: lds_wait(C_QRDY, 1)
    A(f"v_lshlrev_b32 v{vTMP}, 4, v{vC}")
    A(f"ds_read_b128 {r4(vQ)}, v{vTMP} offset:{QPK}")
    vMX = vU + 25; vSA = vU + 26; vSC = vU + 27; vS1 = vU + 28; vLs = vU + 29; vE1 = vU + 30; vE2 = vU + 31
    A(f"v_mov_b32 v{vMX}, 0xff800000"); A(f"v_mov_b32 v{vLs}, 0")
    A(f"s_lshl_b32 s{sT0}, s{sW}, 12")
    A(f"v_lshlrev_b32 v{vSA}, 2, v{vLANE}")
    A(f"v_add_u32 v{vSA}, s{sT0}, v{vSA}")
    A("s_waitcnt lgkmcnt(0)")
    if dbg:
        A(f"s_lshl_b32 s{sT0}, s2, 14"); A(f"s_lshl_b32 s{sT1}, s{sW}, 10"); A(f"s_add_u32 s{sT0}, s{sT0}, s{sT1}"); A(f"s_add_u32 s{sT0}, s{sT0}, {WS_DBG}")
        A(f"buffer_store_dwordx4 {r4(vQ)}, v{vL16}, {WSR}, s{sT0} offen"); A("s_waitcnt vmcnt(0)")
    stamp(2)
    def kpost(T):
        o = []
        for j in range(8): o.append(f"v_add_f32_dpp v{T+j}, v{T+j}, v{T+j} row_ror:8 row_mask:0xf bank_mask:0x3")
        for j in range(8): o.append(f"v_add_f32_dpp v{T+j}, v{T+j+8}, v{T+j+8} row_ror:8 row_mask:0xf bank_mask:0xc")
        for j in range(4): o.append(f"v_add_f32_dpp v{T+j}, v{T+j}, v{T+j} row_shl:4 row_mask:0xf bank_mask:0x5")
        for j in range(4): o.append(f"v_add_f32_dpp v{T+j}, v{T+j+4}, v{T+j+4} row_shr:4 row_mask:0xf bank_mask:0xa")
        for j in range(4): o.append(f"v_add_f32_dpp v{T+8+j}, v{T+j}, v{T+j} quad_perm:[2,3,0,1] row_mask:0xf bank_mask:0xf")
        o.append(f"v_cndmask_b32 v{T}, v{T+8}, v{T+10}, s[{sBIT1}:{sBIT1+1}]")
        o.append(f"v_cndmask_b32 v{T+1}, v{T+9}, v{T+11}, s[{sBIT1}:{sBIT1+1}]")
        o.append(f"v_add_f32_dpp v{T+8}, v{T}, v{T} quad_perm:[1,0,3,2] row_mask:0xf bank_mask:0xf")
        o.append(f"v_add_f32_dpp v{T+9}, v{T+1}, v{T+1} quad_perm:[1,0,3,2] row_mask:0xf bank_mask:0xf")
        o.append(f"v_cndmask_b32 v{vSC}, v{T+8}, v{T+9}, s[{sBIT0}:{sBIT0+1}]")
        o += [f"v_cvt_pk_bf16_f32 v{vSC}, v{vSC}, v{vSC}", f"v_and_b32 v{vSC}, 0xffff0000, v{vSC}",
              f"v_mul_f32 v{vSC}, {hex(SCALE)}, v{vSC}",
              f"v_cvt_pk_bf16_f32 v{vSC}, v{vSC}, v{vSC}", f"v_and_b32 v{vSC}, 0xffff0000, v{vSC}",
              f"ds_write_b32 v{vSA}, v{vSC} offset:{SCO}",
              f"v_max_f32 v{vS1}, v{vMX}, v{vSC}",
              f"v_sub_f32 v{vE1}, v{vMX}, v{vS1}", f"v_sub_f32 v{vE2}, v{vSC}, v{vS1}",
              f"v_mul_f32 v{vE1}, {hex(LOG2E)}, v{vE1}", f"v_mul_f32 v{vE2}, {hex(LOG2E)}, v{vE2}",
              f"v_exp_f32 v{vE1}, v{vE1}", f"v_exp_f32 v{vE2}, v{vE2}",
              f"v_mov_b32 v{vMX}, v{vS1}", f"v_add_u32 v{vSA}, 256, v{vSA}",
              f"v_fma_f32 v{vLs}, v{vLs}, v{vE1}, v{vE2}"]
        return o
    def kblock(base, T, post, issue, slot0=0):
        n = len(post); per = (n + 15) // 16
        for j in range(16):
            vm.wait(("k", base + j))
            issue(base + j)
            b = slot(slot0 + j)
            A(f"v_dot2_f32_bf16 v{T+j}, v{b}, v{vQ}, 0")
            for k in range(1, 4): A(f"v_dot2_f32_bf16 v{T+j}, v{b+k}, v{vQ+k}, v{T+j}")
            for ins in post[j*per:(j+1)*per]: A(ins)
    def retag(name, shift):
        vm.q = [((name, t[1] + shift) if (isinstance(t, tuple) and t[0] == name) else t) for t in vm.q]
    T0, T1 = vT, vX
    def steady(srdb, nm, ring):
        assert DP[3] == 0
        def f(n):
            tgt = n + W - DP[n % 4]; prev = n - 1 + W - DP[(n - 1) % 4]
            for m in range(prev + 1, tgt + 1): kv_issue(m, srdb, (nm, m), st, ring)
        return f
    st = {}
    def iss_first(n, ring, pre, srdb, nm):
        if pre < ring or W > ring - 1:
            if n + W >= pre: kv_issue(n + W, srdb, (nm, n + W), st, ring)
        else:
            if 1 <= n <= W: kv_issue(ring + n - 1, srdb, (nm, ring + n - 1), st, ring)
    st = {"direct": True}
    def iss_k01(n):
        if 1 <= n <= W: kv_issue(KPRE + n - 1, SRD_C, ("k", KPRE + n - 1), st, 16)
        elif n >= KPRE and n + W >= KPRE + W: kv_issue(n + W, SRD_C, ("k", n + W), st, 16)
    assert W < KPRE or KPRE == W or True
    if KPRE <= W + 1:
        def iss_k01(n):
            if n + W >= KPRE: kv_issue(n + W, SRD_C, ("k", n + W), st, 16)
    kblock(0, T0, [], iss_k01)
    stamp(11)
    kblock(16, T1, kpost(T0), iss_k01, slot0=16)
    stamp(12)
    retag("k", -32)
    A(f"s_add_u32 s{sRUN}, s{sRUN}, 131072")
    lds_signal(C_PROG)
    A(f"s_mov_b32 s{sCNT}, 6")
    A("L_kloop:")
    q_in = list(vm.q); st = {}
    kblock(0, T0, kpost(T1), steady(SRD_C, "k", 16))
    kblock(16, T1, kpost(T0), steady(SRD_C, "k", 16))
    retag("k", -32)
    assert vm.q == q_in, (vm.q, q_in)
    lds_signal(C_PROG)
    stamp_loop(17, sCNT, 6)
    A(f"s_add_u32 s{sRUN}, s{sRUN}, 131072")
    A(f"s_sub_u32 s{sCNT}, s{sCNT}, 1"); A(f"s_cmp_lg_u32 s{sCNT}, 0"); A("s_cbranch_scc1 L_kloop")
    st = {}
    kblock(0, T0, kpost(T1), lambda n: kv_issue(n + W, SRD_C, ("k", n + W), st, 16))
    retag("k", -16)
    A(f"s_add_u32 s{sRUN}, s{sRUN}, 65536")
    st = {}
    sRUNV = sT2
    A(f"s_lshl_b32 s{sT0}, s{sW}, 12"); A(f"s_add_u32 s{sRUNV}, s{sROT}, s{sT0}")
    VOFF = 16 if R == 32 else 0
    def issl(j):
        if j + W < 16: kv_issue(j + W, SRD_C, ("k", j + W), st, 16)
        else:
            if st.get("epoch", 0) == 0:
                st["epoch"] = 1; st["slot0"] = VOFF; A(f"s_mov_b32 s{sRUN}, s{sRUNV}")
            kv_issue(j + W - 16, SRD_D, ("v", j + W - 16), st, R)
    kblock(0, T1, kpost(T0), issl)
    for ins in kpost(T1): A(ins)
    stamp(3)
    A(f"v_mov_b32 v{vS1}, v{vMX}")
    allreduce("v_max_f32", vS1, vE1)
    exp_diff(vE1, vMX, vS1)
    A(f"v_mul_f32 v{vLs}, v{vLs}, v{vE1}")
    allreduce("v_add_f32", vLs, vE1)
    vPAIR = vX
    A(f"v_mov_b32 v{vPAIR}, v{vS1}"); A(f"v_mov_b32 v{vPAIR+1}, v{vLs}")
    A(f"s_lshl_b32 s{sT0}, s{sW}, 3"); A(f"v_mov_b32 v{vE1}, s{sT0}")
    A("s_mov_b64 exec, 1")
    A(f"ds_write_b64 v{vE1}, v[{vPAIR}:{vPAIR+1}] offset:{MLW}")
    A("s_mov_b64 exec, -1")
    lds_signal(C_MLW)
    st = {"epoch": 1, "slot0": VOFF}
    for n in range(W, R):
        A(f"s_waitcnt vmcnt({W-1})")
        kv_issue(n, SRD_D, ("v", n), st, R)
    A(f"v_subrev_u32 v{vSA}, 4096, v{vSA}")
    vL = None; vP = vU + 31; vSN = vU + 32; vP2 = vU + 33; vMG = vX + 2; vIL = vX + 3
    A(f"ds_read_b32 v{vSN}, v{vSA} offset:{SCO}")
    zero4(vD)
    if "mlwait" not in skip: lds_wait(C_MLRDY, 1)
    A(f"v_mov_b32 v{vE1}, 0")
    A(f"ds_read_b64 v[{vMG}:{vMG+1}], v{vE1} offset:{MLF}")
    stamp(10)
    def vblock(base, issue, last=False):
        A("s_waitcnt lgkmcnt(0)")
        exp_diff(vP, vSN, vMG)
        if not last:
            A(f"v_add_u32 v{vSA}, 256, v{vSA}")
            A(f"ds_read_b32 v{vSN}, v{vSA} offset:{SCO}")
        A(f"v_mul_f32 v{vP}, v{vP}, v{vIL}")
        A(f"v_cvt_pk_bf16_f32 v{vP2}, v{vP}, v{vP}")
        for j in range(16):
            vm.wait(("v", base + j))
            issue(base + j)
            mfma_row(vA0 if j % 2 == 0 else vA1, vP2, slot((base + j + VOFF) % R), vD, dpp=j)
    NB = R // 16
    vm.q = [("v", n) for n in range(R)]
    st = {"epoch": 1, "slot0": VOFF}
    for bb in range(NB):
        vblock(16 * bb, lambda n: iss_first(n, R, R, SRD_D, "v"))
    stamp(13)
    retag("v", -R)
    A(f"s_add_u32 s{sRUN}, s{sRUN}, {65536*NB}")
    assert not (W2 and NB != 1)
    nloop = 16 // NB - 2 - (N2 if W2 else 0)
    A(f"s_mov_b32 s{sCNT}, {nloop}")
    A("L_vloop:")
    q_in = list(vm.q); st = {"epoch": 1, "slot0": VOFF}
    for bb in range(NB):
        vblock(16 * bb, steady(SRD_D, "v", R))
    retag("v", -R)
    assert vm.q == q_in, (vm.q, q_in)
    stamp_loop(32, sCNT, nloop)
    A(f"s_add_u32 s{sRUN}, s{sRUN}, {65536*NB}")
    A(f"s_sub_u32 s{sCNT}, s{sCNT}, 1"); A(f"s_cmp_lg_u32 s{sCNT}, 0"); A("s_cbranch_scc1 L_vloop")
    WL = W
    if W2:
        WL = W2
        st = {"epoch": 1, "slot0": VOFF}
        def iss_grow(n):
            lo = W if n == 0 else n + W2
            for m in range(lo, n + W2 + 1): kv_issue(m, SRD_D, ("v", m), st, R)
        vblock(0, iss_grow)
        retag("v", -16)
        A(f"s_add_u32 s{sRUN}, s{sRUN}, 65536")
        if N2 > 1:
            A(f"s_mov_b32 s{sCNT}, {N2 - 1}")
            A("L_vloop2:")
            q_in = list(vm.q); st = {"epoch": 1, "slot0": VOFF}
            vblock(0, lambda n: kv_issue(n + W2, SRD_D, ("v", n + W2), st, R))
            retag("v", -16)
            assert vm.q == q_in
            A(f"s_add_u32 s{sRUN}, s{sRUN}, 65536")
            A(f"s_sub_u32 s{sCNT}, s{sCNT}, 1"); A(f"s_cmp_lg_u32 s{sCNT}, 0"); A("s_cbranch_scc1 L_vloop2")
    A(f"v_lshrrev_b32 v{vX+4}, 1, v{vG}"); A(f"v_lshlrev_b32 v{vX+4}, 9, v{vX+4}")
    A(f"v_and_b32 v{vX+5}, 1, v{vG}"); A(f"v_lshl_add_u32 v{vX+4}, v{vX+5}, 4, v{vX+4}")
    A(f"v_lshl_add_u32 v{vX+4}, v{vC}, 5, v{vX+4}")
    A(f"v_lshrrev_b32 v{vX+5}, 2, v{vX+4}")
    A(f"s_cmp_lg_u32 s{sW}, 2"); A("s_cbranch_scc1 L_noyf")
    lds_wait(C_YP, 1)
    A(f"v_lshlrev_b32 v{vX+6}, 2, v{vLANE}")
    A(f"ds_read_b128 {r4(vT)}, v{vL16} offset:{QD}")
    A(f"ds_read_b32 v{vT+4}, v{vX+6} offset:{QD+1024}")
    A("L_noyf:")
    st = {"epoch": 1, "slot0": VOFF}
    for bb in range(NB):
        vblock(16 * bb, lambda n: kv_issue(n + WL, SRD_D, ("v", n + WL), st, R) if n + WL < R else None, last=(bb == NB - 1))
    A(f"v_lshlrev_b32 v{vTMP}, 5, v{vC}")
    A(f"v_lshl_add_u32 v{vTMP}, v{vG}, 4, v{vTMP}")
    A(f"s_lshl_b32 s{sT0}, s{sBOXH}, 11"); A(f"s_lshl_b32 s{sT1}, s{sW}, 9"); A(f"s_add_u32 s{sT0}, s{sT0}, s{sT1}"); A(f"s_add_u32 s{sT0}, s{sT0}, {WS_X2}")
    A("s_mov_b32 exec_hi, 0")
    A(f"buffer_store_dwordx4 {r4(vD)}, v{vTMP}, {WSR}, s{sT0} offen sc1")
    A("s_mov_b64 exec, -1")
    stamp(4)
    A(f"s_cmp_lg_u32 s{sW}, 2"); A("s_cbranch_scc1 L_noxy")
    A(f"s_lshl_b32 s{sT0}, s{sBOXC}, 1"); A(f"s_add_u32 s{sT0}, s{sT0}, {WS_XY}")
    if "xypub" not in skip:
        A(f"buffer_store_dwordx4 {r4(vT)}, v{vX+4}, {WSR}, s{sT0} offen sc1")
        A(f"buffer_store_dword v{vT+4}, v{vX+5}, {WSR}, s{sT0} offen offset:1024 sc1")
    A("L_noxy:")
    A("s_barrier")
    if stamps:
        A(f"s_cmp_lg_u32 s{sW}, 0"); A("s_cbranch_scc1 L_nost")
        stamp_store(0)
        A("L_nost:")
    A(f"s_cmp_lg_u32 s{sW}, 1"); A("s_cbranch_scc1 L_sexit")
    A(f"s_and_b32 s{sT0}, s{sH}, 7"); A(f"s_cmp_eq_u32 s{sT0}, s{sSUB}"); A("s_cbranch_scc0 L_sexit")
    A(f"s_lshr_b32 s{sK4}, s{sH}, 3")
    A(f"v_lshlrev_b32 v{vU+28}, 10, v{vG}")
    A(f"v_bfe_u32 v{vU+26}, v{vLANE}, 3, 1"); A(f"v_lshl_add_u32 v{vU+28}, v{vU+26}, 9, v{vU+28}")
    A(f"v_and_b32 v{vU+29}, 7, v{vLANE}"); A(f"v_lshl_add_u32 v{vU+28}, v{vU+29}, 4, v{vU+28}")
    GATE()
    A("L_sexit:")
    A("s_endpgm")

    A("L_helper_issue:")
    vmh = VM(A)
    srd(SRD_WS, sWS, 0x1000000)
    srd(SRD_Q, sV if hmode == "contig" else sX, 0x4000000 if hmode == "contig" else 0)
    sSF, sRB = 53, 54
    A(f"s_and_b32 s{sSF}, s2, 7"); A(f"s_lshl_b32 s{sSF}, s{sSF}, 3"); A(f"s_lshr_b32 s{sT0}, s2, 3"); A(f"s_and_b32 s{sT1}, s{sT0}, 7"); A(f"s_add_u32 s{sSF}, s{sSF}, s{sT1}")
    A(f"s_lshr_b32 s{sRB}, s{sT0}, 3")
    A(f"v_lshrrev_b32 v{vF1}, 3, v{vC}"); A(f"v_lshl_add_u32 v{vF1}, v{vF1}, 2, v{vG}")
    A(f"v_mul_u32_u24 v{vF1}, 7168, v{vF1}")
    A(f"v_and_b32 v{vWD}, 7, v{vC}"); A(f"v_lshl_add_u32 v{vF1}, v{vWD}, 4, v{vF1}")
    A(f"v_mov_b32 v{vWD2}, 0x40000000")
    A(f"v_cmp_gt_u32 vcc, 7, v{vWD}")
    A(f"v_cndmask_b32 v{vF1}, v{vWD2}, v{vF1}, vcc")
    A(f"s_and_b32 s{sT0}, s{sHW}, 1"); A(f"s_cmp_eq_u32 s{sT0}, 0")
    A(f"s_cselect_b32 s{sT2}, s{sWG}, s{sWU}"); A(f"s_cselect_b32 s{sT3}, s{sWG+1}, s{sWU+1}")
    A(f"s_mul_i32 s{sT0}, s{sSF}, 112")
    A(f"s_add_u32 s{SRD_B}, s{sT2}, s{sT0}"); A(f"s_addc_u32 s{SRD_B+1}, s{sT3}, 0")
    A(f"s_mov_b32 s{SRD_B+2}, {1024*7168 - 63*112}"); A(f"s_mov_b32 s{SRD_B+3}, 0x20000")
    A(f"s_lshl_b32 s{sT0}, s{sRB}, 8"); A(f"s_lshr_b32 s{sT1}, s{sHW}, 1"); A(f"s_lshl_b32 s{sT1}, s{sT1}, 7")
    A(f"s_add_u32 s{sT0}, s{sT0}, s{sT1}"); A(f"s_mul_i32 s{sRUN}, s{sT0}, 7168")
    A(f"v_lshlrev_b32 v{vWD}, 11, v{vG}")
    A(f"v_lshl_add_u32 v{vWD}, v{vC}, 4, v{vWD}")
    A(f"s_cmp_lg_u32 s{sHW}, 3"); A("s_cbranch_scc0 L_wd_oob")
    A(f"v_mov_b32 v{vWD2}, v{vWD}")
    A("L_wd_oob:")
    A(f"s_mul_i32 s{sT0}, s{sH}, {112*2048}"); A(f"s_lshl_b32 s{sT1}, s{sSUB}, 8"); A(f"s_add_u32 s{sT0}, s{sT0}, s{sT1}")
    srd(SRD_C, sWD, 111 * 2048 + 256, add=sT0)
    A(f"s_lshl_b32 s{sT0}, s{sH}, 18"); A(f"s_add_u32 s{sT0}, s{sT0}, s{sT1}")
    srd(SRD_D, sWO, 127 * 2048 + 256, add=sT0)
    sHB = sCNT
    A(f"s_lshl_b32 s{sHB}, s{sHW}, 16")
    def h_issue(n):
        if n >= 32: return
        if hmode == "contig":
            A(f"s_lshl_b32 s{sOFF}, s2, 17"); A(f"s_lshl_b32 s{sT5}, s{sHW}, 10"); A(f"s_add_u32 s{sOFF}, s{sOFF}, s{sT5}"); A(f"s_add_u32 s{sOFF}, s{sOFF}, {n*4096}")
            A(f"buffer_load_dwordx4 {r4(slot(n))}, v{vL16}, s[{SRD_Q}:{SRD_Q+3}], s{sOFF} offen {wflag}")
        elif hmode == "none":
            A(f"s_mov_b32 s{sOFF}, 0")
            A(f"buffer_load_dwordx4 {r4(slot(n))}, v{vL16}, s[{SRD_A}:{SRD_A+3}], s{sOFF} offen")
        elif n < 16:
            A(f"s_add_u32 s{sOFF}, s{sRUN}, {n*57344}")
            A(f"buffer_load_dwordx4 {r4(slot(n))}, v{vF1}, s[{SRD_B}:{SRD_B+3}], s{sOFF} offen {wflag}")
        elif n < 24:
            A(f"s_add_u32 s{sOFF}, s{sHB}, {(n-16)*8192}")
            A(f"buffer_load_dwordx4 {r4(slot(n))}, v{vWD if n < 20 else vWD2}, s[{SRD_C}:{SRD_C+3}], s{sOFF} offen {wflag}")
        else:
            A(f"s_add_u32 s{sOFF}, s{sHB}, {(n-24)*8192}")
            A(f"buffer_load_dwordx4 {r4(slot(n))}, v{vWD}, s[{SRD_D}:{SRD_D+3}], s{sOFF} offen {wflag}")
        vmh.issue(("h", n))
    A("s_waitcnt lgkmcnt(0)")
    A("s_barrier")
    A(f"s_add_u32 s{sTAG}, s{sTAG}, 1")
    A(f"s_cmp_lg_u32 s{sHW}, 0"); A("s_cbranch_scc1 L_noclear")
    if "clear" in skip: A("s_branch L_noclear")
    for k in range(4): A(f"v_mov_b32 v{vD2+k}, -1")
    A(f"s_add_u32 s{sT1}, s{sBOXC}, {WS_X3}")
    A(f"buffer_store_dwordx4 {r4(vD2)}, v{vL16}, {WSR}, s{sT1} offen sc1")
    A(f"s_lshl_b32 s{sT0}, s{sBOXH}, 11"); A(f"s_add_u32 s{sT1}, s{sT0}, {WS_X2}")
    A(f"buffer_store_dwordx4 {r4(vD2)}, v{vL16}, {WSR}, s{sT1} offen sc1")
    A(f"buffer_store_dwordx4 {r4(vD2)}, v{vL16}, {WSR}, s{sT1} offen offset:1024 sc1")
    A(f"s_lshl_b32 s{sT1}, s{sBOXH}, 7"); A(f"s_add_u32 s{sT1}, s{sT1}, {WS_XM}")
    A("s_mov_b64 exec, 0xff")
    A(f"buffer_store_dwordx4 {r4(vD2)}, v{vL16}, {WSR}, s{sT1} offen sc1")
    A("s_mov_b64 exec, -1")
    A("L_noclear:")
    for n in range(WH): h_issue(n)
    masks()
    A(f"s_cmp_lg_u32 s{sHW}, 0"); A("s_cbranch_scc1 L_hstart")
    if prio: A(f"s_setprio {prio}")
    lds_wait(C_QD, 4)
    for w in range(4): A(f"ds_read_b128 {r4(vT+4*w)}, v{vL16} offset:{QD + w*1024}")
    A("s_waitcnt lgkmcnt(0)")
    for r in range(4):
        A(f"v_add_f32 v{vD+r}, v{vT+r}, v{vT+4+r}"); A(f"v_add_f32 v{vD2+r}, v{vT+8+r}, v{vT+12+r}")
    for r in range(4): A(f"v_add_f32 v{vD+r}, v{vD+r}, v{vD2+r}")
    A("s_waitcnt vmcnt(0)")
    A(f"v_add3_u32 v{vD2}, v{vD}, v{vD+1}, v{vD+2}"); A(f"v_add_u32 v{vD2}, v{vD2}, v{vD+3}")
    A(f"v_sub_u32 v{vD2}, s{sTAG}, v{vD2}")
    A(f"s_lshl_b32 s{sT0}, s{sBOXH}, 11")
    A(f"v_lshlrev_b32 v{vD2+1}, 2, v{vLANE}")
    A(f"buffer_store_dwordx4 {r4(vD)}, v{vL16}, {WSR}, s{sT0} offen sc1")
    A(f"buffer_store_dword v{vD2}, v{vD2+1}, {WSR}, s{sT0} offen offset:1024 sc1")
    stamp(16)
    A(f"v_lshrrev_b32 v{vU+25}, 5, v{vLANE}"); A(f"v_lshlrev_b32 v{vU+25}, 11, v{vU+25}")
    A(f"v_and_b32 v{vU+26}, 31, v{vLANE}")
    A(f"v_lshl_add_u32 v{vU+36}, v{vU+26}, 2, v{vU+25}")
    A(f"v_lshl_add_u32 v{vU+25}, v{vU+26}, 4, v{vU+25}")
    sQB = sT3; sQC = sT2
    A(f"s_lshl_b32 s{sQB}, s{sH}, 14"); A(f"s_lshl_b32 s{sT1}, s{sB}, 7"); A(f"s_add_u32 s{sQC}, s{sQB}, s{sT1}"); A(f"s_add_u32 s{sQC}, s{sQC}, 1024")
    A(f"s_lshl_b32 s{sT1}, s{sB}, 9"); A(f"s_add_u32 s{sQB}, s{sQB}, s{sT1}")
    QG = vT
    A(f"s_mov_b32 s{sSPIN}, {SPIN_LIMIT}")
    if qpoll == "light":
        A(f"v_and_b32 v{vU+26}, 7, v{vLANE}"); A(f"v_lshlrev_b32 v{vU+26}, 11, v{vU+26}")
        A(f"s_lshl_b32 s{sT1}, s{sH}, 14"); A(f"s_add_u32 s{sT1}, s{sT1}, 1008")
        A("L_qlight:")
        A(f"buffer_load_dwordx4 {r4(QG)}, v{vU+26}, {WSR}, s{sT1} offen sc1")
        A(f"buffer_load_dword v{QG+4}, v{vU+26}, {WSR}, s{sT1} offen offset:268 sc1")
        A("s_waitcnt vmcnt(0)")
        A(f"v_add3_u32 v{QG+5}, v{QG}, v{QG+1}, v{QG+2}"); A(f"v_add3_u32 v{QG+5}, v{QG+5}, v{QG+3}, v{QG+4}")
        A(f"v_cmp_ne_u32 vcc, s{sTAG}, v{QG+5}"); A("s_cmp_eq_u64 vcc, 0")
        A("s_cbranch_scc1 L_qfull")
        A(f"s_sub_u32 s{sSPIN}, s{sSPIN}, 1"); A(f"s_cmp_lg_u32 s{sSPIN}, 0"); A("s_cbranch_scc1 L_qlight")
        A("L_qfull:")
    A(f"s_lshl_b32 s{sT5}, s{sTAG}, 2")
    def xq_issue():
        A(f"s_mov_b32 s{sT0}, s{sQB}"); A(f"s_mov_b32 s{sT1}, s{sQC}")
        for k in range(4):
            A(f"buffer_load_dwordx4 {r4(QG+4*k)}, v{vU+25}, {WSR}, s{sT0} offen sc1")
            A(f"buffer_load_dword v{QG+16+k}, v{vU+36}, {WSR}, s{sT1} offen sc1")
            if k < 3: A(f"s_add_u32 s{sT0}, s{sT0}, 4096"); A(f"s_add_u32 s{sT1}, s{sT1}, 4096")
    poll_sum("L_qpoll", xq_issue, list(range(QG, QG + 20)), vU + 32, sT5)
    stamp(17)
    vQS = vU + 32
    for r in range(4):
        A(f"v_add_f32 v{vQS+4+r}, v{QG+r}, v{QG+4+r}"); A(f"v_add_f32 v{vQS+8+r}, v{QG+8+r}, v{QG+12+r}")
    for r in range(4): A(f"v_add_f32 v{vQS+r}, v{vQS+4+r}, v{vQS+8+r}")
    for r in range(4): A(f"v_mov_b32 v{vQS+4+r}, v{vQS+r}")
    for r in range(4): A(f"v_permlane32_swap_b32 v{vQS+r}, v{vQS+4+r}")
    for r in range(4): A(f"v_add_f32 v{vQS+r}, v{vQS+r}, v{vQS+4+r}")
    A(f"v_cvt_pk_bf16_f32 v{vQS+4}, v{vQS}, v{vQS+1}"); A(f"v_cvt_pk_bf16_f32 v{vQS+5}, v{vQS+2}, v{vQS+3}")
    A(f"v_and_b32 v{vU+25}, 1, v{vG}"); A(f"v_lshlrev_b32 v{vU+25}, 3, v{vU+25}"); A(f"v_lshl_add_u32 v{vU+25}, v{vC}, 4, v{vU+25}")
    A("s_mov_b32 exec_hi, 0")
    A(f"ds_write_b64 v{vU+25}, v[{vQS+4}:{vQS+5}] offset:{QPK}")
    A("s_mov_b64 exec, -1")
    lds_signal(C_QRDY)
    if prio: A("s_setprio 0")
    A("L_hstart:")
    vm = vmh
    vm.q = [("h", n) for n in range(WH)]
    for n in range(32 - WH):
        vm.wait(("h", n))
        h_issue(n + WH)
        if n in (0, 7, 15, 23): stamp({0: 13, 7: 14, 15: 15, 23: 18}[n])
    zero4(vD); zero4(vD2)
    A(f"s_lshl_b32 s{sT0}, s{sRB}, 8"); A(f"s_lshr_b32 s{sT1}, s{sHW}, 1"); A(f"s_lshl_b32 s{sT1}, s{sT1}, 7"); A(f"s_add_u32 s{sT0}, s{sT0}, s{sT1}")
    A(f"v_add_u32 v{vU+25}, s{sT0}, v{vXA}")
    lds_wait(C_XDUP, 4)
    vm.wait(("h", 15))
    for half in range(2):
        for q4 in range(4): A(f"ds_read_b128 {r4(vX+4*q4)}, v{vU+25} offset:{XDUP + half*64 + q4*16}")
        A("s_waitcnt lgkmcnt(0)")
        for n in range(8):
            mfma_row(vA0, vX + 2*n, slot(8*half + n), vD)
            mfma_row(vA1, vX + 2*n + 1, slot(8*half + n), vD2)
    A("s_nop 7")
    for r in range(4): A(f"v_add_f32_dpp v{vD+r}, v{vD2+r}, v{vD+r} row_ror:8 row_mask:0xf bank_mask:0xf")
    vRA = vU + 24
    A(f"s_and_b32 s{sT0}, s{sHW}, 1"); A(f"s_lshl_b32 s{sT0}, s{sT0}, 10")
    A(f"v_add_u32 v{vRA}, s{sT0}, v{vL16}")
    A(f"s_cmp_lt_u32 s{sHW}, 2"); A("s_cbranch_scc1 L_f1_keep")
    A(f"ds_write_b128 v{vRA}, {r4(vD)} offset:{RED}")
    lds_signal(C_H1)
    A("L_f1_keep:")
    stamp(2)
    A(f"s_cmp_lt_u32 s{sHW}, 2"); A("s_cbranch_scc0 L_f1_done")
    lds_wait(C_H1, 2)
    A(f"ds_read_b128 {r4(vD2)}, v{vRA} offset:{RED}")
    A("s_waitcnt lgkmcnt(0)")
    for r in range(4): A(f"v_add_f32 v{vD+r}, v{vD+r}, v{vD2+r}")
    A(f"s_cmp_eq_u32 s{sHW}, 0"); A("s_cbranch_scc1 L_f1_h0")
    A(f"ds_write_b128 v{vL16}, {r4(vD)} offset:{RED + 2048}")
    lds_signal(C_H1B)
    A("s_branch L_f1_done")
    A("L_f1_h0:")
    A(f"v_and_b32 v{vU+25}, 7, v{vC}"); A(f"v_lshl_add_u32 v{vU+25}, v{vG}, 4, v{vU+25}"); A(f"v_lshlrev_b32 v{vU+25}, 4, v{vU+25}")
    lds_wait(C_H1B, 1)
    A(f"ds_read_b128 {r4(vD2)}, v{vU+25} offset:{RED + 2048}")
    A(f"v_cmp_lt_u32 vcc, 7, v{vC}")
    A("s_waitcnt lgkmcnt(0)")
    for r in range(4): A(f"v_cndmask_b32 v{vD+r}, v{vD+r}, v{vD2+r}, vcc")
    A(f"v_and_b32 v{vU+26}, 7, v{vC}"); A(f"v_cmp_gt_u32 vcc, 7, v{vU+26}")
    for r in range(4): A(f"v_cndmask_b32 v{vD+r}, 0, v{vD+r}, vcc")
    int_sum(range(vD, vD + 4), vD2)
    for k in (8, 4, 2, 1): A(f"v_add_u32_dpp v{vD2}, v{vD2}, v{vD2} row_ror:{k} row_mask:0xf bank_mask:0xf")
    A(f"v_sub_u32 v{vD2}, s{sTAG}, v{vD2}")
    A(f"v_cmp_eq_u32 vcc, 15, v{vC}")
    A(f"v_cndmask_b32 v{vD}, v{vD}, v{vD2}, vcc")
    A(f"s_lshl_b32 s{sT0}, s{sSF}, 2"); A(f"s_add_u32 s{sT0}, s{sT0}, s{sRB}"); A(f"s_lshl_b32 s{sT0}, s{sT0}, 10"); A(f"s_add_u32 s{sT0}, s{sT0}, {WS_X1}")
    if "x1pub" not in skip: A(f"buffer_store_dwordx4 {r4(vD)}, v{vL16}, {WSR}, s{sT0} offen sc1")
    lds_wait(C_PROG, 4 * PX1, nap=32)
    A(f"s_lshl_b32 s{sT5}, s{sTAG}, 3")
    def x1_issue():
        A(f"s_lshl_b32 s{sT0}, s{sH}, 13"); A(f"s_add_u32 s{sT0}, s{sT0}, {WS_X1}")
        for k in range(8):
            if k == 4: A(f"s_add_u32 s{sT0}, s{sT0}, 4096")
            A(f"buffer_load_dwordx4 {r4(slot(k))}, v{vL16}, {WSR}, s{sT0} offen offset:{(k&3)*1024} sc1")
    if "x1get" not in skip: poll_sum("L_x1poll", x1_issue, range(slot(0), slot(0) + 32), vT, sT5, nap=32, rowreduce=True, masked=False)
    stamp(3)
    for st_ in range(2):
        for r in range(4):
            A(f"v_add_f32 v{vT+4*st_+r}, v{slot(4*st_)+r}, v{slot(4*st_+1)+r}"); A(f"v_add_f32 v{vT+8+r}, v{slot(4*st_+2)+r}, v{slot(4*st_+3)+r}")
        for r in range(4): A(f"v_add_f32 v{vT+4*st_+r}, v{vT+4*st_+r}, v{vT+8+r}")
    for r in range(8): A(f"v_mov_b32_dpp v{vX+r}, v{vT+r} row_ror:8 row_mask:0xf bank_mask:0xf")
    A(f"v_cmp_gt_u32 vcc, 7, v{vC}")
    for r in range(8):
        A(f"v_cndmask_b32 v{vT+r}, 0, v{vT+r}, vcc"); A(f"v_cndmask_b32 v{vX+r}, 0, v{vX+r}, vcc")
    A(f"v_lshrrev_b32 v{vU+25}, 1, v{vG}"); A(f"v_mul_u32_u24 v{vU+25}, {4*HSTR}, v{vU+25}")
    A(f"v_and_b32 v{vU+26}, 1, v{vG}"); A(f"v_lshl_add_u32 v{vU+26}, v{vC}, 1, v{vU+26}")
    A(f"v_lshl_add_u32 v{vU+25}, v{vU+26}, 2, v{vU+25}")
    for st_ in range(2):
        for r in range(4):
            bf16r(vT + 4*st_ + r, vT + 4*st_ + r); bf16r(vX + 4*st_ + r, vX + 4*st_ + r)
            silu(vT + 8, vT + 4*st_ + r, vT + 9, vT + 10)
            A(f"v_mul_f32 v{vT+8}, v{vT+8}, v{vX+4*st_+r}")
            A(f"v_cvt_pk_bf16_f32 v{vT+4*st_+r}, v{vT+8}, v{vT+8}")
        m = 0x007f007f if st_ == 0 else 0x01ff01ff
        A(f"s_mov_b32 exec_lo, {hex(m)}"); A(f"s_mov_b32 exec_hi, {hex(m)}")
        for r in range(4): A(f"ds_write_b32 v{vU+25}, v{vT+4*st_+r} offset:{HDUP + r*HSTR + st_*56}")
        A("s_mov_b64 exec, -1")
    lds_signal(C_H2)
    A("L_f1_done:")
    lds_wait(C_H2, 1, nap=32)
    A(f"v_mul_u32_u24 v{vU+25}, {HSTR}, v{vBG}")
    A(f"s_lshl_b32 s{sT0}, s{sHW}, 5")
    A(f"v_add_u32 v{vU+25}, s{sT0}, v{vU+25}")
    A(f"ds_read_b128 {r4(vX)}, v{vU+25} offset:{HDUP}")
    A(f"ds_read_b128 {r4(vX+4)}, v{vU+25} offset:{HDUP+16}")
    zero4(vD)
    A("s_waitcnt vmcnt(0) lgkmcnt(0)")
    for n in range(8): mfma_row(vA0 if n % 2 == 0 else vA1, vX + n, slot(16 + n), vD)
    vRA = vU + 24
    A(f"s_lshl_b32 s{sT0}, s{sHW}, 10")
    A(f"v_add_u32 v{vRA}, s{sT0}, v{vL16}")
    vPL = vU + 27
    A(f"v_lshrrev_b32 v{vPL}, 1, v{vG}"); A(f"v_lshlrev_b32 v{vPL}, 9, v{vPL}")
    A(f"v_and_b32 v{vU+26}, 1, v{vG}"); A(f"v_lshl_add_u32 v{vPL}, v{vU+26}, 4, v{vPL}")
    A(f"v_lshl_add_u32 v{vPL}, v{vC}, 5, v{vPL}")
    A(f"v_lshrrev_b32 v{vU+57}, 2, v{vPL}")
    A(f"s_lshr_b32 s{sK4}, s{sH}, 3")
    vGA = vU + 28; vOA = vU + 30
    A(f"v_lshlrev_b32 v{vGA}, 10, v{vG}")
    A(f"v_bfe_u32 v{vU+26}, v{vLANE}, 3, 1"); A(f"v_lshl_add_u32 v{vGA}, v{vU+26}, 9, v{vGA}")
    A(f"v_and_b32 v{vU+29}, 7, v{vLANE}"); A(f"v_lshl_add_u32 v{vGA}, v{vU+29}, 4, v{vGA}")
    A(f"v_lshlrev_b32 v{vOA}, 11, v{vU+26}")
    A(f"v_lshl_add_u32 v{vOA}, v{vU+29}, 3, v{vOA}")
    A(f"s_lshl_b32 s{sT0}, s{sSUB}, 8"); A(f"s_lshl_b32 s{sT1}, s{sK4}, 6"); A(f"s_add_u32 s{sT0}, s{sT0}, s{sT1}")
    A(f"v_add_u32 v{vOA}, s{sT0}, v{vOA}")
    A(f"s_and_b32 s{sT0}, s{sH}, 7"); A(f"s_cmp_eq_u32 s{sT0}, s{sSUB}"); A(f"s_cselect_b32 s{sISC}, 1, 0")
    A(f"s_cmp_eq_u32 s{sHW}, 0"); A("s_cbranch_scc1 L_f2_h0")
    A(f"ds_write_b128 v{vRA}, {r4(vD)} offset:{RED}")
    lds_signal(C_H3)
    A("s_branch L_tail")
    A("L_f2_h0:")
    lds_wait(C_H3, 3)
    for w in range(1, 4): A(f"ds_read_b128 {r4(vT+4*w)}, v{vL16} offset:{RED + w*1024}")
    A("s_waitcnt lgkmcnt(0)")
    for r in range(4):
        for w in range(1, 4): A(f"v_add_f32 v{vD+r}, v{vD+r}, v{vT+4*w+r}")
    vYC = vU + 56
    int_sum(range(vD, vD + 4), vYC)
    A(f"v_sub_u32 v{vYC}, s{sTAG}, v{vYC}")
    A(f"v_lshlrev_b32 v{vYC+1}, 2, v{vLANE}")
    A(f"ds_write_b128 v{vL16}, {r4(vD)} offset:{QD}")
    A(f"ds_write_b32 v{vYC+1}, v{vYC} offset:{QD+1024}")
    lds_signal(C_YP)
    sGB = sT3
    def g_issue(base_const):
        def f(setbase):
            A(f"s_lshl_b32 s{sGB}, s{sSUB}, 15"); A(f"s_lshl_b32 s{sT1}, s{sK4}, 7"); A(f"s_add_u32 s{sGB}, s{sGB}, s{sT1}"); A(f"s_add_u32 s{sGB}, s{sGB}, {base_const}")
            for tt in range(8):
                A(f"buffer_load_dwordx4 {r4(setbase+4*tt)}, v{vGA}, {WSR}, s{sGB} offen sc1")
                if tt < 7: A(f"s_add_u32 s{sGB}, s{sGB}, 4096")
        return f
    A("L_xm:")
    stamp(10)
    lds_wait(C_MLW, 4, nap=napml)
    if prio: A(f"s_setprio {prio}")
    vML = vT
    A(f"v_mov_b32 v{vTMP}, 0")
    A(f"ds_read_b128 {r4(vML)}, v{vTMP} offset:{MLW}")
    A(f"ds_read_b128 {r4(vML+4)}, v{vTMP} offset:{MLW+16}")
    A("s_waitcnt lgkmcnt(0)")
    vMM = vT + 8; vLL = vT + 9; vFW = vT + 10
    A(f"v_max_f32 v{vMM}, v{vML}, v{vML+2}")
    A(f"v_max3_f32 v{vMM}, v{vMM}, v{vML+4}, v{vML+6}")
    for w in range(4): exp_diff(vFW + w, vML + 2 * w, vMM)
    A(f"v_mul_f32 v{vLL}, v{vFW}, v{vML+1}")
    for w in range(1, 4): A(f"v_fmac_f32 v{vLL}, v{vFW+w}, v{vML+2*w+1}")
    A(f"s_lshl_b32 s{sT0}, s{sBOXH}, 7"); A(f"s_add_u32 s{sT0}, s{sT0}, {WS_XM}")
    A(f"v_mov_b32 v{vTMP}, 0")
    A("s_mov_b64 exec, 1")
    A(f"buffer_store_dwordx2 v[{vMM}:{vMM+1}], v{vTMP}, {WSR}, s{sT0} offen sc1")
    A("s_mov_b64 exec, -1")
    stamp(11)
    A(f"v_and_b32 v{vU+25}, 3, v{vLANE}"); A(f"v_lshlrev_b32 v{vU+25}, 7, v{vU+25}")
    A(f"s_lshl_b32 s{sT1}, s{sH}, 3"); A(f"s_lshl_b32 s{sT0}, s{sB}, 2"); A(f"s_add_u32 s{sT1}, s{sT1}, s{sT0}"); A(f"s_lshl_b32 s{sT1}, s{sT1}, 7"); A(f"s_add_u32 s{sT1}, s{sT1}, {WS_XM}")
    def xm_issue(sb): A(f"buffer_load_dwordx2 v[{sb}:{sb+1}], v{vU+25}, {WSR}, s{sT1} offen sc1")
    def xm_proc(sb):
        A(f"v_mov_b32 v{vT}, v{sb}"); A(f"v_mov_b32 v{vT+1}, v{sb+1}")
    poll2("L_xmp", xm_issue, 1, slot(0), slot(1), 2, xm_proc, vT + 4)
    A(f"v_max_f32_dpp v{vT+2}, v{vT}, v{vT} quad_perm:[1,0,3,2] row_mask:0xf bank_mask:0xf")
    A(f"v_max_f32_dpp v{vT+2}, v{vT+2}, v{vT+2} quad_perm:[2,3,0,1] row_mask:0xf bank_mask:0xf")
    exp_diff(vT + 3, vT, vT + 2)
    A(f"v_mul_f32 v{vT+3}, v{vT+3}, v{vT+1}")
    A(f"v_add_f32_dpp v{vT+3}, v{vT+3}, v{vT+3} quad_perm:[1,0,3,2] row_mask:0xf bank_mask:0xf")
    A(f"v_add_f32_dpp v{vT+3}, v{vT+3}, v{vT+3} quad_perm:[2,3,0,1] row_mask:0xf bank_mask:0xf")
    A(f"v_rcp_f32 v{vT+5}, v{vT+3}")
    A(f"v_fma_f32 v{vT+6}, -v{vT+3}, v{vT+5}, 1.0")
    A(f"v_fma_f32 v{vT+5}, v{vT+6}, v{vT+5}, v{vT+5}")
    A(f"v_mov_b32 v{vT+4}, v{vT+2}")
    A(f"v_mov_b32 v{vTMP}, 0")
    A("s_mov_b64 exec, 1")
    A(f"ds_write_b64 v{vTMP}, v[{vT+4}:{vT+5}] offset:{MLF}")
    A("s_mov_b64 exec, -1")
    lds_signal(C_MLRDY)
    if prio: A("s_setprio 0")
    stamp(12)
    A("s_waitcnt vmcnt(0)")
    A(f"s_cmp_eq_u32 s{sISC}, 0"); A("s_cbranch_scc1 L_tail")
    A(f"v_and_b32 v{vU+25}, 31, v{vLANE}"); A(f"v_lshlrev_b32 v{vU+25}, 14, v{vU+25}")
    A(f"s_lshl_b32 s{sT3}, s{sSUB}, 11"); A(f"s_add_u32 s{sT3}, s{sT3}, 1008")
    def pf_issue():
        A(f"buffer_load_dwordx4 {r4(slot(0))}, v{vU+25}, {WSR}, s{sT3} offen sc1")
        A(f"buffer_load_dword v{slot(1)}, v{vU+25}, {WSR}, s{sT3} offen offset:268 sc1")
    poll_sum("L_proof", pf_issue, range(slot(0), slot(0) + 5), vT, sTAG, nap=32)
    vXO = vU + 36
    A(f"buffer_load_dwordx2 v[{vU+40}:{vU+41}], v{vOA}, s[{SRD_A}:{SRD_A+3}], 0 offen")
    A("s_waitcnt vmcnt(0)")
    A(f"v_lshlrev_b32 v{vXO}, 16, v{vU+40}"); A(f"v_and_b32 v{vXO+1}, 0xffff0000, v{vU+40}")
    A(f"v_lshlrev_b32 v{vXO+2}, 16, v{vU+41}"); A(f"v_and_b32 v{vXO+3}, 0xffff0000, v{vU+41}")

    A("L_tail:")
    vX2A = vU + 44
    A(f"v_bfe_u32 v{vU+26}, v{vLANE}, 2, 2")
    A(f"v_lshrrev_b32 v{vX2A}, 5, v{vLANE}")
    A(f"v_lshl_add_u32 v{vX2A}, v{vX2A}, 2, v{vU+26}")
    A(f"v_lshlrev_b32 v{vX2A}, 11, v{vX2A}")
    A(f"v_bfe_u32 v{vU+26}, v{vLANE}, 4, 1"); A(f"v_and_b32 v{vU+46}, 3, v{vLANE}")
    A(f"v_lshl_add_u32 v{vU+46}, v{vU+26}, 2, v{vU+46}")
    A(f"v_lshl_add_u32 v{vX2A}, v{vU+46}, 4, v{vX2A}")
    A(f"s_lshl_b32 s{sT0}, s{sHW}, 7")
    A(f"v_add_u32 v{vX2A}, s{sT0}, v{vX2A}")
    vOW = vU + 47; vOR = vU + 48
    A(f"v_lshrrev_b32 v{vOW}, 5, v{vLANE}"); A(f"v_mul_u32_u24 v{vOW}, {4*OSTR}, v{vOW}")
    A(f"v_lshl_add_u32 v{vOW}, v{vU+46}, 2, v{vOW}")
    A(f"s_mul_i32 s{sT0}, s{sHW}, 384")
    A(f"v_add_u32 v{vOW}, s{sT0}, v{vOW}")
    A(f"v_mul_u32_u24 v{vOR}, {OSTR}, v{vBG}"); A(f"v_add_u32 v{vOR}, s{sT0}, v{vOR}")
    sX2 = sT3
    A(f"s_lshl_b32 s{sX2}, s{sH}, 14"); A(f"s_add_u32 s{sX2}, s{sX2}, {WS_X2}")
    zero4(vD)
    A("s_waitcnt vmcnt(0) lgkmcnt(0)")
    A("s_barrier")
    stamp(5)
    def x2_issue(sb):
        for w in range(4):
            A(f"buffer_load_dwordx4 {r4(sb+4*w)}, v{vX2A}, {WSR}, s{sX2} offen offset:{w*512} sc1")
    def x2_proc(sb):
        for r in range(4):
            A(f"v_add_f32 v{vT+r}, v{sb+r}, v{sb+4+r}"); A(f"v_add_f32 v{vT+4+r}, v{sb+8+r}, v{sb+12+r}")
        for r in range(4): A(f"v_add_f32 v{vT+r}, v{vT+r}, v{vT+4+r}")
    if depth > 1: poll_pipe("L_x2", lambda: x2_issue(slot(0)), 4, range(slot(0), slot(0) + 16), vT + 8, depth)
    else: poll_masked("L_x2", lambda: x2_issue(slot(0)), range(slot(0), slot(0) + 16), vT + 8, nap=napx2)
    x2_proc(slot(0))
    stamp(6)
    for k in (4, 8):
        for r in range(4):
            A(f"v_add_f32_dpp v{vT+r}, v{vT+r}, v{vT+r} row_ror:{k} row_mask:0xf bank_mask:0xf")
    for r in range(4):
        A(f"v_cvt_pk_bf16_f32 v{vT+r}, v{vT+r}, v{vT+r}")
    for r in range(4):
        A(f"ds_write_b32 v{vOW}, v{vT+r} offset:{ODUP + r*OSTR}")
    A(f"ds_read_b128 {r4(vX)}, v{vOR} offset:{ODUP}")
    A(f"ds_read_b128 {r4(vX+4)}, v{vOR} offset:{ODUP+16}")
    A("s_waitcnt lgkmcnt(0)")
    mfma_rows([vX + n for n in range(8)], [slot(24 + n) for n in range(8)], vD)
    A(f"s_cmp_eq_u32 s{sHW}, 0"); A("s_cbranch_scc1 L_x3_h0")
    A(f"ds_write_b128 v{vRA}, {r4(vD)} offset:{RED}")
    lds_signal(C_R3)
    A("s_endpgm")
    A("L_x3_h0:")
    lds_wait(C_R3, 3)
    for w in range(1, 4): A(f"ds_read_b128 {r4(vT+4*w)}, v{vL16} offset:{RED + w*1024}")
    A("s_waitcnt lgkmcnt(0)")
    for r in range(4):
        A(f"v_add_f32 v{vD+r}, v{vD+r}, v{vT+4+r}"); A(f"v_add_f32 v{vT+8+r}, v{vT+8+r}, v{vT+12+r}")
    for r in range(4): A(f"v_add_f32 v{vD+r}, v{vD+r}, v{vT+8+r}")
    A(f"s_add_u32 s{sT0}, s{sBOXC}, {WS_X3}")
    A(f"buffer_store_dwordx4 {r4(vD)}, v{vPL}, {WSR}, s{sT0} offen sc1")
    stamp(7)
    A(f"s_cmp_eq_u32 s{sISC}, 0"); A("s_cbranch_scc1 L_fin")
    if depth > 1: poll_pipe("L_g3", lambda: g_issue(WS_X3)(slot(8)), 8, range(slot(8), slot(8) + 32), vT + 4, depth)
    else: poll_masked("L_g3", lambda: g_issue(WS_X3)(slot(8)), range(slot(8), slot(8) + 32), vT + 4, nap=napx3)
    g_process(slot(8))
    g_finish()
    vGG = vU + 32
    A(f"v_and_b32 v{vU+25}, 15, v{vLANE}"); A(f"v_lshlrev_b32 v{vU+25}, 4, v{vU+25}")
    lds_wait(C_G, 1)
    A(f"ds_read_b128 {r4(vGG)}, v{vU+25} offset:{RED}")
    A("s_waitcnt lgkmcnt(0)")
    for r in range(4):
        A(f"v_mul_f32 v{vT+r}, v{vT+r}, v{vGG+r}")
    for r in range(4): bf16r(vT + r, vT + r)
    for r in range(4): A(f"v_add_f32 v{vT+r}, v{vT+r}, v{vXO+r}")
    A(f"v_cvt_pk_bf16_f32 v{vT+4}, v{vT}, v{vT+1}")
    A(f"v_cvt_pk_bf16_f32 v{vT+5}, v{vT+2}, v{vT+3}")
    srd(SRD_B, sOUT, 4096)
    A("s_mov_b64 exec, 0xffff")
    A(f"buffer_store_dwordx2 v[{vT+4}:{vT+5}], v{vOA}, s[{SRD_B}:{SRD_B+3}], 0 offen")
    A(f"s_cmp_lg_u32 s2, 0"); A("s_cbranch_scc1 L_noepoch")
    A(f"v_mov_b32 v{vT}, s{sTAG}"); A(f"v_mov_b32 v{vT+1}, {WS_Z}")
    A("s_mov_b64 exec, 1")
    A(f"buffer_store_dword v{vT}, v{vT+1}, {WSR}, 0 offen sc1")
    A("L_noepoch:")
    A("s_mov_b64 exec, -1")
    A("L_fin:")
    if dbgtime:
        A(f"s_memrealtime s[{sT4}:{sT5}]"); A("s_waitcnt lgkmcnt(0)")
        A(f"s_sub_u32 s{sT4}, s{sT4}, s{sSTAMP0}")
        A(f"s_cmp_ge_u32 s2, 64"); A("s_cbranch_scc1 L_end")
        A(f"s_lshl_b32 s{sT0}, s2, 2"); A(f"v_mov_b32 v{vT}, s{sT4}"); A(f"v_mov_b32 v{vT+1}, s{sT0}")
        A("s_mov_b64 exec, 1")
        A(f"global_store_dword v{vT+1}, v{vT}, s[{sDBG}:{sDBG+1}]")
    if stamps:
        stamp(8)
        stamp_store(256)
    A("L_end:")
    A("s_endpgm")

    probs = A.check_branches()
    for p in probs: print("HAZARD across branch:", p, file=sys.stderr)
    out = HEADER
    out += f"; @launch grid=(256,1,1) block=(512,1,1) lds={LDS_BYTES}\n"
    out += '.amdgcn_target "amdgcn-amd-amdhsa--gfx950"\n.text\n'
    out += f".globl {KNAME}\n.p2align 8\n.type {KNAME},@function\n"
    out += A.text()
    out += f""".section .rodata,"a"
.p2align 6
.amdhsa_kernel {KNAME}
  .amdhsa_next_free_vgpr 256
  .amdhsa_next_free_sgpr 96
  .amdhsa_accum_offset 256
  .amdhsa_group_segment_fixed_size 0
  .amdhsa_kernarg_size 96
  .amdhsa_user_sgpr_count 2
  .amdhsa_user_sgpr_kernarg_segment_ptr 1
  .amdhsa_system_sgpr_workgroup_id_x 1
  .amdhsa_float_denorm_mode_32 3
.end_amdhsa_kernel
"""
    return out

if __name__ == "__main__":
    kw = eval("dict(" + (sys.argv[2] if len(sys.argv) > 2 else "") + ")")
    open(sys.argv[1], "w").write(gen(**kw))
```

```python
import re

TRANS = ("v_exp_f32", "v_log_f32", "v_rcp_f32", "v_rsq_f32", "v_sqrt_f32", "v_sin_f32", "v_cos_f32")

def _regs(op):
    op = op.strip()
    m = re.fullmatch(r"-?\|?([vs])(\d+)\|?", op)
    if m: return [(m.group(1), int(m.group(2)))]
    m = re.fullmatch(r"([vs])\[(\d+):(\d+)\]", op)
    if m: return [(m.group(1), i) for i in range(int(m.group(2)), int(m.group(3)) + 1)]
    if op == "vcc": return [("s", "vcc")]
    if op == "exec": return [("s", "exec")]
    if op == "m0": return [("s", "m0")]
    return []

class I:
    def __init__(self, text):
        self.text = text
        t = text.split(";")[0].strip()
        self.label = t.endswith(":")
        self.op = t.split()[0] if t else ""
        rest = t[len(self.op):].strip()
        ops = []; cur = ""; depth = 0
        for ch in rest:
            if ch == "[": depth += 1
            if ch == "]": depth -= 1
            if ch == "," and depth == 0: ops.append(cur.strip()); cur = ""
            else: cur += ch
        if cur.strip(): ops.append(cur.strip())
        mods = ""
        if ops:
            parts = ops[-1].split(None, 1)
            ops[-1] = parts[0]
            if len(parts) > 1: mods = parts[1]
        self.ops = ops; self.mods = mods
        op = self.op
        self.valu = op.startswith("v_")
        self.mfma = op.startswith("v_mfma")
        self.dpp = ("_dpp" in op) or ("row_" in mods) or ("quad_perm" in mods)
        self.trans = any(op.startswith(x) for x in TRANS)
        self.vmem = op.startswith("buffer_") or op.startswith("global_")
        self.ds = op.startswith("ds_")
        self.salu = op.startswith("s_")
        self.dst = []; self.src = []
        R = [_regs(o) for o in ops]
        if self.valu:
            if op.startswith("v_cmp"):
                self.dst = R[0]; self.src = sum(R[1:], [])
            elif op.startswith("v_permlane") and "swap" in op:
                self.dst = R[0] + R[1]; self.src = R[0] + R[1]
            elif op.startswith("v_readfirstlane") or op.startswith("v_readlane"):
                self.dst = R[0]; self.src = sum(R[1:], [])
            else:
                self.dst = R[0]; self.src = sum(R[1:], [])
                if op.startswith(("v_fmac", "v_dot2c", "v_writelane")) or self.dpp:
                    self.src = self.src + R[0]
                if op.startswith("v_cndmask") and len(ops) == 3:
                    self.src = self.src + [("s", "vcc")]
        elif self.vmem:
            if "load" in op and "lds" not in mods:
                self.dst = R[0]; self.src = sum(R[1:], [])
            elif "atomic" in op and "sc0" in mods:
                self.dst = R[0]; self.src = sum(R[1:], [])
            else:
                self.src = sum(R, [])
        elif self.ds:
            if op.startswith("ds_read") or "rtn" in op or op.startswith("ds_bpermute"):
                self.dst = R[0]; self.src = sum(R[1:], [])
            else:
                self.src = sum(R, [])
        elif self.salu:
            if op.startswith(("s_cmp", "s_cbranch", "s_branch", "s_waitcnt", "s_nop", "s_barrier", "s_sleep", "s_endpgm", "s_setprio")):
                self.src = sum(R, [])
            else:
                self.dst = R[0] if R else []; self.src = sum(R[1:], [])
    def states(self):
        if self.op == "s_nop": return int(self.ops[0]) + 1
        if self.label or not self.op: return 0
        return 1

def needed_gap(prev, cur):
    need = 0
    pd = set(prev.dst); cs = set(cur.src); cd = set(cur.dst)
    vd = {r for r in pd if r[0] == "v"}; sd = {r for r in pd if r[0] == "s"}
    if prev.valu and not prev.mfma:
        if vd & cs:
            if cur.dpp: need = max(need, 2)
            if cur.mfma: need = max(need, 2)
            if cur.op.startswith("v_permlane"): need = max(need, 2)
            if cur.op.startswith(("v_readlane", "v_readfirstlane")): need = max(need, 1)
            if prev.trans and cur.valu and not cur.trans: need = max(need, 1)
            if prev.trans and (cur.vmem or cur.ds): need = max(need, 1)
            if prev.op.startswith("v_dot2") and cur.valu and cur.op != prev.op: need = max(need, 3)
            if prev.op.startswith("v_dot2") and (cur.vmem or cur.ds): need = max(need, 3)
        if prev.op.startswith("v_dot2") and (vd & cd) and cur.valu and cur.op != prev.op:
            need = max(need, 3)
        if prev.op.startswith("v_dot2") and cur.op == prev.op:
            srcab = set(sum([_regs(o) for o in cur.ops[1:3]], []))
            if vd & srcab: need = max(need, 3)
        if sd & cs:
            if cur.valu:
                need = max(need, 4 if cur.op.startswith(("v_readlane", "v_writelane")) else 2)
            if cur.vmem: need = max(need, 5)
            if cur.salu: need = max(need, 1)
    if prev.mfma:
        if cur.mfma:
            srcab = set(sum([_regs(o) for o in cur.ops[1:3]], []))
            srcc = set(_regs(cur.ops[3])) if len(cur.ops) > 3 else set()
            if vd & srcab: need = max(need, 8)
            if vd & srcc and srcc != vd: need = max(need, 6)
        else:
            if vd & (cs | cd): need = max(need, 8)
        srcc_prev = set(_regs(prev.ops[3])) if len(prev.ops) > 3 else set()
        if cur.valu and not cur.mfma and (srcc_prev & cd): need = max(need, 3)
    if prev.vmem and "store" in prev.op and ("x4" in prev.op or "x3" in prev.op):
        data = set(_regs(prev.ops[0])) if prev.op.startswith("buffer_") else set(_regs(prev.ops[1]))
        if data & cd: need = max(need, 2)
    return need

class Asm:
    def __init__(self):
        self.ins = []
        self.nlabel = 0
    def __call__(self, text):
        for line in text.split("\n"):
            line = line.strip()
            if not line: continue
            self.emit(line)
    def emit(self, text):
        cur = I(text)
        m = re.search(r"offset:(\d+)", text)
        if m and text.startswith("buffer_"): assert int(m.group(1)) <= 4095, text
        if m and text.startswith("ds_"): assert int(m.group(1)) <= 65535, text
        if cur.op and not cur.label and not text.startswith("."):
            dist = 0; pad = 0
            for p in reversed(self.ins[-24:]):
                if p.text.startswith("."): continue
                if p.label: continue
                n = needed_gap(p, cur)
                if n > dist: pad = max(pad, n - dist)
                dist += p.states()
                if dist >= 12: break
            while pad > 0:
                k = min(pad, 16)
                self.ins.append(I(f"s_nop {k-1}"))
                pad -= k
        self.ins.append(cur)
    def label(self, name=None):
        self.nlabel += 1
        return (name or "L") + f"_{self.nlabel}"
    def check_branches(self):
        labels = {}
        for i, p in enumerate(self.ins):
            if p.label: labels[p.text.split(";")[0].strip()[:-1]] = i
        problems = []
        for i, p in enumerate(self.ins):
            if p.op.startswith(("s_cbranch", "s_branch")):
                tgt = labels[p.ops[0]]
                hist = []
                d = 0; k = i
                while k >= 0 and d < 12:
                    q = self.ins[k]
                    if not q.label and not q.text.startswith("."):
                        hist.append(q); d += q.states()
                    k -= 1
                d2 = 0; k = tgt
                while k < len(self.ins) and d2 < 12:
                    c = self.ins[k]
                    if not c.label and not c.text.startswith(".") and c.op:
                        dist = d2
                        for q in hist:
                            n = needed_gap(q, c)
                            if n > dist: problems.append((q.text, c.text, n, dist))
                            dist += q.states()
                        d2 += c.states()
                        if c.op in ("s_branch", "s_endpgm"): break
                    k += 1
        return problems
    def text(self):
        return "\n".join(p.text for p in self.ins) + "\n"

class VM:
    def __init__(self, A): self.A = A; self.q = []; self.seen = set()
    def issue(self, tag): self.q.append(tag); self.seen.add(tag); assert len(self.q) <= 63, "vmcnt overflow"
    def wait(self, tag):
        if tag not in self.q:
            assert tag in self.seen, f"waiting for a load that was never issued: {tag}"
            return
        i = self.q.index(tag)
        n = len(self.q) - 1 - i
        self.A(f"s_waitcnt vmcnt({n})")
        self.q = self.q[i+1:]
    def waitall(self):
        self.A("s_waitcnt vmcnt(0)"); self.q = []
```

```python
import sys
sys.path.insert(0, "gen")
from asmlib import Asm, VM

KNAME = "recurrent_scan__mha_block_cached__swiglu_ffn__decode_kernel"

HEADER = """; Kernarg layout for this problem (96 bytes, ptrs only, base s[0:1]):
"""

XDUP = 0; XSTR = 1040
HDUP = 8320; HSTR = 144
ODUP = 9472; OSTR = 48
CNT = 11008
C_QRDY, C_H1, C_H1B, C_H2, C_H3, C_MLW, C_MLRDY, C_STAT, C_XDUP, C_QD, C_PROG, C_G, C_R3, C_YP, C_CLR = 0, 4, 8, 12, 16, 20, 24, 28, 32, 36, 40, 44, 48, 52, 56
QD = 11264
QPK = 19456
MLW = 19712
MLF = 19744
STAT = 19776
RED = 19968
SCO = 24064
LDS_BYTES = 40448

WS_XQ = 0x000000
WS_X1 = 0x080000
WS_XY = 0x100000
WS_X2 = 0x200000
WS_X3 = 0x300000
WS_XM = 0x400000
WS_XH = 0x480000
WS_Z = 0x500000
WS_DBG = 0x800000

LOG2E = 0x3FB8AA3B
SCALE = 0x3DB504F3
SPIN_LIMIT = 400000

def gen(W=5, WH=4, WE=3, R=16, KPRE=16, qpoll="light", hmode="normal", skip="", napx2=0, napx3=0, PX1=3, DP2=None, qby='helper', gearly=True, napgy=8, depth=2, W2=0, N2=0, DP=(0,0,0,0), dbgtime=False, lite=False, prio=2, napml=1, rotk=7, wqflag="nt", kvflag="nt", wflag="nt", dbg=False, stamps=False, sleep=1):
    A = Asm()
    sX, sK, sV, sWQ, sWO, sWG, sWU, sWD, sOUT, sDBG, sWS = 8, 10, 12, 14, 16, 20, 22, 24, 26, 28, 30
    sW, sH, sSUB, sB, sSPLIT, sHW = 3, 32, 33, 34, 35, 36
    sT0, sT1, sT2, sT3 = 37, 38, 39, 40
    sRUN, sOFF, sCNT, sROT = 41, 42, 43, 44
    sBOXH = 45
    sBIT0, sBIT1 = 46, 48
    sSPIN = 50; sSPIN2 = 51
    SRD_A, SRD_B, SRD_C, SRD_D, SRD_WS, SRD_Q = 56, 60, 64, 68, 72, 84
    sPAR = 55
    sSTAMP0 = 76
    sT4, sT5 = 78, 79
    sISC, sK4, sBOXC, sTAG = 80, 81, 82, 83
    vLANE, vL16, vTMP = 1, 2, 3
    vM = 4; vA0, vA1 = 8, 12; vD = 16; vD2 = 20; vQ = 24; vT = 28; vX = 44; vU = 60
    vG, vC, vXA, vBG = vU, vU + 1, vU + 5, vU + 6
    vWQD = 92
    vSIG = 127; vST = 126
    RING = 128
    def slot(i): return RING + 4 * i
    def r4(b): return f"v[{b}:{b+3}]"
    WSR = f"s[{SRD_WS}:{SRD_WS+3}]"

    def srd(base, ptr, size, add=None):
        if add is None:
            A(f"s_mov_b32 s{base}, s{ptr}"); A(f"s_mov_b32 s{base+1}, s{ptr+1}")
        else:
            A(f"s_add_u32 s{base}, s{ptr}, s{add}"); A(f"s_addc_u32 s{base+1}, s{ptr+1}, 0")
        A(f"s_mov_b32 s{base+2}, {size}"); A(f"s_mov_b32 s{base+3}, 0x20000")
    def bf16r(dst, src):
        A(f"v_cvt_pk_bf16_f32 v{dst}, v{src}, v{src}")
        A(f"v_and_b32 v{dst}, 0xffff0000, v{dst}")
    def allreduce(op, r, tmp):
        for k in (8, 4, 2, 1):
            A(f"{op}_dpp v{r}, v{r}, v{r} row_ror:{k} row_mask:0xf bank_mask:0xf")
        A(f"v_mov_b32 v{tmp}, v{r}"); A(f"v_permlane16_swap_b32 v{r}, v{tmp}"); A(f"{op} v{r}, v{r}, v{tmp}")
        A(f"v_mov_b32 v{tmp}, v{r}"); A(f"v_permlane32_swap_b32 v{r}, v{tmp}"); A(f"{op} v{r}, v{r}, v{tmp}")
    def lds_signal(off):
        A("s_waitcnt lgkmcnt(0)")
        A(f"v_mov_b32 v{vTMP}, {CNT+off}"); A(f"v_mov_b32 v{vSIG}, 1")
        A("s_mov_b64 exec, 1")
        A(f"ds_add_u32 v{vTMP}, v{vSIG}")
        A("s_mov_b64 exec, -1")
    def lds_wait(off, n, nap=0):
        lab = A.label("Lw")
        A(f"v_mov_b32 v{vTMP}, {CNT+off}")
        A(f"s_mov_b32 s{sSPIN2}, {SPIN_LIMIT*4}")
        A(f"{lab}:")
        A(f"ds_read_b32 v{vSIG}, v{vTMP}")
        A("s_waitcnt lgkmcnt(0)")
        A(f"v_readfirstlane_b32 s{sT0}, v{vSIG}")
        A(f"s_cmp_ge_u32 s{sT0}, {n}")
        A(f"s_cbranch_scc1 {lab}_ok")
        if nap: A(f"s_sleep {nap}")
        A(f"s_sub_u32 s{sSPIN2}, s{sSPIN2}, 1")
        A(f"s_cmp_lg_u32 s{sSPIN2}, 0")
        A(f"s_cbranch_scc1 {lab}")
        A(f"{lab}_ok:")
    def mfma_row(areg, xreg, breg, dreg, dpp=None):
        for k in range(4):
            if dpp is None: A(f"v_and_b32 v{areg+k}, v{xreg}, v{vM+k}")
            else: A(f"v_and_b32_dpp v{areg+k}, v{xreg}, v{vM+k} row_newbcast:{dpp} row_mask:0xf bank_mask:0xf")
        A(f"v_mfma_f32_16x16x32_bf16 {r4(dreg)}, {r4(areg)}, {r4(breg)}, {r4(dreg)}")
    def mfma_rows(xregs, bregs, dreg):
        n = len(xregs)
        for k in range(4): A(f"v_and_b32 v{vA0+k}, v{xregs[0]}, v{vM+k}")
        for i in range(n):
            cur = vA0 if i % 2 == 0 else vA1; nxt = vA1 if i % 2 == 0 else vA0
            if i + 1 < n:
                for k in range(4): A(f"v_and_b32 v{nxt+k}, v{xregs[i+1]}, v{vM+k}")
            A(f"v_mfma_f32_16x16x32_bf16 {r4(dreg)}, {r4(cur)}, {r4(bregs[i])}, {r4(dreg)}")
    def zero4(r):
        for k in range(4): A(f"v_mov_b32 v{r+k}, 0")
    def stamp(idx):
        if stamps and (not lite or idx in (4, 8) or (lite == 2 and idx in (5, 6, 7))):
            A(f"s_memrealtime s[{sT4}:{sT5}]"); A("s_waitcnt lgkmcnt(0)")
            A(f"v_writelane_b32 v{vST}, s{sT4}, {idx}")
    def stamp_loop(base, cntreg, top):
        if stamps and not lite:
            A(f"s_memrealtime s[{sT4}:{sT5}]"); A("s_waitcnt lgkmcnt(0)")
            A(f"s_sub_u32 s{sT5}, {base+top}, s{cntreg}"); A(f"s_mov_b32 m0, s{sT5}"); A("s_nop 0")
            A(f"v_writelane_b32 v{vST}, s{sT4}, m0")
    def stamp_store(off):
        if stamps:
            A(f"s_lshl_b32 s{sT0}, s2, 9"); A(f"s_add_u32 s{sT0}, s{sT0}, {0x700000+off}")
            A(f"v_lshlrev_b32 v{vTMP}, 2, v{vLANE}")
            A(f"v_writelane_b32 v{vST}, s{sSTAMP0}, 0")
            A(f"buffer_store_dword v{vST}, v{vTMP}, {WSR}, s{sT0} offen")
    def silu(dst, x, t1, t2):
        A(f"v_mul_f32 v{t1}, 0xbfb8aa3b, v{x}")
        A(f"v_exp_f32 v{t1}, v{t1}")
        A(f"v_add_f32 v{t1}, 1.0, v{t1}")
        A(f"v_rcp_f32 v{t2}, v{t1}")
        A(f"v_mul_f32 v{dst}, v{x}, v{t2}")
        bf16r(dst, dst)
    def exp_diff(dst, a, b):
        A(f"v_sub_f32 v{dst}, v{a}, v{b}")
        A(f"v_mul_f32 v{dst}, {hex(LOG2E)}, v{dst}")
        A(f"v_exp_f32 v{dst}, v{dst}")
    def check_sentinel(regs, tmp):
        regs = list(regs)
        if len(regs) >= 3:
            A(f"v_max3_u32 v{tmp}, v{regs[0]}, v{regs[1]}, v{regs[2]}"); i = 3
        else:
            A(f"v_max_u32 v{tmp}, v{regs[0]}, v{regs[1]}"); i = 2
        while i < len(regs):
            if i + 1 < len(regs): A(f"v_max3_u32 v{tmp}, v{tmp}, v{regs[i]}, v{regs[i+1]}"); i += 2
            else: A(f"v_max_u32 v{tmp}, v{tmp}, v{regs[i]}"); i += 1
        A(f"v_cmp_eq_u32 vcc, -1, v{tmp}")
        A(f"s_cmp_eq_u64 vcc, 0")
    def check_tags(regs, tmp):
        regs = list(regs)
        A(f"v_xor_b32 v{tmp}, s{sTAG}, v{regs[0]}")
        if len(regs) > 2:
            A(f"v_xor_b32 v{tmp+1}, s{sTAG}, v{regs[1]}")
            for i, r in enumerate(regs[2:]):
                A(f"v_bitop3_b32 v{tmp+(i&1)}, v{r}, s{sTAG}, v{tmp+(i&1)} bitop3:0xbe")
            A(f"v_or_b32 v{tmp}, v{tmp}, v{tmp+1}")
        else:
            for r in regs[1:]: A(f"v_bitop3_b32 v{tmp}, v{r}, s{sTAG}, v{tmp} bitop3:0xbe")
        A(f"v_cmp_ne_u32 vcc, 0, v{tmp}")
        A(f"s_cmp_eq_u64 vcc, 0")
    def poll_masked(name, issue, regs, tmp, tags=False, nap=0):
        A(f"s_mov_b32 s{sSPIN}, {SPIN_LIMIT}")
        A(f"{name}:")
        issue()
        A("s_waitcnt vmcnt(0)")
        if tags: check_tags(regs, tmp)
        else: check_sentinel(regs, tmp)
        A(f"s_cbranch_scc1 {name}_ok")
        A("s_mov_b64 exec, vcc")
        if nap: A(f"s_sleep {nap}")
        A(f"s_sub_u32 s{sSPIN}, s{sSPIN}, 1"); A(f"s_cmp_lg_u32 s{sSPIN}, 0"); A(f"s_cbranch_scc1 {name}")
        A(f"{name}_ok:")
        A("s_mov_b64 exec, -1")
    def poll_pipe(name, issue, nloads, regs, tmp, depth):
        A(f"s_mov_b32 s{sSPIN}, {SPIN_LIMIT}")
        for _ in range(depth): issue()
        A(f"{name}:")
        A(f"s_waitcnt vmcnt({nloads * (depth - 1)})")
        check_sentinel(regs, tmp)
        A(f"s_cbranch_scc1 {name}_ok")
        A("s_mov_b64 exec, vcc")
        issue()
        A(f"s_sub_u32 s{sSPIN}, s{sSPIN}, 1"); A(f"s_cmp_lg_u32 s{sSPIN}, 0"); A(f"s_cbranch_scc1 {name}")
        A(f"{name}_ok:")
        A("s_mov_b64 exec, -1")
    def int_sum(regs, dst):
        regs = list(regs)
        A(f"v_add3_u32 v{dst}, v{regs[0]}, v{regs[1]}, v{regs[2]}"); i = 3
        while i < len(regs):
            if i + 1 < len(regs): A(f"v_add3_u32 v{dst}, v{dst}, v{regs[i]}, v{regs[i+1]}"); i += 2
            else: A(f"v_add_u32 v{dst}, v{dst}, v{regs[i]}"); i += 1
    def poll_sum(name, issue, regs, tmp, starget, nap=0, rowreduce=False, masked=True):
        A(f"s_mov_b32 s{sSPIN}, {SPIN_LIMIT}")
        A(f"{name}:")
        issue()
        A("s_waitcnt vmcnt(0)")
        int_sum(regs, tmp)
        if rowreduce:
            for k in (8, 4, 2, 1): A(f"v_add_u32_dpp v{tmp}, v{tmp}, v{tmp} row_ror:{k} row_mask:0xf bank_mask:0xf")
        A(f"v_cmp_ne_u32 vcc, s{starget}, v{tmp}"); A("s_cmp_eq_u64 vcc, 0")
        A(f"s_cbranch_scc1 {name}_ok")
        if masked: A("s_mov_b64 exec, vcc")
        if nap: A(f"s_sleep {nap}")
        A(f"s_sub_u32 s{sSPIN}, s{sSPIN}, 1"); A(f"s_cmp_lg_u32 s{sSPIN}, 0"); A(f"s_cbranch_scc1 {name}")
        A(f"{name}_ok:")
        A("s_mov_b64 exec, -1")
    def poll2(name, issue, nloads, setA, setB, nregs, process, tmp):
        A(f"s_mov_b32 s{sSPIN}, {SPIN_LIMIT}")
        issue(setA)
        A(f"{name}_loop:")
        issue(setB)
        A(f"s_waitcnt vmcnt({nloads})")
        check_sentinel(range(setA, setA + nregs), tmp)
        A(f"s_cbranch_scc1 {name}_okA")
        issue(setA)
        A(f"s_waitcnt vmcnt({nloads})")
        check_sentinel(range(setB, setB + nregs), tmp)
        A(f"s_cbranch_scc1 {name}_okB")
        A(f"s_sub_u32 s{sSPIN}, s{sSPIN}, 1"); A(f"s_cmp_lg_u32 s{sSPIN}, 0")
        A(f"s_cbranch_scc0 {name}_okB")
        A(f"s_branch {name}_loop")
        A(f"{name}_okB:")
        process(setB)
        A(f"s_branch {name}_end")
        A(f"{name}_okA:")
        process(setA)
        A(f"{name}_end:")

    def g_process(sb):
        for r in range(4):
            A(f"v_add_f32 v{vT+r}, v{sb+r}, v{sb+4+r}"); A(f"v_add_f32 v{vT+4+r}, v{sb+8+r}, v{sb+12+r}")
            A(f"v_add_f32 v{vT+8+r}, v{sb+16+r}, v{sb+20+r}"); A(f"v_add_f32 v{vT+12+r}, v{sb+24+r}, v{sb+28+r}")
        for r in range(4):
            A(f"v_add_f32 v{vT+r}, v{vT+r}, v{vT+4+r}"); A(f"v_add_f32 v{vT+8+r}, v{vT+8+r}, v{vT+12+r}")
        for r in range(4): A(f"v_add_f32 v{vT+r}, v{vT+r}, v{vT+8+r}")
    def g_finish():
        for r in range(4): A(f"v_mov_b32 v{vT+4+r}, v{vT+r}")
        for r in range(4): A(f"v_permlane16_swap_b32 v{vT+r}, v{vT+4+r}")
        for r in range(4): A(f"v_add_f32 v{vT+r}, v{vT+r}, v{vT+4+r}")
        for r in range(4): A(f"v_mov_b32 v{vT+4+r}, v{vT+r}")
        for r in range(4): A(f"v_permlane32_swap_b32 v{vT+r}, v{vT+4+r}")
        for r in range(4): A(f"v_add_f32 v{vT+r}, v{vT+r}, v{vT+4+r}")
        for r in range(4): bf16r(vT + r, vT + r)
    def GATE():
        A(f"v_lshlrev_b32 v{vU+26}, 10, v{vG}"); A(f"v_add_u32 v{vU+26}, v{vU+26}, v{(vU + 28)}")
        A(f"v_lshlrev_b32 v{vU+25}, 11, v{vG}")
        A(f"v_bfe_u32 v{vT}, v{vLANE}, 3, 1"); A(f"v_lshl_add_u32 v{vU+25}, v{vT}, 7, v{vU+25}")
        A(f"v_lshl_add_u32 v{vU+25}, v{vU+29}, 2, v{vU+25}")
        A(f"s_lshl_b32 s{sT5}, s{sTAG}, 3")
        def gy_issue():
            A(f"s_lshl_b32 s{sT3}, s{sSUB}, 16"); A(f"s_add_u32 s{sT3}, s{sT3}, {WS_XY}")
            A(f"s_lshl_b32 s{sT1}, s{sK4}, 5"); A(f"s_add_u32 s{sT2}, s{sT3}, s{sT1}"); A(f"s_add_u32 s{sT2}, s{sT2}, 1024")
            A(f"s_lshl_b32 s{sT1}, s{sK4}, 7"); A(f"s_add_u32 s{sT3}, s{sT3}, s{sT1}")
            for tt in range(8):
                A(f"buffer_load_dwordx4 {r4(slot(8+tt))}, v{vU+26}, {WSR}, s{sT3} offen sc1")
                A(f"buffer_load_dword v{slot(16)+tt}, v{vU+25}, {WSR}, s{sT2} offen sc1")
                if tt < 7: A(f"s_add_u32 s{sT3}, s{sT3}, 8192"); A(f"s_add_u32 s{sT2}, s{sT2}, 8192")
        if "xyget" not in skip: poll_sum("L_gy", gy_issue, range(slot(8), slot(8) + 40), vT, sT5, nap=napgy)
        g_process(slot(8)); g_finish()
        for r in range(4): silu(vD + r, vT + r, vT + 9, vT + 10)
        A("s_mov_b64 exec, 0xffff")
        A(f"ds_write_b128 v{vL16}, {r4(vD)} offset:{RED}")
        A("s_mov_b64 exec, -1")
        lds_signal(C_G)
        pass

    def QEXCH(drain):
        if prio: A(f"s_setprio {prio}")
        lds_wait(C_QD, 4)
        for w in range(4): A(f"ds_read_b128 {r4(vT+4*w)}, v{vL16} offset:{QD + w*1024}")
        A("s_waitcnt lgkmcnt(0)")
        for r in range(4):
            A(f"v_add_f32 v{vD+r}, v{vT+r}, v{vT+4+r}"); A(f"v_add_f32 v{vD2+r}, v{vT+8+r}, v{vT+12+r}")
        for r in range(4): A(f"v_add_f32 v{vD+r}, v{vD+r}, v{vD2+r}")
        drain()
        A(f"v_add3_u32 v{vD2}, v{vD}, v{vD+1}, v{vD+2}"); A(f"v_add_u32 v{vD2}, v{vD2}, v{vD+3}")
        A(f"v_sub_u32 v{vD2}, s{sTAG}, v{vD2}")
        A(f"s_lshl_b32 s{sT0}, s{sBOXH}, 11")
        A(f"v_lshlrev_b32 v{vD2+1}, 2, v{vLANE}")
        A(f"buffer_store_dwordx4 {r4(vD)}, v{vL16}, {WSR}, s{sT0} offen sc1")
        A(f"buffer_store_dword v{vD2}, v{vD2+1}, {WSR}, s{sT0} offen offset:1024 sc1")
        stamp(16) if qby == 'helper' else None
        A(f"v_lshrrev_b32 v{vU+25}, 5, v{vLANE}"); A(f"v_lshlrev_b32 v{vU+25}, 11, v{vU+25}")
        A(f"v_and_b32 v{vU+26}, 31, v{vLANE}")
        A(f"v_lshl_add_u32 v{vU+36}, v{vU+26}, 2, v{vU+25}")
        A(f"v_lshl_add_u32 v{vU+25}, v{vU+26}, 4, v{vU+25}")
        sQB = sT3; sQC = sT2
        A(f"s_lshl_b32 s{sQB}, s{sH}, 14"); A(f"s_lshl_b32 s{sT1}, s{sB}, 7"); A(f"s_add_u32 s{sQC}, s{sQB}, s{sT1}"); A(f"s_add_u32 s{sQC}, s{sQC}, 1024")
        A(f"s_lshl_b32 s{sT1}, s{sB}, 9"); A(f"s_add_u32 s{sQB}, s{sQB}, s{sT1}")
        QG = vT
        A(f"s_mov_b32 s{sSPIN}, {SPIN_LIMIT}")
        if qpoll == "light":
            A(f"v_and_b32 v{vU+26}, 7, v{vLANE}"); A(f"v_lshlrev_b32 v{vU+26}, 11, v{vU+26}")
            A(f"s_lshl_b32 s{sT1}, s{sH}, 14"); A(f"s_add_u32 s{sT1}, s{sT1}, 1008")
            A("L_qlight:")
            A(f"buffer_load_dwordx4 {r4(QG)}, v{vU+26}, {WSR}, s{sT1} offen sc1")
            A(f"buffer_load_dword v{QG+4}, v{vU+26}, {WSR}, s{sT1} offen offset:268 sc1")
            A("s_waitcnt vmcnt(0)")
            A(f"v_add3_u32 v{QG+5}, v{QG}, v{QG+1}, v{QG+2}"); A(f"v_add3_u32 v{QG+5}, v{QG+5}, v{QG+3}, v{QG+4}")
            A(f"v_cmp_ne_u32 vcc, s{sTAG}, v{QG+5}"); A("s_cmp_eq_u64 vcc, 0")
            A("s_cbranch_scc1 L_qfull")
            A(f"s_sub_u32 s{sSPIN}, s{sSPIN}, 1"); A(f"s_cmp_lg_u32 s{sSPIN}, 0"); A("s_cbranch_scc1 L_qlight")
            A("L_qfull:")
        A(f"s_lshl_b32 s{sT5}, s{sTAG}, 2")
        def xq_issue():
            A(f"s_mov_b32 s{sT0}, s{sQB}"); A(f"s_mov_b32 s{sT1}, s{sQC}")
            for k in range(4):
                A(f"buffer_load_dwordx4 {r4(QG+4*k)}, v{vU+25}, {WSR}, s{sT0} offen sc1")
                A(f"buffer_load_dword v{QG+16+k}, v{vU+36}, {WSR}, s{sT1} offen sc1")
                if k < 3: A(f"s_add_u32 s{sT0}, s{sT0}, 4096"); A(f"s_add_u32 s{sT1}, s{sT1}, 4096")
        poll_sum("L_qpoll", xq_issue, list(range(QG, QG + 20)), vU + 32, sT5)
        stamp(17) if qby == 'helper' else None
        vQS = vU + 32
        for r in range(4):
            A(f"v_add_f32 v{vQS+4+r}, v{QG+r}, v{QG+4+r}"); A(f"v_add_f32 v{vQS+8+r}, v{QG+8+r}, v{QG+12+r}")
        for r in range(4): A(f"v_add_f32 v{vQS+r}, v{vQS+4+r}, v{vQS+8+r}")
        for r in range(4): A(f"v_mov_b32 v{vQS+4+r}, v{vQS+r}")
        for r in range(4): A(f"v_permlane32_swap_b32 v{vQS+r}, v{vQS+4+r}")
        for r in range(4): A(f"v_add_f32 v{vQS+r}, v{vQS+r}, v{vQS+4+r}")
        A(f"v_cvt_pk_bf16_f32 v{vQS+4}, v{vQS}, v{vQS+1}"); A(f"v_cvt_pk_bf16_f32 v{vQS+5}, v{vQS+2}, v{vQS+3}")
        A(f"v_and_b32 v{vU+25}, 1, v{vG}"); A(f"v_lshlrev_b32 v{vU+25}, 3, v{vU+25}"); A(f"v_lshl_add_u32 v{vU+25}, v{vC}, 4, v{vU+25}")
        A("s_mov_b32 exec_hi, 0")
        A(f"ds_write_b64 v{vU+25}, v[{vQS+4}:{vQS+5}] offset:{QPK}")
        A("s_mov_b64 exec, -1")
        lds_signal(C_QRDY)
        if prio: A("s_setprio 0")

    A(f"{KNAME}:")
    A("s_cmp_ge_u32 s2, 256")
    A("s_cbranch_scc1 L_end")
    A(f"s_load_dwordx16 s[8:23], s[0:1], 0")
    A(f"s_load_dwordx8 s[24:31], s[0:1], 64")
    if stamps or dbgtime: A(f"s_memrealtime s[{sSTAMP0}:{sSTAMP0+1}]")
    A(f"v_and_b32 v{vLANE}, 63, v0")
    A(f"v_lshrrev_b32 v{vTMP}, 6, v0")
    A(f"v_lshlrev_b32 v{vL16}, 4, v{vLANE}")
    A(f"v_readfirstlane_b32 s{sW}, v{vTMP}")
    A(f"s_and_b32 s{sT0}, s2, 7"); A(f"s_lshl_b32 s{sH}, s{sT0}, 2")
    A(f"s_lshr_b32 s{sT1}, s2, 3"); A(f"s_and_b32 s{sT0}, s{sT1}, 3"); A(f"s_add_u32 s{sH}, s{sH}, s{sT0}")
    A(f"s_lshr_b32 s{sSUB}, s{sT1}, 2")
    A(f"s_lshr_b32 s{sB}, s{sSUB}, 2"); A(f"s_and_b32 s{sSPLIT}, s{sSUB}, 3")
    A(f"s_lshl_b32 s{sBOXH}, s{sH}, 3"); A(f"s_add_u32 s{sBOXH}, s{sBOXH}, s{sSUB}")
    A(f"s_lshl_b32 s{sBOXC}, s{sSUB}, 5"); A(f"s_add_u32 s{sBOXC}, s{sBOXC}, s{sH}"); A(f"s_lshl_b32 s{sBOXC}, s{sBOXC}, 10")
    A(f"s_mul_i32 s{sROT}, s2, {rotk*16384}"); A(f"s_and_b32 s{sROT}, s{sROT}, 0xfffff")
    A(f"s_sub_u32 s{sHW}, s{sW}, 4")
    A(f"v_lshrrev_b32 v{vG}, 4, v{vLANE}")
    A(f"v_and_b32 v{vC}, 15, v{vLANE}")
    vWQ = vU + 20
    A(f"v_lshlrev_b32 v{vWQ}, 13, v{vG}")
    A(f"v_lshl_add_u32 v{vWQ}, v{vC}, 4, v{vWQ}")
    A("s_waitcnt lgkmcnt(0)")
    A(f"s_add_u32 s{sT4}, s{sWS}, {WS_Z}"); A(f"s_addc_u32 s{sT5}, s{sWS+1}, 0")
    A(f"s_load_dword s{sTAG}, s[{sT4}:{sT5}], 0")
    srd(SRD_A, sX, 4096)
    sPIV = 52
    vXR = vU + 8
    vF1 = vU + 21; vWD = vU + 22; vWD2 = vU + 23
    A(f"s_cmp_ge_u32 s{sW}, 4")
    A("s_cbranch_scc1 L_helper_issue")

    vms = VM(A)
    A(f"s_and_b32 s{sT0}, s{sW}, 1"); A(f"s_lshl_b32 s{sT0}, s{sT0}, 11")
    A(f"s_load_dword s{sPIV}, s[{sX}:{sX+1}], s{sT0}")
    A(f"s_lshr_b32 s{sT1}, s{sW}, 1"); A(f"s_lshl_b32 s{sT1}, s{sT1}, 10"); A(f"s_add_u32 s{sT0}, s{sT0}, s{sT1}")
    A(f"buffer_load_dwordx4 {r4(vXR)}, v{vL16}, s[{SRD_A}:{SRD_A+3}], s{sT0} offen"); vms.issue("x")
    A(f"s_lshl_b32 s{sT0}, s{sH}, 8")
    srd(SRD_Q, sWQ, 8388608 - 31 * 256, add=sT0)
    A(f"s_lshl_b32 s{sT0}, s{sSUB}, 5"); A(f"s_lshl_b32 s{sT1}, s{sW}, 3"); A(f"s_add_u32 s{sT0}, s{sT0}, s{sT1}"); A(f"s_lshl_b32 s{sOFF}, s{sT0}, 15")
    WQS = 16
    for n in range(8):
        A(f"buffer_load_dwordx4 {r4(slot(WQS+n))}, v{vWQ}, s[{SRD_Q}:{SRD_Q+3}], s{sOFF} offen {wqflag}"); vms.issue(("wq", n))
        if n < 7: A(f"s_add_u32 s{sOFF}, s{sOFF}, 32768")
    A(f"v_mov_b32 v{vX}, 0"); A(f"v_lshlrev_b32 v{vX+1}, 2, v{vLANE}")
    A(f"s_mov_b64 exec, 0xffff")
    A(f"ds_write_b32 v{vX+1}, v{vX} offset:{CNT}")
    A("s_mov_b64 exec, -1")
    srd(SRD_WS, sWS, 0x1000000)
    srd(SRD_B, sX, 0)
    A(f"s_lshl_b32 s{sT0}, s{sB}, 5"); A(f"s_add_u32 s{sT0}, s{sT0}, s{sH}"); A(f"s_lshl_b32 s{sT0}, s{sT0}, 2")
    A(f"s_add_u32 s{sT0}, s{sT0}, s{sSPLIT}"); A(f"s_lshl_b32 s{sT0}, s{sT0}, 20")
    srd(SRD_C, sK, 0x100000, add=sT0)
    srd(SRD_D, sV, 0x100000, add=sT0)
    A(f"s_lshl_b32 s{sT0}, s{sW}, 12"); A(f"s_add_u32 s{sRUN}, s{sROT}, s{sT0}")
    for r in (vF1, vWD, vWD2, vU + 28, vU + 30): A(f"v_mov_b32 v{r}, 0")
    A("s_waitcnt lgkmcnt(0)")
    A("s_barrier")
    cur = {"vm": vms}
    def kv_issue(idx, srdb, tag, state, ring):
        piece = idx >> 2
        key = (srdb, piece, state.get("epoch", 0))
        if state.get("cur") != key:
            if piece == 0: A(f"s_and_b32 s{sOFF}, s{sRUN}, 0xfffff")
            else:
                A(f"s_add_u32 s{sOFF}, s{sRUN}, {piece*16384}"); A(f"s_and_b32 s{sOFF}, s{sOFF}, 0xfffff")
            state["cur"] = key
        sl = idx if (state.get('direct') and idx < 32) else (idx + state.get('slot0', 0)) % ring
        A(f"buffer_load_dwordx4 {r4(slot(sl))}, v{vL16}, s[{srdb}:{srdb+3}], s{sOFF} offen offset:{(idx&3)*1024} {kvflag}")
        cur["vm"].issue(tag)
    def masks():
        A(f"v_and_b32 v{vU+2}, 1, v{vC}")
        A(f"v_lshlrev_b32 v{vU+2}, 4, v{vU+2}")
        A(f"v_mov_b32 v{vU+3}, 0xffff")
        A(f"v_lshlrev_b32 v{vU+3}, v{vU+2}, v{vU+3}")
        A(f"v_bfe_u32 v{vU+4}, v{vC}, 1, 2")
        for k in range(4):
            A(f"v_cmp_eq_u32 vcc, {k}, v{vU+4}")
            A(f"v_cndmask_b32 v{vM+k}, 0, v{vU+3}, vcc")
        A(f"v_lshrrev_b32 v{vU+2}, 3, v{vC}")
        A(f"v_lshl_add_u32 v{vBG}, v{vU+2}, 2, v{vG}")
        A(f"v_mul_u32_u24 v{vXA}, {XSTR}, v{vBG}")
    masks()
    A(f"s_mov_b32 s{sBIT0}, 0xaaaaaaaa"); A(f"s_mov_b32 s{sBIT0+1}, 0xaaaaaaaa")
    A(f"s_mov_b32 s{sBIT1}, 0xcccccccc"); A(f"s_mov_b32 s{sBIT1+1}, 0xcccccccc")
    A(f"s_add_u32 s{sTAG}, s{sTAG}, 1")
    A(f"s_lshl_b32 s{sPIV}, s{sPIV}, 16")
    vms.wait("x")
    st = {}
    for n in range(WE): kv_issue(n, SRD_C, ("k", n), st, 16)
    stamp(9)
    vY = vT; vZ = vT + 8
    for k in range(4):
        A(f"v_lshlrev_b32 v{vY+2*k}, 16, v{vXR+k}"); A(f"v_and_b32 v{vY+2*k+1}, 0xffff0000, v{vXR+k}")
    for k in range(8): A(f"v_subrev_f32 v{vZ+k}, s{sPIV}, v{vY+k}")
    vS = vX; vSB = vX + 1; vS2 = vX + 2; vMEAN = vX + 6
    A(f"v_add_f32 v{vS}, v{vZ}, v{vZ+1}"); A(f"v_mul_f32 v{vSB}, v{vZ}, v{vZ}")
    A(f"v_add_f32 v{vS2}, v{vZ+2}, v{vZ+3}"); A(f"v_mul_f32 v{vS2+1}, v{vZ+1}, v{vZ+1}")
    for k in (4, 6):
        A(f"v_add_f32 v{vS}, v{vS}, v{vZ+k}"); A(f"v_add_f32 v{vS2}, v{vS2}, v{vZ+k+1}")
    for k in (2, 4, 6):
        A(f"v_fmac_f32 v{vSB}, v{vZ+k}, v{vZ+k}"); A(f"v_fmac_f32 v{vS2+1}, v{vZ+k+1}, v{vZ+k+1}")
    A(f"v_add_f32 v{vS}, v{vS}, v{vS2}"); A(f"v_add_f32 v{vSB}, v{vSB}, v{vS2+1}")
    fill = [f"s_and_b32 s{sT0}, s{sW}, 1", f"s_mul_i32 s{sT1}, s{sT0}, {4*XSTR}",
            f"s_lshr_b32 s{sT2}, s{sW}, 1", f"s_lshl_b32 s{sT3}, s{sT2}, 9", f"s_add_u32 s{sT1}, s{sT1}, s{sT3}",
            f"s_lshl_b32 s{sT0}, s{sT0}, 4", f"s_lshl_b32 s{sT2}, s{sT2}, 3", f"s_add_u32 s{sT2}, s{sT2}, s{sT0}"]
    for i, k in enumerate((8, 4, 2, 1)):
        A(f"v_add_f32_dpp v{vS}, v{vS}, v{vS} row_ror:{k} row_mask:0xf bank_mask:0xf")
        A(f"v_add_f32_dpp v{vSB}, v{vSB}, v{vSB} row_ror:{k} row_mask:0xf bank_mask:0xf")
        A(fill[2*i]); A(fill[2*i+1])
    for swap in ("v_permlane16_swap_b32", "v_permlane32_swap_b32"):
        A(f"v_mov_b32 v{vS2}, v{vS}"); A(f"v_mov_b32 v{vS2+1}, v{vSB}")
        A(f"{swap} v{vS}, v{vS2}"); A(f"{swap} v{vSB}, v{vS2+1}")
        A(f"v_add_f32 v{vS}, v{vS}, v{vS2}"); A(f"v_add_f32 v{vSB}, v{vSB}, v{vS2+1}")
    vXW = vU + 9 + 3
    A(f"v_lshlrev_b32 v{vXW}, 3, v{vLANE}")
    A(f"v_add_u32 v{vXW}, s{sT1}, v{vXW}")
    A(f"v_mov_b32 v{vS2}, s{sT2}"); A(f"v_mov_b32 v{vXW+1}, s{sT0}")
    A("s_mov_b64 exec, 1")
    A(f"ds_write_b64 v{vS2}, v[{vS}:{vS+1}] offset:{STAT}")
    A("s_mov_b64 exec, -1")
    lds_signal(C_STAT)
    lds_wait(C_STAT, 4)
    A(f"ds_read_b128 {r4(vZ)}, v{vXW+1} offset:{STAT}")
    A("s_waitcnt lgkmcnt(0)")
    A(f"v_add_f32 v{vS}, v{vZ}, v{vZ+2}"); A(f"v_add_f32 v{vSB}, v{vZ+1}, v{vZ+3}")
    A(f"v_mul_f32 v{vS}, 0x3a800000, v{vS}"); A(f"v_mul_f32 v{vSB}, 0x3a800000, v{vSB}")
    A(f"v_add_f32 v{vMEAN}, s{sPIV}, v{vS}")
    A(f"v_fma_f32 v{vS}, -v{vS}, v{vS}, v{vSB}")
    A(f"v_max_f32 v{vS}, 0, v{vS}")
    bf16r(vS, vS)
    A(f"v_add_f32 v{vS}, 0x3727c5ac, v{vS}")
    bf16r(vS, vS)
    vSQ = vX + 3; vR = vX + 4; vE = vX + 5
    A(f"v_sqrt_f32 v{vSQ}, v{vS}")
    bf16r(vMEAN, vMEAN)
    A(f"v_rcp_f32 v{vR}, v{vSQ}")
    A(f"v_fma_f32 v{vE}, -v{vSQ}, v{vSQ}, v{vS}")
    A(f"v_mul_f32 v{vE}, 0.5, v{vE}")
    A(f"v_fma_f32 v{vSQ}, v{vE}, v{vR}, v{vSQ}")
    bf16r(vSQ, vSQ)
    A(f"v_rcp_f32 v{vR}, v{vSQ}")
    for k in range(8): A(f"v_sub_f32 v{vY+k}, v{vY+k}, v{vMEAN}")
    for k in range(8): bf16r(vY + k, vY + k)
    for k in range(8): A(f"v_mul_f32 v{vZ+k}, v{vY+k}, v{vR}")
    vZ2 = vX + 8
    for k in range(8): A(f"v_fma_f32 v{vZ2+k}, -v{vZ+k}, v{vSQ}, v{vY+k}")
    for k in range(8): A(f"v_fma_f32 v{vZ+k}, v{vZ2+k}, v{vR}, v{vZ+k}")
    for g in range(4):
        A(f"v_cvt_pk_bf16_f32 v{vY+2*g}, v{vZ+g}, v{vZ+g}"); A(f"v_cvt_pk_bf16_f32 v{vY+2*g+1}, v{vZ+g+4}, v{vZ+g+4}")
    for g in range(4): A(f"ds_write_b64 v{vXW}, v[{vY+2*g}:{vY+2*g+1}] offset:{XDUP + g*XSTR}")
    lds_signal(C_XDUP)
    A(f"s_lshl_b32 s{sT0}, s{sSUB}, 7"); A(f"s_lshl_b32 s{sT1}, s{sW}, 5"); A(f"s_add_u32 s{sT0}, s{sT0}, s{sT1}")
    A(f"v_add_u32 v{vU+24}, s{sT0}, v{vXA}")
    zero4(vD)
    lds_wait(C_XDUP, 4)
    stamp(1)
    A(f"ds_read_b128 {r4(vX)}, v{vU+24} offset:{XDUP}")
    A(f"ds_read_b128 {r4(vX+4)}, v{vU+24} offset:{XDUP+16}")
    A(f"s_lshl_b32 s{sT0}, s{sW}, 10")
    A(f"v_add_u32 v{vU+25}, s{sT0}, v{vL16}")
    vms.wait(("wq", 7))
    A("s_waitcnt lgkmcnt(0)")
    mfma_rows([vX + n for n in range(8)], [slot(WQS + n) for n in range(8)], vD)
    A(f"ds_write_b128 v{vU+25}, {r4(vD)} offset:{QD}")
    lds_signal(C_QD)
    vm = vms
    if qby == "streamer":
        A(f"s_cmp_lg_u32 s{sW}, 0"); A("s_cbranch_scc1 L_sq_done")
        QEXCH(lambda: lds_wait(C_CLR, 1))
        A("L_sq_done:")
    st = {"direct": True}
    for n in range(WE, KPRE):
        A(f"s_waitcnt vmcnt({WE-1})")
        kv_issue(n, SRD_C, ("k", n), st, 16)
    vm.q = [("k", n) for n in range(KPRE)]; vm.seen.update(vm.q)
    if "qwait" not in skip: lds_wait(C_QRDY, 1)
    A(f"v_lshlrev_b32 v{vTMP}, 4, v{vC}")
    A(f"ds_read_b128 {r4(vQ)}, v{vTMP} offset:{QPK}")
    vMX = vU + 25; vSA = vU + 26; vSC = vU + 27; vS1 = vU + 28; vLs = vU + 29; vE1 = vU + 30; vE2 = vU + 31
    A(f"v_mov_b32 v{vMX}, 0xff800000"); A(f"v_mov_b32 v{vLs}, 0")
    A(f"s_lshl_b32 s{sT0}, s{sW}, 12")
    A(f"v_lshlrev_b32 v{vSA}, 2, v{vLANE}")
    A(f"v_add_u32 v{vSA}, s{sT0}, v{vSA}")
    A("s_waitcnt lgkmcnt(0)")
    if dbg:
        A(f"s_lshl_b32 s{sT0}, s2, 14"); A(f"s_lshl_b32 s{sT1}, s{sW}, 10"); A(f"s_add_u32 s{sT0}, s{sT0}, s{sT1}"); A(f"s_add_u32 s{sT0}, s{sT0}, {WS_DBG}")
        A(f"buffer_store_dwordx4 {r4(vQ)}, v{vL16}, {WSR}, s{sT0} offen"); A("s_waitcnt vmcnt(0)")
    stamp(2)
    def kpost(T):
        o = []
        for j in range(8): o.append(f"v_add_f32_dpp v{T+j}, v{T+j}, v{T+j} row_ror:8 row_mask:0xf bank_mask:0x3")
        for j in range(8): o.append(f"v_add_f32_dpp v{T+j}, v{T+j+8}, v{T+j+8} row_ror:8 row_mask:0xf bank_mask:0xc")
        for j in range(4): o.append(f"v_add_f32_dpp v{T+j}, v{T+j}, v{T+j} row_shl:4 row_mask:0xf bank_mask:0x5")
        for j in range(4): o.append(f"v_add_f32_dpp v{T+j}, v{T+j+4}, v{T+j+4} row_shr:4 row_mask:0xf bank_mask:0xa")
        for j in range(4): o.append(f"v_add_f32_dpp v{T+8+j}, v{T+j}, v{T+j} quad_perm:[2,3,0,1] row_mask:0xf bank_mask:0xf")
        o.append(f"v_cndmask_b32 v{T}, v{T+8}, v{T+10}, s[{sBIT1}:{sBIT1+1}]")
        o.append(f"v_cndmask_b32 v{T+1}, v{T+9}, v{T+11}, s[{sBIT1}:{sBIT1+1}]")
        o.append(f"v_add_f32_dpp v{T+8}, v{T}, v{T} quad_perm:[1,0,3,2] row_mask:0xf bank_mask:0xf")
        o.append(f"v_add_f32_dpp v{T+9}, v{T+1}, v{T+1} quad_perm:[1,0,3,2] row_mask:0xf bank_mask:0xf")
        o.append(f"v_cndmask_b32 v{vSC}, v{T+8}, v{T+9}, s[{sBIT0}:{sBIT0+1}]")
        o += [f"v_cvt_pk_bf16_f32 v{vSC}, v{vSC}, v{vSC}", f"v_and_b32 v{vSC}, 0xffff0000, v{vSC}",
              f"v_mul_f32 v{vSC}, {hex(SCALE)}, v{vSC}",
              f"v_cvt_pk_bf16_f32 v{vSC}, v{vSC}, v{vSC}", f"v_and_b32 v{vSC}, 0xffff0000, v{vSC}",
              f"ds_write_b32 v{vSA}, v{vSC} offset:{SCO}",
              f"v_max_f32 v{vS1}, v{vMX}, v{vSC}",
              f"v_sub_f32 v{vE1}, v{vMX}, v{vS1}", f"v_sub_f32 v{vE2}, v{vSC}, v{vS1}",
              f"v_mul_f32 v{vE1}, {hex(LOG2E)}, v{vE1}", f"v_mul_f32 v{vE2}, {hex(LOG2E)}, v{vE2}",
              f"v_exp_f32 v{vE1}, v{vE1}", f"v_exp_f32 v{vE2}, v{vE2}",
              f"v_mov_b32 v{vMX}, v{vS1}", f"v_add_u32 v{vSA}, 256, v{vSA}",
              f"v_fma_f32 v{vLs}, v{vLs}, v{vE1}, v{vE2}"]
        return o
    def kblock(base, T, post, issue, slot0=0):
        n = len(post); per = (n + 15) // 16
        for j in range(16):
            vm.wait(("k", base + j))
            issue(base + j)
            b = slot(slot0 + j)
            A(f"v_dot2_f32_bf16 v{T+j}, v{b}, v{vQ}, 0")
            for k in range(1, 4): A(f"v_dot2_f32_bf16 v{T+j}, v{b+k}, v{vQ+k}, v{T+j}")
            for ins in post[j*per:(j+1)*per]: A(ins)
    def retag(name, shift):
        vm.q = [((name, t[1] + shift) if (isinstance(t, tuple) and t[0] == name) else t) for t in vm.q]
        vm.seen = set(vm.q)
    T0, T1 = vT, vX
    def steady(srdb, nm, ring, dp=None):
        dp = dp or DP
        assert dp[-1] == 0 and 16 % len(dp) == 0
        def f(n):
            tgt = n + W - dp[n % len(dp)]; prev = n - 1 + W - dp[(n - 1) % len(dp)]
            for m in range(prev + 1, tgt + 1): kv_issue(m, srdb, (nm, m), st, ring)
        return f
    st = {}
    def iss_first(n, ring, pre, srdb, nm):
        if pre < ring or W > ring - 1:
            if n + W >= pre: kv_issue(n + W, srdb, (nm, n + W), st, ring)
        else:
            if 1 <= n <= W: kv_issue(ring + n - 1, srdb, (nm, ring + n - 1), st, ring)
    st = {"direct": True}
    def iss_k01(n):
        if 1 <= n <= W: kv_issue(KPRE + n - 1, SRD_C, ("k", KPRE + n - 1), st, 16)
        elif n >= KPRE and n + W >= KPRE + W: kv_issue(n + W, SRD_C, ("k", n + W), st, 16)
    assert W < KPRE or KPRE == W or True
    if KPRE <= W + 1:
        def iss_k01(n):
            if n + W >= max(KPRE, W): kv_issue(n + W, SRD_C, ("k", n + W), st, 16)
    for m in range(KPRE, W): kv_issue(m, SRD_C, ("k", m), st, 16)
    kblock(0, T0, [], iss_k01)
    stamp(11)
    kblock(16, T1, kpost(T0), iss_k01, slot0=16)
    stamp(12)
    retag("k", -32)
    A(f"s_add_u32 s{sRUN}, s{sRUN}, 131072")
    lds_signal(C_PROG)
    A(f"s_mov_b32 s{sCNT}, 6")
    if DP2:
        A(f"s_getreg_b32 s{sPAR}, hwreg(HW_REG_XCC_ID, 0, 1)")
        A(f"s_cmp_eq_u32 s{sPAR}, 0"); A("s_cbranch_scc1 L_kloop2")
    for lab, dp in (("L_kloop", DP),) + ((("L_kloop2", DP2),) if DP2 else ()):
        A(f"{lab}:")
        q_in = list(vm.q); st = {}
        kblock(0, T0, kpost(T1), steady(SRD_C, "k", 16, dp))
        kblock(16, T1, kpost(T0), steady(SRD_C, "k", 16, dp))
        retag("k", -32)
        assert vm.q == q_in, (vm.q, q_in)
        lds_signal(C_PROG)
        stamp_loop(17, sCNT, 6)
        A(f"s_add_u32 s{sRUN}, s{sRUN}, 131072")
        A(f"s_sub_u32 s{sCNT}, s{sCNT}, 1"); A(f"s_cmp_lg_u32 s{sCNT}, 0"); A(f"s_cbranch_scc1 {lab}")
        if DP2 and lab == "L_kloop": A("s_branch L_kloop_end")
    A("L_kloop_end:")
    st = {}
    kblock(0, T0, kpost(T1), lambda n: kv_issue(n + W, SRD_C, ("k", n + W), st, 16))
    retag("k", -16)
    A(f"s_add_u32 s{sRUN}, s{sRUN}, 65536")
    st = {}
    sRUNV = sT2
    A(f"s_lshl_b32 s{sT0}, s{sW}, 12"); A(f"s_add_u32 s{sRUNV}, s{sROT}, s{sT0}")
    VOFF = 16 if R == 32 else 0
    def issl(j):
        if j + W < 16: kv_issue(j + W, SRD_C, ("k", j + W), st, 16)
        else:
            if st.get("epoch", 0) == 0:
                st["epoch"] = 1; st["slot0"] = VOFF; A(f"s_mov_b32 s{sRUN}, s{sRUNV}")
            kv_issue(j + W - 16, SRD_D, ("v", j + W - 16), st, R)
    kblock(0, T1, kpost(T0), issl)
    for ins in kpost(T1): A(ins)
    stamp(3)
    A(f"v_mov_b32 v{vS1}, v{vMX}")
    allreduce("v_max_f32", vS1, vE1)
    exp_diff(vE1, vMX, vS1)
    A(f"v_mul_f32 v{vLs}, v{vLs}, v{vE1}")
    allreduce("v_add_f32", vLs, vE1)
    vPAIR = vX
    A(f"v_mov_b32 v{vPAIR}, v{vS1}"); A(f"v_mov_b32 v{vPAIR+1}, v{vLs}")
    A(f"s_lshl_b32 s{sT0}, s{sW}, 3"); A(f"v_mov_b32 v{vE1}, s{sT0}")
    A("s_mov_b64 exec, 1")
    A(f"ds_write_b64 v{vE1}, v[{vPAIR}:{vPAIR+1}] offset:{MLW}")
    A("s_mov_b64 exec, -1")
    lds_signal(C_MLW)
    st = {"epoch": 1, "slot0": VOFF}
    for n in range(W, R):
        A(f"s_waitcnt vmcnt({W-1})")
        kv_issue(n, SRD_D, ("v", n), st, R)
    A(f"v_subrev_u32 v{vSA}, 4096, v{vSA}")
    vL = None; vP = vU + 31; vSN = vU + 32; vP2 = vU + 33; vMG = vX + 2; vIL = vX + 3
    A(f"ds_read_b32 v{vSN}, v{vSA} offset:{SCO}")
    zero4(vD)
    if "mlwait" not in skip: lds_wait(C_MLRDY, 1)
    A(f"v_mov_b32 v{vE1}, 0")
    A(f"ds_read_b64 v[{vMG}:{vMG+1}], v{vE1} offset:{MLF}")
    stamp(10)
    def vblock(base, issue, last=False):
        A("s_waitcnt lgkmcnt(0)")
        exp_diff(vP, vSN, vMG)
        if not last:
            A(f"v_add_u32 v{vSA}, 256, v{vSA}")
            A(f"ds_read_b32 v{vSN}, v{vSA} offset:{SCO}")
        A(f"v_mul_f32 v{vP}, v{vP}, v{vIL}")
        A(f"v_cvt_pk_bf16_f32 v{vP2}, v{vP}, v{vP}")
        for j in range(16):
            vm.wait(("v", base + j))
            issue(base + j)
            mfma_row(vA0 if j % 2 == 0 else vA1, vP2, slot((base + j + VOFF) % R), vD, dpp=j)
    NB = R // 16
    vm.q = [("v", n) for n in range(R)]; vm.seen.update(vm.q)
    st = {"epoch": 1, "slot0": VOFF}
    for bb in range(NB):
        vblock(16 * bb, lambda n: iss_first(n, R, R, SRD_D, "v"))
    stamp(13)
    retag("v", -R)
    A(f"s_add_u32 s{sRUN}, s{sRUN}, {65536*NB}")
    assert not (W2 and NB != 1)
    nloop = 16 // NB - 2 - (N2 if W2 else 0)
    A(f"s_mov_b32 s{sCNT}, {nloop}")
    if DP2:
        A(f"s_cmp_eq_u32 s{sPAR}, 0"); A("s_cbranch_scc1 L_vloop_b")
    for lab, dp in (("L_vloop", DP),) + ((("L_vloop_b", DP2),) if DP2 else ()):
        A(f"{lab}:")
        q_in = list(vm.q); st = {"epoch": 1, "slot0": VOFF}
        for bb in range(NB):
            vblock(16 * bb, steady(SRD_D, "v", R, dp))
        retag("v", -R)
        assert vm.q == q_in, (vm.q, q_in)
        stamp_loop(32, sCNT, nloop)
        A(f"s_add_u32 s{sRUN}, s{sRUN}, {65536*NB}")
        A(f"s_sub_u32 s{sCNT}, s{sCNT}, 1"); A(f"s_cmp_lg_u32 s{sCNT}, 0"); A(f"s_cbranch_scc1 {lab}")
        if DP2 and lab == "L_vloop": A("s_branch L_vloop_end")
    A("L_vloop_end:")
    WL = W
    if W2:
        WL = W2
        st = {"epoch": 1, "slot0": VOFF}
        def iss_grow(n):
            lo = W if n == 0 else n + W2
            for m in range(lo, n + W2 + 1): kv_issue(m, SRD_D, ("v", m), st, R)
        vblock(0, iss_grow)
        retag("v", -16)
        A(f"s_add_u32 s{sRUN}, s{sRUN}, 65536")
        if N2 > 1:
            A(f"s_mov_b32 s{sCNT}, {N2 - 1}")
            A("L_vloop2:")
            q_in = list(vm.q); st = {"epoch": 1, "slot0": VOFF}
            vblock(0, lambda n: kv_issue(n + W2, SRD_D, ("v", n + W2), st, R))
            retag("v", -16)
            assert vm.q == q_in
            A(f"s_add_u32 s{sRUN}, s{sRUN}, 65536")
            A(f"s_sub_u32 s{sCNT}, s{sCNT}, 1"); A(f"s_cmp_lg_u32 s{sCNT}, 0"); A("s_cbranch_scc1 L_vloop2")
    A(f"v_lshrrev_b32 v{vX+4}, 1, v{vG}"); A(f"v_lshlrev_b32 v{vX+4}, 9, v{vX+4}")
    A(f"v_and_b32 v{vX+5}, 1, v{vG}"); A(f"v_lshl_add_u32 v{vX+4}, v{vX+5}, 4, v{vX+4}")
    A(f"v_lshl_add_u32 v{vX+4}, v{vC}, 5, v{vX+4}")
    A(f"v_lshrrev_b32 v{vX+5}, 2, v{vX+4}")
    A(f"s_cmp_lg_u32 s{sW}, 2"); A("s_cbranch_scc1 L_noyf")
    lds_wait(C_YP, 1)
    A(f"v_lshlrev_b32 v{vX+6}, 2, v{vLANE}")
    A(f"ds_read_b128 {r4(vT)}, v{vL16} offset:{QD}")
    A(f"ds_read_b32 v{vT+4}, v{vX+6} offset:{QD+1024}")
    A("L_noyf:")
    st = {"epoch": 1, "slot0": VOFF}
    for bb in range(NB):
        vblock(16 * bb, lambda n: kv_issue(n + WL, SRD_D, ("v", n + WL), st, R) if n + WL < R else None, last=(bb == NB - 1))
    A(f"v_lshlrev_b32 v{vTMP}, 5, v{vC}")
    A(f"v_lshl_add_u32 v{vTMP}, v{vG}, 4, v{vTMP}")
    A(f"s_lshl_b32 s{sT0}, s{sBOXH}, 11"); A(f"s_lshl_b32 s{sT1}, s{sW}, 9"); A(f"s_add_u32 s{sT0}, s{sT0}, s{sT1}"); A(f"s_add_u32 s{sT0}, s{sT0}, {WS_X2}")
    A("s_mov_b32 exec_hi, 0")
    A(f"buffer_store_dwordx4 {r4(vD)}, v{vTMP}, {WSR}, s{sT0} offen sc1")
    A("s_mov_b64 exec, -1")
    stamp(4)
    A(f"s_cmp_lg_u32 s{sW}, 2"); A("s_cbranch_scc1 L_noxy")
    A(f"s_lshl_b32 s{sT0}, s{sBOXC}, 1"); A(f"s_add_u32 s{sT0}, s{sT0}, {WS_XY}")
    if "xypub" not in skip:
        A(f"buffer_store_dwordx4 {r4(vT)}, v{vX+4}, {WSR}, s{sT0} offen sc1")
        A(f"buffer_store_dword v{vT+4}, v{vX+5}, {WSR}, s{sT0} offen offset:1024 sc1")
    A("L_noxy:")
    A("s_barrier")
    if stamps:
        A(f"s_cmp_lg_u32 s{sW}, 0"); A("s_cbranch_scc1 L_nost")
        stamp_store(0)
        A("L_nost:")
    A(f"s_cmp_lg_u32 s{sW}, 1"); A("s_cbranch_scc1 L_sexit")
    A(f"s_and_b32 s{sT0}, s{sH}, 7"); A(f"s_cmp_eq_u32 s{sT0}, s{sSUB}"); A("s_cbranch_scc0 L_sexit")
    A(f"s_lshr_b32 s{sK4}, s{sH}, 3")
    A(f"v_lshlrev_b32 v{vU+28}, 10, v{vG}")
    A(f"v_bfe_u32 v{vU+26}, v{vLANE}, 3, 1"); A(f"v_lshl_add_u32 v{vU+28}, v{vU+26}, 9, v{vU+28}")
    A(f"v_and_b32 v{vU+29}, 7, v{vLANE}"); A(f"v_lshl_add_u32 v{vU+28}, v{vU+29}, 4, v{vU+28}")
    GATE()
    A("L_sexit:")
    A("s_endpgm")

    A("L_helper_issue:")
    vmh = VM(A)
    srd(SRD_WS, sWS, 0x1000000)
    srd(SRD_Q, sV if hmode == "contig" else sX, 0x4000000 if hmode == "contig" else 0)
    sSF, sRB = 53, 54
    A(f"s_and_b32 s{sSF}, s2, 7"); A(f"s_lshl_b32 s{sSF}, s{sSF}, 3"); A(f"s_lshr_b32 s{sT0}, s2, 3"); A(f"s_and_b32 s{sT1}, s{sT0}, 7"); A(f"s_add_u32 s{sSF}, s{sSF}, s{sT1}")
    A(f"s_lshr_b32 s{sRB}, s{sT0}, 3")
    A(f"v_lshrrev_b32 v{vF1}, 3, v{vC}"); A(f"v_lshl_add_u32 v{vF1}, v{vF1}, 2, v{vG}")
    A(f"v_mul_u32_u24 v{vF1}, 7168, v{vF1}")
    A(f"v_and_b32 v{vWD}, 7, v{vC}"); A(f"v_lshl_add_u32 v{vF1}, v{vWD}, 4, v{vF1}")
    A(f"v_mov_b32 v{vWD2}, 0x40000000")
    A(f"v_cmp_gt_u32 vcc, 7, v{vWD}")
    A(f"v_cndmask_b32 v{vF1}, v{vWD2}, v{vF1}, vcc")
    A(f"s_and_b32 s{sT0}, s{sHW}, 1"); A(f"s_cmp_eq_u32 s{sT0}, 0")
    A(f"s_cselect_b32 s{sT2}, s{sWG}, s{sWU}"); A(f"s_cselect_b32 s{sT3}, s{sWG+1}, s{sWU+1}")
    A(f"s_mul_i32 s{sT0}, s{sSF}, 112")
    A(f"s_add_u32 s{SRD_B}, s{sT2}, s{sT0}"); A(f"s_addc_u32 s{SRD_B+1}, s{sT3}, 0")
    A(f"s_mov_b32 s{SRD_B+2}, {1024*7168 - 63*112}"); A(f"s_mov_b32 s{SRD_B+3}, 0x20000")
    A(f"s_lshl_b32 s{sT0}, s{sRB}, 8"); A(f"s_lshr_b32 s{sT1}, s{sHW}, 1"); A(f"s_lshl_b32 s{sT1}, s{sT1}, 7")
    A(f"s_add_u32 s{sT0}, s{sT0}, s{sT1}"); A(f"s_mul_i32 s{sRUN}, s{sT0}, 7168")
    A(f"v_lshlrev_b32 v{vWD}, 11, v{vG}")
    A(f"v_lshl_add_u32 v{vWD}, v{vC}, 4, v{vWD}")
    A(f"s_cmp_lg_u32 s{sHW}, 3"); A("s_cbranch_scc0 L_wd_oob")
    A(f"v_mov_b32 v{vWD2}, v{vWD}")
    A("L_wd_oob:")
    A(f"s_mul_i32 s{sT0}, s{sH}, {112*2048}"); A(f"s_lshl_b32 s{sT1}, s{sSUB}, 8"); A(f"s_add_u32 s{sT0}, s{sT0}, s{sT1}")
    srd(SRD_C, sWD, 111 * 2048 + 256, add=sT0)
    A(f"s_lshl_b32 s{sT0}, s{sH}, 18"); A(f"s_add_u32 s{sT0}, s{sT0}, s{sT1}")
    srd(SRD_D, sWO, 127 * 2048 + 256, add=sT0)
    sHB = sCNT
    A(f"s_lshl_b32 s{sHB}, s{sHW}, 16")
    def h_issue(n):
        if n >= 32: return
        if hmode == "contig":
            A(f"s_lshl_b32 s{sOFF}, s2, 17"); A(f"s_lshl_b32 s{sT5}, s{sHW}, 10"); A(f"s_add_u32 s{sOFF}, s{sOFF}, s{sT5}"); A(f"s_add_u32 s{sOFF}, s{sOFF}, {n*4096}")
            A(f"buffer_load_dwordx4 {r4(slot(n))}, v{vL16}, s[{SRD_Q}:{SRD_Q+3}], s{sOFF} offen {wflag}")
        elif hmode == "none":
            A(f"s_mov_b32 s{sOFF}, 0")
            A(f"buffer_load_dwordx4 {r4(slot(n))}, v{vL16}, s[{SRD_A}:{SRD_A+3}], s{sOFF} offen")
        elif n < 16:
            A(f"s_add_u32 s{sOFF}, s{sRUN}, {n*57344}")
            A(f"buffer_load_dwordx4 {r4(slot(n))}, v{vF1}, s[{SRD_B}:{SRD_B+3}], s{sOFF} offen {wflag}")
        elif n < 24:
            A(f"s_add_u32 s{sOFF}, s{sHB}, {(n-16)*8192}")
            A(f"buffer_load_dwordx4 {r4(slot(n))}, v{vWD if n < 20 else vWD2}, s[{SRD_C}:{SRD_C+3}], s{sOFF} offen {wflag}")
        else:
            A(f"s_add_u32 s{sOFF}, s{sHB}, {(n-24)*8192}")
            A(f"buffer_load_dwordx4 {r4(slot(n))}, v{vWD}, s[{SRD_D}:{SRD_D+3}], s{sOFF} offen {wflag}")
        vmh.issue(("h", n))
    A("s_waitcnt lgkmcnt(0)")
    A("s_barrier")
    A(f"s_add_u32 s{sTAG}, s{sTAG}, 1")
    A(f"s_cmp_lg_u32 s{sHW}, 0"); A("s_cbranch_scc1 L_noclear")
    if "clear" in skip: A("s_branch L_noclear")
    for k in range(4): A(f"v_mov_b32 v{vD2+k}, -1")
    A(f"s_add_u32 s{sT1}, s{sBOXC}, {WS_X3}")
    A(f"buffer_store_dwordx4 {r4(vD2)}, v{vL16}, {WSR}, s{sT1} offen sc1")
    A(f"s_lshl_b32 s{sT0}, s{sBOXH}, 11"); A(f"s_add_u32 s{sT1}, s{sT0}, {WS_X2}")
    A(f"buffer_store_dwordx4 {r4(vD2)}, v{vL16}, {WSR}, s{sT1} offen sc1")
    A(f"buffer_store_dwordx4 {r4(vD2)}, v{vL16}, {WSR}, s{sT1} offen offset:1024 sc1")
    A(f"s_lshl_b32 s{sT1}, s{sBOXH}, 7"); A(f"s_add_u32 s{sT1}, s{sT1}, {WS_XM}")
    A("s_mov_b64 exec, 0xff")
    A(f"buffer_store_dwordx4 {r4(vD2)}, v{vL16}, {WSR}, s{sT1} offen sc1")
    A("s_mov_b64 exec, -1")
    A("L_noclear:")
    for n in range(WH): h_issue(n)
    masks()
    if qby == "helper":
        A(f"s_cmp_lg_u32 s{sHW}, 0"); A("s_cbranch_scc1 L_hstart")
        QEXCH(lambda: A("s_waitcnt vmcnt(0)"))
    else:
        A(f"s_cmp_lg_u32 s{sHW}, 0"); A("s_cbranch_scc1 L_hstart")
        A(f"s_waitcnt vmcnt({WH})")
        lds_signal(C_CLR)
    A("L_hstart:")
    vm = vmh
    vm.q = [("h", n) for n in range(WH)]; vm.seen.update(vm.q)
    for n in range(32 - WH):
        vm.wait(("h", n))
        h_issue(n + WH)
        if n in (0, 7, 15, 23): stamp({0: 13, 7: 14, 15: 15, 23: 18}[n])
    zero4(vD); zero4(vD2)
    A(f"s_lshl_b32 s{sT0}, s{sRB}, 8"); A(f"s_lshr_b32 s{sT1}, s{sHW}, 1"); A(f"s_lshl_b32 s{sT1}, s{sT1}, 7"); A(f"s_add_u32 s{sT0}, s{sT0}, s{sT1}")
    A(f"v_add_u32 v{vU+25}, s{sT0}, v{vXA}")
    lds_wait(C_XDUP, 4)
    vm.wait(("h", 15))
    for half in range(2):
        for q4 in range(4): A(f"ds_read_b128 {r4(vX+4*q4)}, v{vU+25} offset:{XDUP + half*64 + q4*16}")
        A("s_waitcnt lgkmcnt(0)")
        for n in range(8):
            mfma_row(vA0, vX + 2*n, slot(8*half + n), vD)
            mfma_row(vA1, vX + 2*n + 1, slot(8*half + n), vD2)
    A("s_nop 7")
    for r in range(4): A(f"v_add_f32_dpp v{vD+r}, v{vD2+r}, v{vD+r} row_ror:8 row_mask:0xf bank_mask:0xf")
    vRA = vU + 24
    A(f"s_and_b32 s{sT0}, s{sHW}, 1"); A(f"s_lshl_b32 s{sT0}, s{sT0}, 10")
    A(f"v_add_u32 v{vRA}, s{sT0}, v{vL16}")
    A(f"s_cmp_lt_u32 s{sHW}, 2"); A("s_cbranch_scc1 L_f1_keep")
    A(f"ds_write_b128 v{vRA}, {r4(vD)} offset:{RED}")
    lds_signal(C_H1)
    A("L_f1_keep:")
    stamp(2)
    A(f"s_cmp_lt_u32 s{sHW}, 2"); A("s_cbranch_scc0 L_f1_done")
    lds_wait(C_H1, 2)
    A(f"ds_read_b128 {r4(vD2)}, v{vRA} offset:{RED}")
    A("s_waitcnt lgkmcnt(0)")
    for r in range(4): A(f"v_add_f32 v{vD+r}, v{vD+r}, v{vD2+r}")
    A(f"s_cmp_eq_u32 s{sHW}, 0"); A("s_cbranch_scc1 L_f1_h0")
    A(f"ds_write_b128 v{vL16}, {r4(vD)} offset:{RED + 2048}")
    lds_signal(C_H1B)
    A("s_branch L_f1_done")
    A("L_f1_h0:")
    A(f"v_and_b32 v{vU+25}, 7, v{vC}"); A(f"v_lshl_add_u32 v{vU+25}, v{vG}, 4, v{vU+25}"); A(f"v_lshlrev_b32 v{vU+25}, 4, v{vU+25}")
    lds_wait(C_H1B, 1)
    A(f"ds_read_b128 {r4(vD2)}, v{vU+25} offset:{RED + 2048}")
    A(f"v_cmp_lt_u32 vcc, 7, v{vC}")
    A("s_waitcnt lgkmcnt(0)")
    for r in range(4): A(f"v_cndmask_b32 v{vD+r}, v{vD+r}, v{vD2+r}, vcc")
    A(f"v_and_b32 v{vU+26}, 7, v{vC}"); A(f"v_cmp_gt_u32 vcc, 7, v{vU+26}")
    for r in range(4): A(f"v_cndmask_b32 v{vD+r}, 0, v{vD+r}, vcc")
    int_sum(range(vD, vD + 4), vD2)
    for k in (8, 4, 2, 1): A(f"v_add_u32_dpp v{vD2}, v{vD2}, v{vD2} row_ror:{k} row_mask:0xf bank_mask:0xf")
    A(f"v_sub_u32 v{vD2}, s{sTAG}, v{vD2}")
    A(f"v_cmp_eq_u32 vcc, 15, v{vC}")
    A(f"v_cndmask_b32 v{vD}, v{vD}, v{vD2}, vcc")
    A(f"s_lshl_b32 s{sT0}, s{sSF}, 2"); A(f"s_add_u32 s{sT0}, s{sT0}, s{sRB}"); A(f"s_lshl_b32 s{sT0}, s{sT0}, 10"); A(f"s_add_u32 s{sT0}, s{sT0}, {WS_X1}")
    if "x1pub" not in skip: A(f"buffer_store_dwordx4 {r4(vD)}, v{vL16}, {WSR}, s{sT0} offen sc1")
    lds_wait(C_PROG, 4 * PX1, nap=32)
    A(f"s_lshl_b32 s{sT5}, s{sTAG}, 3")
    def x1_issue():
        A(f"s_lshl_b32 s{sT0}, s{sH}, 13"); A(f"s_add_u32 s{sT0}, s{sT0}, {WS_X1}")
        for k in range(8):
            if k == 4: A(f"s_add_u32 s{sT0}, s{sT0}, 4096")
            A(f"buffer_load_dwordx4 {r4(slot(k))}, v{vL16}, {WSR}, s{sT0} offen offset:{(k&3)*1024} sc1")
    if "x1get" not in skip: poll_sum("L_x1poll", x1_issue, range(slot(0), slot(0) + 32), vT, sT5, nap=32, rowreduce=True, masked=False)
    stamp(3)
    for st_ in range(2):
        for r in range(4):
            A(f"v_add_f32 v{vT+4*st_+r}, v{slot(4*st_)+r}, v{slot(4*st_+1)+r}"); A(f"v_add_f32 v{vT+8+r}, v{slot(4*st_+2)+r}, v{slot(4*st_+3)+r}")
        for r in range(4): A(f"v_add_f32 v{vT+4*st_+r}, v{vT+4*st_+r}, v{vT+8+r}")
    for r in range(8): A(f"v_mov_b32_dpp v{vX+r}, v{vT+r} row_ror:8 row_mask:0xf bank_mask:0xf")
    A(f"v_cmp_gt_u32 vcc, 7, v{vC}")
    for r in range(8):
        A(f"v_cndmask_b32 v{vT+r}, 0, v{vT+r}, vcc"); A(f"v_cndmask_b32 v{vX+r}, 0, v{vX+r}, vcc")
    A(f"v_lshrrev_b32 v{vU+25}, 1, v{vG}"); A(f"v_mul_u32_u24 v{vU+25}, {4*HSTR}, v{vU+25}")
    A(f"v_and_b32 v{vU+26}, 1, v{vG}"); A(f"v_lshl_add_u32 v{vU+26}, v{vC}, 1, v{vU+26}")
    A(f"v_lshl_add_u32 v{vU+25}, v{vU+26}, 2, v{vU+25}")
    for st_ in range(2):
        for r in range(4):
            bf16r(vT + 4*st_ + r, vT + 4*st_ + r); bf16r(vX + 4*st_ + r, vX + 4*st_ + r)
            silu(vT + 8, vT + 4*st_ + r, vT + 9, vT + 10)
            A(f"v_mul_f32 v{vT+8}, v{vT+8}, v{vX+4*st_+r}")
            A(f"v_cvt_pk_bf16_f32 v{vT+4*st_+r}, v{vT+8}, v{vT+8}")
        m = 0x007f007f if st_ == 0 else 0x01ff01ff
        A(f"s_mov_b32 exec_lo, {hex(m)}"); A(f"s_mov_b32 exec_hi, {hex(m)}")
        for r in range(4): A(f"ds_write_b32 v{vU+25}, v{vT+4*st_+r} offset:{HDUP + r*HSTR + st_*56}")
        A("s_mov_b64 exec, -1")
    lds_signal(C_H2)
    A("L_f1_done:")
    lds_wait(C_H2, 1, nap=32)
    A(f"v_mul_u32_u24 v{vU+25}, {HSTR}, v{vBG}")
    A(f"s_lshl_b32 s{sT0}, s{sHW}, 5")
    A(f"v_add_u32 v{vU+25}, s{sT0}, v{vU+25}")
    A(f"ds_read_b128 {r4(vX)}, v{vU+25} offset:{HDUP}")
    A(f"ds_read_b128 {r4(vX+4)}, v{vU+25} offset:{HDUP+16}")
    zero4(vD)
    A("s_waitcnt vmcnt(0) lgkmcnt(0)")
    for n in range(8): mfma_row(vA0 if n % 2 == 0 else vA1, vX + n, slot(16 + n), vD)
    vRA = vU + 24
    A(f"s_lshl_b32 s{sT0}, s{sHW}, 10")
    A(f"v_add_u32 v{vRA}, s{sT0}, v{vL16}")
    vPL = vU + 27
    A(f"v_lshrrev_b32 v{vPL}, 1, v{vG}"); A(f"v_lshlrev_b32 v{vPL}, 9, v{vPL}")
    A(f"v_and_b32 v{vU+26}, 1, v{vG}"); A(f"v_lshl_add_u32 v{vPL}, v{vU+26}, 4, v{vPL}")
    A(f"v_lshl_add_u32 v{vPL}, v{vC}, 5, v{vPL}")
    A(f"v_lshrrev_b32 v{vU+57}, 2, v{vPL}")
    A(f"s_lshr_b32 s{sK4}, s{sH}, 3")
    vGA = vU + 28; vOA = vU + 30
    A(f"v_lshlrev_b32 v{vGA}, 10, v{vG}")
    A(f"v_bfe_u32 v{vU+26}, v{vLANE}, 3, 1"); A(f"v_lshl_add_u32 v{vGA}, v{vU+26}, 9, v{vGA}")
    A(f"v_and_b32 v{vU+29}, 7, v{vLANE}"); A(f"v_lshl_add_u32 v{vGA}, v{vU+29}, 4, v{vGA}")
    A(f"v_lshlrev_b32 v{vOA}, 11, v{vU+26}")
    A(f"v_lshl_add_u32 v{vOA}, v{vU+29}, 3, v{vOA}")
    A(f"s_lshl_b32 s{sT0}, s{sSUB}, 8"); A(f"s_lshl_b32 s{sT1}, s{sK4}, 6"); A(f"s_add_u32 s{sT0}, s{sT0}, s{sT1}")
    A(f"v_add_u32 v{vOA}, s{sT0}, v{vOA}")
    A(f"s_and_b32 s{sT0}, s{sH}, 7"); A(f"s_cmp_eq_u32 s{sT0}, s{sSUB}"); A(f"s_cselect_b32 s{sISC}, 1, 0")
    A(f"s_cmp_eq_u32 s{sHW}, 0"); A("s_cbranch_scc1 L_f2_h0")
    A(f"ds_write_b128 v{vRA}, {r4(vD)} offset:{RED}")
    lds_signal(C_H3)
    A("s_branch L_tail")
    A("L_f2_h0:")
    lds_wait(C_H3, 3)
    for w in range(1, 4): A(f"ds_read_b128 {r4(vT+4*w)}, v{vL16} offset:{RED + w*1024}")
    A("s_waitcnt lgkmcnt(0)")
    for r in range(4):
        for w in range(1, 4): A(f"v_add_f32 v{vD+r}, v{vD+r}, v{vT+4*w+r}")
    for k in range(4): A(f"v_mov_b32 v{vT+k}, -1")
    for w in range(1, 4): A(f"ds_write_b128 v{vL16}, {r4(vT)} offset:{RED + w*1024}")
    vYC = vU + 56
    int_sum(range(vD, vD + 4), vYC)
    A(f"v_sub_u32 v{vYC}, s{sTAG}, v{vYC}")
    A(f"v_lshlrev_b32 v{vYC+1}, 2, v{vLANE}")
    A(f"ds_write_b128 v{vL16}, {r4(vD)} offset:{QD}")
    A(f"ds_write_b32 v{vYC+1}, v{vYC} offset:{QD+1024}")
    lds_signal(C_YP)
    sGB = sT3
    def g_issue(base_const):
        def f(setbase):
            A(f"s_lshl_b32 s{sGB}, s{sSUB}, 15"); A(f"s_lshl_b32 s{sT1}, s{sK4}, 7"); A(f"s_add_u32 s{sGB}, s{sGB}, s{sT1}"); A(f"s_add_u32 s{sGB}, s{sGB}, {base_const}")
            for tt in range(8):
                A(f"buffer_load_dwordx4 {r4(setbase+4*tt)}, v{vGA}, {WSR}, s{sGB} offen sc1")
                if tt < 7: A(f"s_add_u32 s{sGB}, s{sGB}, 4096")
        return f
    A("L_xm:")
    stamp(10)
    lds_wait(C_MLW, 4, nap=napml)
    if prio: A(f"s_setprio {prio}")
    vML = vT
    A(f"v_mov_b32 v{vTMP}, 0")
    A(f"ds_read_b128 {r4(vML)}, v{vTMP} offset:{MLW}")
    A(f"ds_read_b128 {r4(vML+4)}, v{vTMP} offset:{MLW+16}")
    A("s_waitcnt lgkmcnt(0)")
    vMM = vT + 8; vLL = vT + 9; vFW = vT + 10
    A(f"v_max_f32 v{vMM}, v{vML}, v{vML+2}")
    A(f"v_max3_f32 v{vMM}, v{vMM}, v{vML+4}, v{vML+6}")
    for w in range(4): exp_diff(vFW + w, vML + 2 * w, vMM)
    A(f"v_mul_f32 v{vLL}, v{vFW}, v{vML+1}")
    for w in range(1, 4): A(f"v_fmac_f32 v{vLL}, v{vFW+w}, v{vML+2*w+1}")
    A(f"s_lshl_b32 s{sT0}, s{sBOXH}, 7"); A(f"s_add_u32 s{sT0}, s{sT0}, {WS_XM}")
    A(f"v_mov_b32 v{vTMP}, 0")
    A("s_mov_b64 exec, 1")
    A(f"buffer_store_dwordx2 v[{vMM}:{vMM+1}], v{vTMP}, {WSR}, s{sT0} offen sc1")
    A("s_mov_b64 exec, -1")
    stamp(11)
    A(f"v_and_b32 v{vU+25}, 3, v{vLANE}"); A(f"v_lshlrev_b32 v{vU+25}, 7, v{vU+25}")
    A(f"s_lshl_b32 s{sT1}, s{sH}, 3"); A(f"s_lshl_b32 s{sT0}, s{sB}, 2"); A(f"s_add_u32 s{sT1}, s{sT1}, s{sT0}"); A(f"s_lshl_b32 s{sT1}, s{sT1}, 7"); A(f"s_add_u32 s{sT1}, s{sT1}, {WS_XM}")
    def xm_issue(sb): A(f"buffer_load_dwordx2 v[{sb}:{sb+1}], v{vU+25}, {WSR}, s{sT1} offen sc1")
    def xm_proc(sb):
        A(f"v_mov_b32 v{vT}, v{sb}"); A(f"v_mov_b32 v{vT+1}, v{sb+1}")
    poll2("L_xmp", xm_issue, 1, slot(0), slot(1), 2, xm_proc, vT + 4)
    A(f"v_max_f32_dpp v{vT+2}, v{vT}, v{vT} quad_perm:[1,0,3,2] row_mask:0xf bank_mask:0xf")
    A(f"v_max_f32_dpp v{vT+2}, v{vT+2}, v{vT+2} quad_perm:[2,3,0,1] row_mask:0xf bank_mask:0xf")
    exp_diff(vT + 3, vT, vT + 2)
    A(f"v_mul_f32 v{vT+3}, v{vT+3}, v{vT+1}")
    A(f"v_add_f32_dpp v{vT+3}, v{vT+3}, v{vT+3} quad_perm:[1,0,3,2] row_mask:0xf bank_mask:0xf")
    A(f"v_add_f32_dpp v{vT+3}, v{vT+3}, v{vT+3} quad_perm:[2,3,0,1] row_mask:0xf bank_mask:0xf")
    A(f"v_rcp_f32 v{vT+5}, v{vT+3}")
    A(f"v_fma_f32 v{vT+6}, -v{vT+3}, v{vT+5}, 1.0")
    A(f"v_fma_f32 v{vT+5}, v{vT+6}, v{vT+5}, v{vT+5}")
    A(f"v_mov_b32 v{vT+4}, v{vT+2}")
    A(f"v_mov_b32 v{vTMP}, 0")
    A("s_mov_b64 exec, 1")
    A(f"ds_write_b64 v{vTMP}, v[{vT+4}:{vT+5}] offset:{MLF}")
    A("s_mov_b64 exec, -1")
    lds_signal(C_MLRDY)
    if prio: A("s_setprio 0")
    stamp(12)
    A("s_waitcnt vmcnt(0)")
    A(f"s_cmp_eq_u32 s{sISC}, 0"); A("s_cbranch_scc1 L_tail")
    A(f"v_and_b32 v{vU+25}, 31, v{vLANE}"); A(f"v_lshlrev_b32 v{vU+25}, 14, v{vU+25}")
    A(f"s_lshl_b32 s{sT3}, s{sSUB}, 11"); A(f"s_add_u32 s{sT3}, s{sT3}, 1008")
    def pf_issue():
        A(f"buffer_load_dwordx4 {r4(slot(0))}, v{vU+25}, {WSR}, s{sT3} offen sc1")
        A(f"buffer_load_dword v{slot(1)}, v{vU+25}, {WSR}, s{sT3} offen offset:268 sc1")
    poll_sum("L_proof", pf_issue, range(slot(0), slot(0) + 5), vT, sTAG, nap=32)
    vXO = vU + 36
    A(f"buffer_load_dwordx2 v[{vU+40}:{vU+41}], v{vOA}, s[{SRD_A}:{SRD_A+3}], 0 offen")
    A("s_waitcnt vmcnt(0)")
    A(f"v_lshlrev_b32 v{vXO}, 16, v{vU+40}"); A(f"v_and_b32 v{vXO+1}, 0xffff0000, v{vU+40}")
    A(f"v_lshlrev_b32 v{vXO+2}, 16, v{vU+41}"); A(f"v_and_b32 v{vXO+3}, 0xffff0000, v{vU+41}")

    A("L_tail:")
    vX2A = vU + 44
    A(f"v_bfe_u32 v{vU+26}, v{vLANE}, 2, 2")
    A(f"v_lshrrev_b32 v{vX2A}, 5, v{vLANE}")
    A(f"v_lshl_add_u32 v{vX2A}, v{vX2A}, 2, v{vU+26}")
    A(f"v_lshlrev_b32 v{vX2A}, 11, v{vX2A}")
    A(f"v_bfe_u32 v{vU+26}, v{vLANE}, 4, 1"); A(f"v_and_b32 v{vU+46}, 3, v{vLANE}")
    A(f"v_lshl_add_u32 v{vU+46}, v{vU+26}, 2, v{vU+46}")
    A(f"v_lshl_add_u32 v{vX2A}, v{vU+46}, 4, v{vX2A}")
    A(f"s_lshl_b32 s{sT0}, s{sHW}, 7")
    A(f"v_add_u32 v{vX2A}, s{sT0}, v{vX2A}")
    vOW = vU + 47; vOR = vU + 48
    A(f"v_lshrrev_b32 v{vOW}, 5, v{vLANE}"); A(f"v_mul_u32_u24 v{vOW}, {4*OSTR}, v{vOW}")
    A(f"v_lshl_add_u32 v{vOW}, v{vU+46}, 2, v{vOW}")
    A(f"s_mul_i32 s{sT0}, s{sHW}, 384")
    A(f"v_add_u32 v{vOW}, s{sT0}, v{vOW}")
    A(f"v_mul_u32_u24 v{vOR}, {OSTR}, v{vBG}"); A(f"v_add_u32 v{vOR}, s{sT0}, v{vOR}")
    sX2 = sT3
    A(f"s_lshl_b32 s{sX2}, s{sH}, 14"); A(f"s_add_u32 s{sX2}, s{sX2}, {WS_X2}")
    zero4(vD)
    A("s_waitcnt vmcnt(0) lgkmcnt(0)")
    A("s_barrier")
    stamp(5)
    def x2_issue(sb):
        for w in range(4):
            A(f"buffer_load_dwordx4 {r4(sb+4*w)}, v{vX2A}, {WSR}, s{sX2} offen offset:{w*512} sc1")
    def x2_proc(sb):
        for r in range(4):
            A(f"v_add_f32 v{vT+r}, v{sb+r}, v{sb+4+r}"); A(f"v_add_f32 v{vT+4+r}, v{sb+8+r}, v{sb+12+r}")
        for r in range(4): A(f"v_add_f32 v{vT+r}, v{vT+r}, v{vT+4+r}")
    if depth > 1: poll_pipe("L_x2", lambda: x2_issue(slot(0)), 4, range(slot(0), slot(0) + 16), vT + 8, depth)
    else: poll_masked("L_x2", lambda: x2_issue(slot(0)), range(slot(0), slot(0) + 16), vT + 8, nap=napx2)
    x2_proc(slot(0))
    stamp(6)
    for k in (4, 8):
        for r in range(4):
            A(f"v_add_f32_dpp v{vT+r}, v{vT+r}, v{vT+r} row_ror:{k} row_mask:0xf bank_mask:0xf")
    for r in range(4):
        A(f"v_cvt_pk_bf16_f32 v{vT+r}, v{vT+r}, v{vT+r}")
    for r in range(4):
        A(f"ds_write_b32 v{vOW}, v{vT+r} offset:{ODUP + r*OSTR}")
    A(f"ds_read_b128 {r4(vX)}, v{vOR} offset:{ODUP}")
    A(f"ds_read_b128 {r4(vX+4)}, v{vOR} offset:{ODUP+16}")
    A("s_waitcnt lgkmcnt(0)")
    mfma_rows([vX + n for n in range(8)], [slot(24 + n) for n in range(8)], vD)
    A(f"s_cmp_eq_u32 s{sHW}, 0"); A("s_cbranch_scc1 L_x3_h0")
    A(f"ds_write_b128 v{vRA}, {r4(vD)} offset:{RED}")
    A("s_endpgm")
    A("L_x3_h0:")
    A(f"s_mov_b32 s{sSPIN2}, {SPIN_LIMIT*4}")
    A("L_r3:")
    for w in range(1, 4): A(f"ds_read_b128 {r4(vT+4*w)}, v{vL16} offset:{RED + w*1024}")
    A("s_waitcnt lgkmcnt(0)")
    check_sentinel(range(vT + 4, vT + 16), vT)
    A("s_cbranch_scc1 L_r3_ok")
    A(f"s_sub_u32 s{sSPIN2}, s{sSPIN2}, 1"); A(f"s_cmp_lg_u32 s{sSPIN2}, 0"); A("s_cbranch_scc1 L_r3")
    A("L_r3_ok:")
    for r in range(4):
        A(f"v_add_f32 v{vD+r}, v{vD+r}, v{vT+4+r}"); A(f"v_add_f32 v{vT+8+r}, v{vT+8+r}, v{vT+12+r}")
    for r in range(4): A(f"v_add_f32 v{vD+r}, v{vD+r}, v{vT+8+r}")
    A(f"s_add_u32 s{sT0}, s{sBOXC}, {WS_X3}")
    A(f"buffer_store_dwordx4 {r4(vD)}, v{vPL}, {WSR}, s{sT0} offen sc1")
    stamp(7)
    A(f"s_cmp_eq_u32 s{sISC}, 0"); A("s_cbranch_scc1 L_fin")
    vGG = vU + 32
    A(f"v_and_b32 v{vU+25}, 15, v{vLANE}"); A(f"v_lshlrev_b32 v{vU+25}, 4, v{vU+25}")
    if gearly:
        lds_wait(C_G, 1)
        A(f"ds_read_b128 {r4(vGG)}, v{vU+25} offset:{RED}")
    if depth > 1: poll_pipe("L_g3", lambda: g_issue(WS_X3)(slot(8)), 8, range(slot(8), slot(8) + 32), vT + 4, depth)
    else: poll_masked("L_g3", lambda: g_issue(WS_X3)(slot(8)), range(slot(8), slot(8) + 32), vT + 4, nap=napx3)
    g_process(slot(8))
    g_finish()
    if not gearly:
        lds_wait(C_G, 1)
        A(f"ds_read_b128 {r4(vGG)}, v{vU+25} offset:{RED}")
    A("s_waitcnt lgkmcnt(0)")
    for r in range(4):
        A(f"v_mul_f32 v{vT+r}, v{vT+r}, v{vGG+r}")
    for r in range(4): bf16r(vT + r, vT + r)
    for r in range(4): A(f"v_add_f32 v{vT+r}, v{vT+r}, v{vXO+r}")
    A(f"v_cvt_pk_bf16_f32 v{vT+4}, v{vT}, v{vT+1}")
    A(f"v_cvt_pk_bf16_f32 v{vT+5}, v{vT+2}, v{vT+3}")
    srd(SRD_B, sOUT, 4096)
    A("s_mov_b64 exec, 0xffff")
    A(f"buffer_store_dwordx2 v[{vT+4}:{vT+5}], v{vOA}, s[{SRD_B}:{SRD_B+3}], 0 offen")
    A(f"s_cmp_lg_u32 s2, 0"); A("s_cbranch_scc1 L_noepoch")
    A(f"v_mov_b32 v{vT}, s{sTAG}"); A(f"v_mov_b32 v{vT+1}, {WS_Z}")
    A("s_mov_b64 exec, 1")
    A(f"buffer_store_dword v{vT}, v{vT+1}, {WSR}, 0 offen sc1")
    A("L_noepoch:")
    A("s_mov_b64 exec, -1")
    A("L_fin:")
    if dbgtime:
        A(f"s_memrealtime s[{sT4}:{sT5}]"); A("s_waitcnt lgkmcnt(0)")
        A(f"s_sub_u32 s{sT4}, s{sT4}, s{sSTAMP0}")
        A(f"s_cmp_ge_u32 s2, 64"); A("s_cbranch_scc1 L_end")
        A(f"s_lshl_b32 s{sT0}, s2, 2"); A(f"v_mov_b32 v{vT}, s{sT4}"); A(f"v_mov_b32 v{vT+1}, s{sT0}")
        A("s_mov_b64 exec, 1")
        A(f"global_store_dword v{vT+1}, v{vT}, s[{sDBG}:{sDBG+1}]")
    if stamps:
        stamp(8)
        stamp_store(256)
    A("L_end:")
    A("s_endpgm")

    probs = A.check_branches()
    for p in probs: print("HAZARD across branch:", p, file=sys.stderr)
    out = HEADER
    out += f"; @launch grid=(256,1,1) block=(512,1,1) lds={LDS_BYTES}\n"
    out += '.amdgcn_target "amdgcn-amd-amdhsa--gfx950"\n.text\n'
    out += f".globl {KNAME}\n.p2align 8\n.type {KNAME},@function\n"
    out += A.text()
    out += f""".section .rodata,"a"
.p2align 6
.amdhsa_kernel {KNAME}
  .amdhsa_next_free_vgpr 256
  .amdhsa_next_free_sgpr 96
  .amdhsa_accum_offset 256
  .amdhsa_group_segment_fixed_size 0
  .amdhsa_kernarg_size 96
  .amdhsa_user_sgpr_count 2
  .amdhsa_user_sgpr_kernarg_segment_ptr 1
  .amdhsa_system_sgpr_workgroup_id_x 1
  .amdhsa_float_denorm_mode_32 3
.end_amdhsa_kernel
"""
    return out

if __name__ == "__main__":
    kw = eval("dict(" + (sys.argv[2] if len(sys.argv) > 2 else "") + ")")
    open(sys.argv[1], "w").write(gen(**kw))
```

```python
import sys
sys.path.insert(0, "gen")
from asmlib import Asm, VM

KNAME = "recurrent_scan__mha_block_cached__swiglu_ffn__decode_kernel"

HEADER = """; Kernarg layout for this problem (96 bytes, ptrs only, base s[0:1]):
;
;   waves 0-3 (streamers): LayerNorm, q partial over 128 rows of wq, then stream K (scores via v_dot2 + a transposing
;       loads in flight per wave is kept near the point where HBM just saturates.
;   waves 4-7 (helpers): FFN slices (gate/up tile, w_down tile), hold the wo tile, run the hand-offs and the output.
;   XQ q partials, X1 gate/up partials, XY down-projection partials: checked with check words built from an epoch tag
"""

XDUP = 0; XSTR = 1040
HDUP = 8320; HSTR = 144
ODUP = 9472; OSTR = 48
CNT = 11008
C_QRDY, C_H1, C_H1B, C_H2, C_H3, C_MLW, C_MLRDY, C_STAT, C_XDUP, C_QD, C_PROG, C_G, C_R3, C_YP, C_CLR = 0, 4, 8, 12, 16, 20, 24, 28, 32, 36, 40, 44, 48, 52, 56
QD = 11264
QPK = 19456
MLW = 19712
MLF = 19744
STAT = 19776
RED = 19968
SCO = 24064
LDS_BYTES = 40448

WS_XQ = 0x000000
WS_X1 = 0x080000
WS_XY = 0x100000
WS_X2 = 0x200000
WS_X3 = 0x300000
WS_XM = 0x400000
WS_XH = 0x480000
WS_Z = 0x500000
WS_DBG = 0x800000

LOG2E = 0x3FB8AA3B
SCALE = 0x3DB504F3
SPIN_LIMIT = 400000

def gen(W=5, WH=4, WE=3, R=16, KPRE=16, qpoll="light", hmode="normal", skip="", napx2=0, napx3=0, PX1=3, ml2=False, outflag='', DP2=None, qby='helper', gearly=True, napgy=8, depth=2, W2=0, N2=0, DP=(0,0,0,0), dbgtime=False, lite=False, prio=2, napml=1, rotk=7, wqflag="nt", kvflag="nt", wflag="nt", dbg=False, stamps=False, sleep=1):
    A = Asm()
    sX, sK, sV, sWQ, sWO, sWG, sWU, sWD, sOUT, sDBG, sWS = 8, 10, 12, 14, 16, 20, 22, 24, 26, 28, 30
    sW, sH, sSUB, sB, sSPLIT, sHW = 3, 32, 33, 34, 35, 36
    sT0, sT1, sT2, sT3 = 37, 38, 39, 40
    sRUN, sOFF, sCNT, sROT = 41, 42, 43, 44
    sBOXH = 45
    sBIT0, sBIT1 = 46, 48
    sSPIN = 50; sSPIN2 = 51
    SRD_A, SRD_B, SRD_C, SRD_D, SRD_WS, SRD_Q = 56, 60, 64, 68, 72, 84
    sPAR = 55
    sSTAMP0 = 76
    sT4, sT5 = 78, 79
    sISC, sK4, sBOXC, sTAG = 80, 81, 82, 83
    vLANE, vL16, vTMP = 1, 2, 3
    vM = 4; vA0, vA1 = 8, 12; vD = 16; vD2 = 20; vQ = 24; vT = 28; vX = 44; vU = 60
    vG, vC, vXA, vBG = vU, vU + 1, vU + 5, vU + 6
    vWQD = 92
    vSIG = 127; vST = 126
    RING = 128
    def slot(i): return RING + 4 * i
    def r4(b): return f"v[{b}:{b+3}]"
    WSR = f"s[{SRD_WS}:{SRD_WS+3}]"

    def srd(base, ptr, size, add=None):
        if add is None:
            A(f"s_mov_b32 s{base}, s{ptr}"); A(f"s_mov_b32 s{base+1}, s{ptr+1}")
        else:
            A(f"s_add_u32 s{base}, s{ptr}, s{add}"); A(f"s_addc_u32 s{base+1}, s{ptr+1}, 0")
        A(f"s_mov_b32 s{base+2}, {size}"); A(f"s_mov_b32 s{base+3}, 0x20000")
    def bf16r(dst, src):
        A(f"v_cvt_pk_bf16_f32 v{dst}, v{src}, v{src}")
        A(f"v_and_b32 v{dst}, 0xffff0000, v{dst}")
    def allreduce(op, r, tmp):
        for k in (8, 4, 2, 1):
            A(f"{op}_dpp v{r}, v{r}, v{r} row_ror:{k} row_mask:0xf bank_mask:0xf")
        A(f"v_mov_b32 v{tmp}, v{r}"); A(f"v_permlane16_swap_b32 v{r}, v{tmp}"); A(f"{op} v{r}, v{r}, v{tmp}")
        A(f"v_mov_b32 v{tmp}, v{r}"); A(f"v_permlane32_swap_b32 v{r}, v{tmp}"); A(f"{op} v{r}, v{r}, v{tmp}")
    def lds_signal(off):
        A("s_waitcnt lgkmcnt(0)")
        A(f"v_mov_b32 v{vTMP}, {CNT+off}"); A(f"v_mov_b32 v{vSIG}, 1")
        A("s_mov_b64 exec, 1")
        A(f"ds_add_u32 v{vTMP}, v{vSIG}")
        A("s_mov_b64 exec, -1")
    def lds_wait(off, n, nap=0):
        lab = A.label("Lw")
        A(f"v_mov_b32 v{vTMP}, {CNT+off}")
        A(f"s_mov_b32 s{sSPIN2}, {SPIN_LIMIT*4}")
        A(f"{lab}:")
        A(f"ds_read_b32 v{vSIG}, v{vTMP}")
        A("s_waitcnt lgkmcnt(0)")
        A(f"v_readfirstlane_b32 s{sT0}, v{vSIG}")
        A(f"s_cmp_ge_u32 s{sT0}, {n}")
        A(f"s_cbranch_scc1 {lab}_ok")
        if nap: A(f"s_sleep {nap}")
        A(f"s_sub_u32 s{sSPIN2}, s{sSPIN2}, 1")
        A(f"s_cmp_lg_u32 s{sSPIN2}, 0")
        A(f"s_cbranch_scc1 {lab}")
        A(f"{lab}_ok:")
    def mfma_row(areg, xreg, breg, dreg, dpp=None):
        for k in range(4):
            if dpp is None: A(f"v_and_b32 v{areg+k}, v{xreg}, v{vM+k}")
            else: A(f"v_and_b32_dpp v{areg+k}, v{xreg}, v{vM+k} row_newbcast:{dpp} row_mask:0xf bank_mask:0xf")
        A(f"v_mfma_f32_16x16x32_bf16 {r4(dreg)}, {r4(areg)}, {r4(breg)}, {r4(dreg)}")
    def mfma_rows(xregs, bregs, dreg):
        n = len(xregs)
        for k in range(4): A(f"v_and_b32 v{vA0+k}, v{xregs[0]}, v{vM+k}")
        for i in range(n):
            cur = vA0 if i % 2 == 0 else vA1; nxt = vA1 if i % 2 == 0 else vA0
            if i + 1 < n:
                for k in range(4): A(f"v_and_b32 v{nxt+k}, v{xregs[i+1]}, v{vM+k}")
            A(f"v_mfma_f32_16x16x32_bf16 {r4(dreg)}, {r4(cur)}, {r4(bregs[i])}, {r4(dreg)}")
    def zero4(r):
        for k in range(4): A(f"v_mov_b32 v{r+k}, 0")
    def stamp(idx):
        if stamps and (not lite or idx in (4, 8) or (lite == 2 and idx in (5, 6, 7))):
            A(f"s_memrealtime s[{sT4}:{sT5}]"); A("s_waitcnt lgkmcnt(0)")
            A(f"v_writelane_b32 v{vST}, s{sT4}, {idx}")
    def stamp_loop(base, cntreg, top):
        if stamps and not lite:
            A(f"s_memrealtime s[{sT4}:{sT5}]"); A("s_waitcnt lgkmcnt(0)")
            A(f"s_sub_u32 s{sT5}, {base+top}, s{cntreg}"); A(f"s_mov_b32 m0, s{sT5}"); A("s_nop 0")
            A(f"v_writelane_b32 v{vST}, s{sT4}, m0")
    def stamp_store(off):
        if stamps:
            A(f"s_lshl_b32 s{sT0}, s2, 9"); A(f"s_add_u32 s{sT0}, s{sT0}, {0x700000+off}")
            A(f"v_lshlrev_b32 v{vTMP}, 2, v{vLANE}")
            A(f"v_writelane_b32 v{vST}, s{sSTAMP0}, 0")
            A(f"buffer_store_dword v{vST}, v{vTMP}, {WSR}, s{sT0} offen")
    def silu(dst, x, t1, t2):
        A(f"v_mul_f32 v{t1}, 0xbfb8aa3b, v{x}")
        A(f"v_exp_f32 v{t1}, v{t1}")
        A(f"v_add_f32 v{t1}, 1.0, v{t1}")
        A(f"v_rcp_f32 v{t2}, v{t1}")
        A(f"v_mul_f32 v{dst}, v{x}, v{t2}")
        bf16r(dst, dst)
    def exp_diff(dst, a, b):
        A(f"v_sub_f32 v{dst}, v{a}, v{b}")
        A(f"v_mul_f32 v{dst}, {hex(LOG2E)}, v{dst}")
        A(f"v_exp_f32 v{dst}, v{dst}")
    def check_sentinel(regs, tmp):
        regs = list(regs)
        if len(regs) >= 3:
            A(f"v_max3_u32 v{tmp}, v{regs[0]}, v{regs[1]}, v{regs[2]}"); i = 3
        else:
            A(f"v_max_u32 v{tmp}, v{regs[0]}, v{regs[1]}"); i = 2
        while i < len(regs):
            if i + 1 < len(regs): A(f"v_max3_u32 v{tmp}, v{tmp}, v{regs[i]}, v{regs[i+1]}"); i += 2
            else: A(f"v_max_u32 v{tmp}, v{tmp}, v{regs[i]}"); i += 1
        A(f"v_cmp_eq_u32 vcc, -1, v{tmp}")
        A(f"s_cmp_eq_u64 vcc, 0")
    def check_tags(regs, tmp):
        regs = list(regs)
        A(f"v_xor_b32 v{tmp}, s{sTAG}, v{regs[0]}")
        if len(regs) > 2:
            A(f"v_xor_b32 v{tmp+1}, s{sTAG}, v{regs[1]}")
            for i, r in enumerate(regs[2:]):
                A(f"v_bitop3_b32 v{tmp+(i&1)}, v{r}, s{sTAG}, v{tmp+(i&1)} bitop3:0xbe")
            A(f"v_or_b32 v{tmp}, v{tmp}, v{tmp+1}")
        else:
            for r in regs[1:]: A(f"v_bitop3_b32 v{tmp}, v{r}, s{sTAG}, v{tmp} bitop3:0xbe")
        A(f"v_cmp_ne_u32 vcc, 0, v{tmp}")
        A(f"s_cmp_eq_u64 vcc, 0")
    def poll_masked(name, issue, regs, tmp, tags=False, nap=0):
        A(f"s_mov_b32 s{sSPIN}, {SPIN_LIMIT}")
        A(f"{name}:")
        issue()
        A("s_waitcnt vmcnt(0)")
        if tags: check_tags(regs, tmp)
        else: check_sentinel(regs, tmp)
        A(f"s_cbranch_scc1 {name}_ok")
        A("s_mov_b64 exec, vcc")
        if nap: A(f"s_sleep {nap}")
        A(f"s_sub_u32 s{sSPIN}, s{sSPIN}, 1"); A(f"s_cmp_lg_u32 s{sSPIN}, 0"); A(f"s_cbranch_scc1 {name}")
        A(f"{name}_ok:")
        A("s_mov_b64 exec, -1")
    def poll_pipe(name, issue, nloads, regs, tmp, depth):
        A(f"s_mov_b32 s{sSPIN}, {SPIN_LIMIT}")
        for _ in range(depth): issue()
        A(f"{name}:")
        A(f"s_waitcnt vmcnt({nloads * (depth - 1)})")
        check_sentinel(regs, tmp)
        A(f"s_cbranch_scc1 {name}_ok")
        A("s_mov_b64 exec, vcc")
        issue()
        A(f"s_sub_u32 s{sSPIN}, s{sSPIN}, 1"); A(f"s_cmp_lg_u32 s{sSPIN}, 0"); A(f"s_cbranch_scc1 {name}")
        A(f"{name}_ok:")
        A("s_mov_b64 exec, -1")
    def int_sum(regs, dst):
        regs = list(regs)
        A(f"v_add3_u32 v{dst}, v{regs[0]}, v{regs[1]}, v{regs[2]}"); i = 3
        while i < len(regs):
            if i + 1 < len(regs): A(f"v_add3_u32 v{dst}, v{dst}, v{regs[i]}, v{regs[i+1]}"); i += 2
            else: A(f"v_add_u32 v{dst}, v{dst}, v{regs[i]}"); i += 1
    def poll_sum(name, issue, regs, tmp, starget, nap=0, rowreduce=False, masked=True):
        A(f"s_mov_b32 s{sSPIN}, {SPIN_LIMIT}")
        A(f"{name}:")
        issue()
        A("s_waitcnt vmcnt(0)")
        int_sum(regs, tmp)
        if rowreduce:
            for k in (8, 4, 2, 1): A(f"v_add_u32_dpp v{tmp}, v{tmp}, v{tmp} row_ror:{k} row_mask:0xf bank_mask:0xf")
        A(f"v_cmp_ne_u32 vcc, s{starget}, v{tmp}"); A("s_cmp_eq_u64 vcc, 0")
        A(f"s_cbranch_scc1 {name}_ok")
        if masked: A("s_mov_b64 exec, vcc")
        if nap: A(f"s_sleep {nap}")
        A(f"s_sub_u32 s{sSPIN}, s{sSPIN}, 1"); A(f"s_cmp_lg_u32 s{sSPIN}, 0"); A(f"s_cbranch_scc1 {name}")
        A(f"{name}_ok:")
        A("s_mov_b64 exec, -1")
    def poll2(name, issue, nloads, setA, setB, nregs, process, tmp):
        A(f"s_mov_b32 s{sSPIN}, {SPIN_LIMIT}")
        issue(setA)
        A(f"{name}_loop:")
        issue(setB)
        A(f"s_waitcnt vmcnt({nloads})")
        check_sentinel(range(setA, setA + nregs), tmp)
        A(f"s_cbranch_scc1 {name}_okA")
        issue(setA)
        A(f"s_waitcnt vmcnt({nloads})")
        check_sentinel(range(setB, setB + nregs), tmp)
        A(f"s_cbranch_scc1 {name}_okB")
        A(f"s_sub_u32 s{sSPIN}, s{sSPIN}, 1"); A(f"s_cmp_lg_u32 s{sSPIN}, 0")
        A(f"s_cbranch_scc0 {name}_okB")
        A(f"s_branch {name}_loop")
        A(f"{name}_okB:")
        process(setB)
        A(f"s_branch {name}_end")
        A(f"{name}_okA:")
        process(setA)
        A(f"{name}_end:")

    def g_process(sb):
        for r in range(4):
            A(f"v_add_f32 v{vT+r}, v{sb+r}, v{sb+4+r}"); A(f"v_add_f32 v{vT+4+r}, v{sb+8+r}, v{sb+12+r}")
            A(f"v_add_f32 v{vT+8+r}, v{sb+16+r}, v{sb+20+r}"); A(f"v_add_f32 v{vT+12+r}, v{sb+24+r}, v{sb+28+r}")
        for r in range(4):
            A(f"v_add_f32 v{vT+r}, v{vT+r}, v{vT+4+r}"); A(f"v_add_f32 v{vT+8+r}, v{vT+8+r}, v{vT+12+r}")
        for r in range(4): A(f"v_add_f32 v{vT+r}, v{vT+r}, v{vT+8+r}")
    def g_finish():
        for r in range(4): A(f"v_mov_b32 v{vT+4+r}, v{vT+r}")
        for r in range(4): A(f"v_permlane16_swap_b32 v{vT+r}, v{vT+4+r}")
        for r in range(4): A(f"v_add_f32 v{vT+r}, v{vT+r}, v{vT+4+r}")
        for r in range(4): A(f"v_mov_b32 v{vT+4+r}, v{vT+r}")
        for r in range(4): A(f"v_permlane32_swap_b32 v{vT+r}, v{vT+4+r}")
        for r in range(4): A(f"v_add_f32 v{vT+r}, v{vT+r}, v{vT+4+r}")
        for r in range(4): bf16r(vT + r, vT + r)
    def GATE():
        A(f"v_lshlrev_b32 v{vU+26}, 10, v{vG}"); A(f"v_add_u32 v{vU+26}, v{vU+26}, v{(vU + 28)}")
        A(f"v_lshlrev_b32 v{vU+25}, 11, v{vG}")
        A(f"v_bfe_u32 v{vT}, v{vLANE}, 3, 1"); A(f"v_lshl_add_u32 v{vU+25}, v{vT}, 7, v{vU+25}")
        A(f"v_lshl_add_u32 v{vU+25}, v{vU+29}, 2, v{vU+25}")
        A(f"s_lshl_b32 s{sT5}, s{sTAG}, 3")
        def gy_issue():
            A(f"s_lshl_b32 s{sT3}, s{sSUB}, 16"); A(f"s_add_u32 s{sT3}, s{sT3}, {WS_XY}")
            A(f"s_lshl_b32 s{sT1}, s{sK4}, 5"); A(f"s_add_u32 s{sT2}, s{sT3}, s{sT1}"); A(f"s_add_u32 s{sT2}, s{sT2}, 1024")
            A(f"s_lshl_b32 s{sT1}, s{sK4}, 7"); A(f"s_add_u32 s{sT3}, s{sT3}, s{sT1}")
            for tt in range(8):
                A(f"buffer_load_dwordx4 {r4(slot(8+tt))}, v{vU+26}, {WSR}, s{sT3} offen sc1")
                A(f"buffer_load_dword v{slot(16)+tt}, v{vU+25}, {WSR}, s{sT2} offen sc1")
                if tt < 7: A(f"s_add_u32 s{sT3}, s{sT3}, 8192"); A(f"s_add_u32 s{sT2}, s{sT2}, 8192")
        if "xyget" not in skip: poll_sum("L_gy", gy_issue, range(slot(8), slot(8) + 40), vT, sT5, nap=napgy)
        g_process(slot(8)); g_finish()
        for r in range(4): silu(vD + r, vT + r, vT + 9, vT + 10)
        A("s_mov_b64 exec, 0xffff")
        A(f"ds_write_b128 v{vL16}, {r4(vD)} offset:{RED}")
        A("s_mov_b64 exec, -1")
        lds_signal(C_G)
        pass

    def QEXCH(drain):
        if prio: A(f"s_setprio {prio}")
        lds_wait(C_QD, 4)
        for w in range(4): A(f"ds_read_b128 {r4(vT+4*w)}, v{vL16} offset:{QD + w*1024}")
        A("s_waitcnt lgkmcnt(0)")
        for r in range(4):
            A(f"v_add_f32 v{vD+r}, v{vT+r}, v{vT+4+r}"); A(f"v_add_f32 v{vD2+r}, v{vT+8+r}, v{vT+12+r}")
        for r in range(4): A(f"v_add_f32 v{vD+r}, v{vD+r}, v{vD2+r}")
        drain()
        A(f"v_add3_u32 v{vD2}, v{vD}, v{vD+1}, v{vD+2}"); A(f"v_add_u32 v{vD2}, v{vD2}, v{vD+3}")
        A(f"v_sub_u32 v{vD2}, s{sTAG}, v{vD2}")
        A(f"s_lshl_b32 s{sT0}, s{sBOXH}, 11")
        A(f"v_lshlrev_b32 v{vD2+1}, 2, v{vLANE}")
        A(f"buffer_store_dwordx4 {r4(vD)}, v{vL16}, {WSR}, s{sT0} offen sc1")
        A(f"buffer_store_dword v{vD2}, v{vD2+1}, {WSR}, s{sT0} offen offset:1024 sc1")
        stamp(16) if qby == 'helper' else None
        A(f"v_lshrrev_b32 v{vU+25}, 5, v{vLANE}"); A(f"v_lshlrev_b32 v{vU+25}, 11, v{vU+25}")
        A(f"v_and_b32 v{vU+26}, 31, v{vLANE}")
        A(f"v_lshl_add_u32 v{vU+36}, v{vU+26}, 2, v{vU+25}")
        A(f"v_lshl_add_u32 v{vU+25}, v{vU+26}, 4, v{vU+25}")
        sQB = sT3; sQC = sT2
        A(f"s_lshl_b32 s{sQB}, s{sH}, 14"); A(f"s_lshl_b32 s{sT1}, s{sB}, 7"); A(f"s_add_u32 s{sQC}, s{sQB}, s{sT1}"); A(f"s_add_u32 s{sQC}, s{sQC}, 1024")
        A(f"s_lshl_b32 s{sT1}, s{sB}, 9"); A(f"s_add_u32 s{sQB}, s{sQB}, s{sT1}")
        QG = vT
        A(f"s_mov_b32 s{sSPIN}, {SPIN_LIMIT}")
        if qpoll == "light":
            A(f"v_and_b32 v{vU+26}, 7, v{vLANE}"); A(f"v_lshlrev_b32 v{vU+26}, 11, v{vU+26}")
            A(f"s_lshl_b32 s{sT1}, s{sH}, 14"); A(f"s_add_u32 s{sT1}, s{sT1}, 1008")
            A("L_qlight:")
            A(f"buffer_load_dwordx4 {r4(QG)}, v{vU+26}, {WSR}, s{sT1} offen sc1")
            A(f"buffer_load_dword v{QG+4}, v{vU+26}, {WSR}, s{sT1} offen offset:268 sc1")
            A("s_waitcnt vmcnt(0)")
            A(f"v_add3_u32 v{QG+5}, v{QG}, v{QG+1}, v{QG+2}"); A(f"v_add3_u32 v{QG+5}, v{QG+5}, v{QG+3}, v{QG+4}")
            A(f"v_cmp_ne_u32 vcc, s{sTAG}, v{QG+5}"); A("s_cmp_eq_u64 vcc, 0")
            A("s_cbranch_scc1 L_qfull")
            A(f"s_sub_u32 s{sSPIN}, s{sSPIN}, 1"); A(f"s_cmp_lg_u32 s{sSPIN}, 0"); A("s_cbranch_scc1 L_qlight")
            A("L_qfull:")
        A(f"s_lshl_b32 s{sT5}, s{sTAG}, 2")
        def xq_issue():
            A(f"s_mov_b32 s{sT0}, s{sQB}"); A(f"s_mov_b32 s{sT1}, s{sQC}")
            for k in range(4):
                A(f"buffer_load_dwordx4 {r4(QG+4*k)}, v{vU+25}, {WSR}, s{sT0} offen sc1")
                A(f"buffer_load_dword v{QG+16+k}, v{vU+36}, {WSR}, s{sT1} offen sc1")
                if k < 3: A(f"s_add_u32 s{sT0}, s{sT0}, 4096"); A(f"s_add_u32 s{sT1}, s{sT1}, 4096")
        poll_sum("L_qpoll", xq_issue, list(range(QG, QG + 20)), vU + 32, sT5)
        stamp(17) if qby == 'helper' else None
        vQS = vU + 32
        for r in range(4):
            A(f"v_add_f32 v{vQS+4+r}, v{QG+r}, v{QG+4+r}"); A(f"v_add_f32 v{vQS+8+r}, v{QG+8+r}, v{QG+12+r}")
        for r in range(4): A(f"v_add_f32 v{vQS+r}, v{vQS+4+r}, v{vQS+8+r}")
        for r in range(4): A(f"v_mov_b32 v{vQS+4+r}, v{vQS+r}")
        for r in range(4): A(f"v_permlane32_swap_b32 v{vQS+r}, v{vQS+4+r}")
        for r in range(4): A(f"v_add_f32 v{vQS+r}, v{vQS+r}, v{vQS+4+r}")
        A(f"v_cvt_pk_bf16_f32 v{vQS+4}, v{vQS}, v{vQS+1}"); A(f"v_cvt_pk_bf16_f32 v{vQS+5}, v{vQS+2}, v{vQS+3}")
        A(f"v_and_b32 v{vU+25}, 1, v{vG}"); A(f"v_lshlrev_b32 v{vU+25}, 3, v{vU+25}"); A(f"v_lshl_add_u32 v{vU+25}, v{vC}, 4, v{vU+25}")
        A("s_mov_b32 exec_hi, 0")
        A(f"ds_write_b64 v{vU+25}, v[{vQS+4}:{vQS+5}] offset:{QPK}")
        A("s_mov_b64 exec, -1")
        lds_signal(C_QRDY)
        if prio: A("s_setprio 0")

    A(f"{KNAME}:")
    A("s_cmp_ge_u32 s2, 256")
    A("s_cbranch_scc1 L_end")
    A(f"s_load_dwordx16 s[8:23], s[0:1], 0")
    A(f"s_load_dwordx8 s[24:31], s[0:1], 64")
    if stamps or dbgtime: A(f"s_memrealtime s[{sSTAMP0}:{sSTAMP0+1}]")
    A(f"v_and_b32 v{vLANE}, 63, v0")
    A(f"v_lshrrev_b32 v{vTMP}, 6, v0")
    A(f"v_lshlrev_b32 v{vL16}, 4, v{vLANE}")
    A(f"v_readfirstlane_b32 s{sW}, v{vTMP}")
    A(f"s_and_b32 s{sT0}, s2, 7"); A(f"s_lshl_b32 s{sH}, s{sT0}, 2")
    A(f"s_lshr_b32 s{sT1}, s2, 3"); A(f"s_and_b32 s{sT0}, s{sT1}, 3"); A(f"s_add_u32 s{sH}, s{sH}, s{sT0}")
    A(f"s_lshr_b32 s{sSUB}, s{sT1}, 2")
    A(f"s_lshr_b32 s{sB}, s{sSUB}, 2"); A(f"s_and_b32 s{sSPLIT}, s{sSUB}, 3")
    A(f"s_lshl_b32 s{sBOXH}, s{sH}, 3"); A(f"s_add_u32 s{sBOXH}, s{sBOXH}, s{sSUB}")
    A(f"s_lshl_b32 s{sBOXC}, s{sSUB}, 5"); A(f"s_add_u32 s{sBOXC}, s{sBOXC}, s{sH}"); A(f"s_lshl_b32 s{sBOXC}, s{sBOXC}, 10")
    A(f"s_mul_i32 s{sROT}, s2, {rotk*16384}"); A(f"s_and_b32 s{sROT}, s{sROT}, 0xfffff")
    A(f"s_sub_u32 s{sHW}, s{sW}, 4")
    A(f"v_lshrrev_b32 v{vG}, 4, v{vLANE}")
    A(f"v_and_b32 v{vC}, 15, v{vLANE}")
    vWQ = vU + 20
    A(f"v_lshlrev_b32 v{vWQ}, 13, v{vG}")
    A(f"v_lshl_add_u32 v{vWQ}, v{vC}, 4, v{vWQ}")
    A("s_waitcnt lgkmcnt(0)")
    A(f"s_add_u32 s{sT4}, s{sWS}, {WS_Z}"); A(f"s_addc_u32 s{sT5}, s{sWS+1}, 0")
    A(f"s_load_dword s{sTAG}, s[{sT4}:{sT5}], 0")
    srd(SRD_A, sX, 4096)
    sPIV = 52
    vXR = vU + 8
    vF1 = vU + 21; vWD = vU + 22; vWD2 = vU + 23
    A(f"s_cmp_ge_u32 s{sW}, 4")
    A("s_cbranch_scc1 L_helper_issue")

    vms = VM(A)
    A(f"s_and_b32 s{sT0}, s{sW}, 1"); A(f"s_lshl_b32 s{sT0}, s{sT0}, 11")
    A(f"s_load_dword s{sPIV}, s[{sX}:{sX+1}], s{sT0}")
    A(f"s_lshr_b32 s{sT1}, s{sW}, 1"); A(f"s_lshl_b32 s{sT1}, s{sT1}, 10"); A(f"s_add_u32 s{sT0}, s{sT0}, s{sT1}")
    A(f"buffer_load_dwordx4 {r4(vXR)}, v{vL16}, s[{SRD_A}:{SRD_A+3}], s{sT0} offen"); vms.issue("x")
    A(f"s_lshl_b32 s{sT0}, s{sH}, 8")
    srd(SRD_Q, sWQ, 8388608 - 31 * 256, add=sT0)
    A(f"s_lshl_b32 s{sT0}, s{sSUB}, 5"); A(f"s_lshl_b32 s{sT1}, s{sW}, 3"); A(f"s_add_u32 s{sT0}, s{sT0}, s{sT1}"); A(f"s_lshl_b32 s{sOFF}, s{sT0}, 15")
    WQS = 16
    for n in range(8):
        A(f"buffer_load_dwordx4 {r4(slot(WQS+n))}, v{vWQ}, s[{SRD_Q}:{SRD_Q+3}], s{sOFF} offen {wqflag}"); vms.issue(("wq", n))
        if n < 7: A(f"s_add_u32 s{sOFF}, s{sOFF}, 32768")
    A(f"v_mov_b32 v{vX}, 0"); A(f"v_lshlrev_b32 v{vX+1}, 2, v{vLANE}")
    A(f"s_mov_b64 exec, 0xffff")
    A(f"ds_write_b32 v{vX+1}, v{vX} offset:{CNT}")
    A("s_mov_b64 exec, -1")
    srd(SRD_WS, sWS, 0x1000000)
    srd(SRD_B, sX, 0)
    A(f"s_lshl_b32 s{sT0}, s{sB}, 5"); A(f"s_add_u32 s{sT0}, s{sT0}, s{sH}"); A(f"s_lshl_b32 s{sT0}, s{sT0}, 2")
    A(f"s_add_u32 s{sT0}, s{sT0}, s{sSPLIT}"); A(f"s_lshl_b32 s{sT0}, s{sT0}, 20")
    srd(SRD_C, sK, 0x100000, add=sT0)
    srd(SRD_D, sV, 0x100000, add=sT0)
    A(f"s_lshl_b32 s{sT0}, s{sW}, 12"); A(f"s_add_u32 s{sRUN}, s{sROT}, s{sT0}")
    for r in (vF1, vWD, vWD2, vU + 28, vU + 30): A(f"v_mov_b32 v{r}, 0")
    A("s_waitcnt lgkmcnt(0)")
    A("s_barrier")
    cur = {"vm": vms}
    def kv_issue(idx, srdb, tag, state, ring):
        piece = idx >> 2
        key = (srdb, piece, state.get("epoch", 0))
        if state.get("cur") != key:
            if piece == 0: A(f"s_and_b32 s{sOFF}, s{sRUN}, 0xfffff")
            else:
                A(f"s_add_u32 s{sOFF}, s{sRUN}, {piece*16384}"); A(f"s_and_b32 s{sOFF}, s{sOFF}, 0xfffff")
            state["cur"] = key
        sl = idx if (state.get('direct') and idx < 32) else (idx + state.get('slot0', 0)) % ring
        A(f"buffer_load_dwordx4 {r4(slot(sl))}, v{vL16}, s[{srdb}:{srdb+3}], s{sOFF} offen offset:{(idx&3)*1024} {kvflag}")
        cur["vm"].issue(tag)
    def masks():
        A(f"v_and_b32 v{vU+2}, 1, v{vC}")
        A(f"v_lshlrev_b32 v{vU+2}, 4, v{vU+2}")
        A(f"v_mov_b32 v{vU+3}, 0xffff")
        A(f"v_lshlrev_b32 v{vU+3}, v{vU+2}, v{vU+3}")
        A(f"v_bfe_u32 v{vU+4}, v{vC}, 1, 2")
        for k in range(4):
            A(f"v_cmp_eq_u32 vcc, {k}, v{vU+4}")
            A(f"v_cndmask_b32 v{vM+k}, 0, v{vU+3}, vcc")
        A(f"v_lshrrev_b32 v{vU+2}, 3, v{vC}")
        A(f"v_lshl_add_u32 v{vBG}, v{vU+2}, 2, v{vG}")
        A(f"v_mul_u32_u24 v{vXA}, {XSTR}, v{vBG}")
    masks()
    A(f"s_mov_b32 s{sBIT0}, 0xaaaaaaaa"); A(f"s_mov_b32 s{sBIT0+1}, 0xaaaaaaaa")
    A(f"s_mov_b32 s{sBIT1}, 0xcccccccc"); A(f"s_mov_b32 s{sBIT1+1}, 0xcccccccc")
    A(f"s_add_u32 s{sTAG}, s{sTAG}, 1")
    A(f"s_lshl_b32 s{sPIV}, s{sPIV}, 16")
    vms.wait("x")
    st = {}
    for n in range(WE): kv_issue(n, SRD_C, ("k", n), st, 16)
    stamp(9)
    vY = vT; vZ = vT + 8
    for k in range(4):
        A(f"v_lshlrev_b32 v{vY+2*k}, 16, v{vXR+k}"); A(f"v_and_b32 v{vY+2*k+1}, 0xffff0000, v{vXR+k}")
    for k in range(8): A(f"v_subrev_f32 v{vZ+k}, s{sPIV}, v{vY+k}")
    vS = vX; vSB = vX + 1; vS2 = vX + 2; vMEAN = vX + 6
    A(f"v_add_f32 v{vS}, v{vZ}, v{vZ+1}"); A(f"v_mul_f32 v{vSB}, v{vZ}, v{vZ}")
    A(f"v_add_f32 v{vS2}, v{vZ+2}, v{vZ+3}"); A(f"v_mul_f32 v{vS2+1}, v{vZ+1}, v{vZ+1}")
    for k in (4, 6):
        A(f"v_add_f32 v{vS}, v{vS}, v{vZ+k}"); A(f"v_add_f32 v{vS2}, v{vS2}, v{vZ+k+1}")
    for k in (2, 4, 6):
        A(f"v_fmac_f32 v{vSB}, v{vZ+k}, v{vZ+k}"); A(f"v_fmac_f32 v{vS2+1}, v{vZ+k+1}, v{vZ+k+1}")
    A(f"v_add_f32 v{vS}, v{vS}, v{vS2}"); A(f"v_add_f32 v{vSB}, v{vSB}, v{vS2+1}")
    fill = [f"s_and_b32 s{sT0}, s{sW}, 1", f"s_mul_i32 s{sT1}, s{sT0}, {4*XSTR}",
            f"s_lshr_b32 s{sT2}, s{sW}, 1", f"s_lshl_b32 s{sT3}, s{sT2}, 9", f"s_add_u32 s{sT1}, s{sT1}, s{sT3}",
            f"s_lshl_b32 s{sT0}, s{sT0}, 4", f"s_lshl_b32 s{sT2}, s{sT2}, 3", f"s_add_u32 s{sT2}, s{sT2}, s{sT0}"]
    for i, k in enumerate((8, 4, 2, 1)):
        A(f"v_add_f32_dpp v{vS}, v{vS}, v{vS} row_ror:{k} row_mask:0xf bank_mask:0xf")
        A(f"v_add_f32_dpp v{vSB}, v{vSB}, v{vSB} row_ror:{k} row_mask:0xf bank_mask:0xf")
        A(fill[2*i]); A(fill[2*i+1])
    for swap in ("v_permlane16_swap_b32", "v_permlane32_swap_b32"):
        A(f"v_mov_b32 v{vS2}, v{vS}"); A(f"v_mov_b32 v{vS2+1}, v{vSB}")
        A(f"{swap} v{vS}, v{vS2}"); A(f"{swap} v{vSB}, v{vS2+1}")
        A(f"v_add_f32 v{vS}, v{vS}, v{vS2}"); A(f"v_add_f32 v{vSB}, v{vSB}, v{vS2+1}")
    vXW = vU + 9 + 3
    A(f"v_lshlrev_b32 v{vXW}, 3, v{vLANE}")
    A(f"v_add_u32 v{vXW}, s{sT1}, v{vXW}")
    A(f"v_mov_b32 v{vS2}, s{sT2}"); A(f"v_mov_b32 v{vXW+1}, s{sT0}")
    A("s_mov_b64 exec, 1")
    A(f"ds_write_b64 v{vS2}, v[{vS}:{vS+1}] offset:{STAT}")
    A("s_mov_b64 exec, -1")
    lds_signal(C_STAT)
    lds_wait(C_STAT, 4)
    A(f"ds_read_b128 {r4(vZ)}, v{vXW+1} offset:{STAT}")
    A("s_waitcnt lgkmcnt(0)")
    A(f"v_add_f32 v{vS}, v{vZ}, v{vZ+2}"); A(f"v_add_f32 v{vSB}, v{vZ+1}, v{vZ+3}")
    A(f"v_mul_f32 v{vS}, 0x3a800000, v{vS}"); A(f"v_mul_f32 v{vSB}, 0x3a800000, v{vSB}")
    A(f"v_add_f32 v{vMEAN}, s{sPIV}, v{vS}")
    A(f"v_fma_f32 v{vS}, -v{vS}, v{vS}, v{vSB}")
    A(f"v_max_f32 v{vS}, 0, v{vS}")
    bf16r(vS, vS)
    A(f"v_add_f32 v{vS}, 0x3727c5ac, v{vS}")
    bf16r(vS, vS)
    vSQ = vX + 3; vR = vX + 4; vE = vX + 5
    A(f"v_sqrt_f32 v{vSQ}, v{vS}")
    bf16r(vMEAN, vMEAN)
    A(f"v_rcp_f32 v{vR}, v{vSQ}")
    A(f"v_fma_f32 v{vE}, -v{vSQ}, v{vSQ}, v{vS}")
    A(f"v_mul_f32 v{vE}, 0.5, v{vE}")
    A(f"v_fma_f32 v{vSQ}, v{vE}, v{vR}, v{vSQ}")
    bf16r(vSQ, vSQ)
    A(f"v_rcp_f32 v{vR}, v{vSQ}")
    for k in range(8): A(f"v_sub_f32 v{vY+k}, v{vY+k}, v{vMEAN}")
    for k in range(8): bf16r(vY + k, vY + k)
    for k in range(8): A(f"v_mul_f32 v{vZ+k}, v{vY+k}, v{vR}")
    vZ2 = vX + 8
    for k in range(8): A(f"v_fma_f32 v{vZ2+k}, -v{vZ+k}, v{vSQ}, v{vY+k}")
    for k in range(8): A(f"v_fma_f32 v{vZ+k}, v{vZ2+k}, v{vR}, v{vZ+k}")
    for g in range(4):
        A(f"v_cvt_pk_bf16_f32 v{vY+2*g}, v{vZ+g}, v{vZ+g}"); A(f"v_cvt_pk_bf16_f32 v{vY+2*g+1}, v{vZ+g+4}, v{vZ+g+4}")
    for g in range(4): A(f"ds_write_b64 v{vXW}, v[{vY+2*g}:{vY+2*g+1}] offset:{XDUP + g*XSTR}")
    lds_signal(C_XDUP)
    A(f"s_lshl_b32 s{sT0}, s{sSUB}, 7"); A(f"s_lshl_b32 s{sT1}, s{sW}, 5"); A(f"s_add_u32 s{sT0}, s{sT0}, s{sT1}")
    A(f"v_add_u32 v{vU+24}, s{sT0}, v{vXA}")
    zero4(vD)
    lds_wait(C_XDUP, 4)
    stamp(1)
    A(f"ds_read_b128 {r4(vX)}, v{vU+24} offset:{XDUP}")
    A(f"ds_read_b128 {r4(vX+4)}, v{vU+24} offset:{XDUP+16}")
    A(f"s_lshl_b32 s{sT0}, s{sW}, 10")
    A(f"v_add_u32 v{vU+25}, s{sT0}, v{vL16}")
    vms.wait(("wq", 7))
    A("s_waitcnt lgkmcnt(0)")
    mfma_rows([vX + n for n in range(8)], [slot(WQS + n) for n in range(8)], vD)
    A(f"ds_write_b128 v{vU+25}, {r4(vD)} offset:{QD}")
    lds_signal(C_QD)
    vm = vms
    if qby == "streamer":
        A(f"s_cmp_lg_u32 s{sW}, 0"); A("s_cbranch_scc1 L_sq_done")
        QEXCH(lambda: lds_wait(C_CLR, 1))
        A("L_sq_done:")
    st = {"direct": True}
    for n in range(WE, KPRE):
        A(f"s_waitcnt vmcnt({WE-1})")
        kv_issue(n, SRD_C, ("k", n), st, 16)
    vm.q = [("k", n) for n in range(KPRE)]; vm.seen.update(vm.q)
    if "qwait" not in skip: lds_wait(C_QRDY, 1)
    A(f"v_lshlrev_b32 v{vTMP}, 4, v{vC}")
    A(f"ds_read_b128 {r4(vQ)}, v{vTMP} offset:{QPK}")
    vMX = vU + 25; vSA = vU + 26; vSC = vU + 27; vS1 = vU + 28; vLs = vU + 29; vE1 = vU + 30; vE2 = vU + 31
    A(f"v_mov_b32 v{vMX}, 0xff800000"); A(f"v_mov_b32 v{vLs}, 0")
    A(f"s_lshl_b32 s{sT0}, s{sW}, 12")
    A(f"v_lshlrev_b32 v{vSA}, 2, v{vLANE}")
    A(f"v_add_u32 v{vSA}, s{sT0}, v{vSA}")
    A("s_waitcnt lgkmcnt(0)")
    if dbg:
        A(f"s_lshl_b32 s{sT0}, s2, 14"); A(f"s_lshl_b32 s{sT1}, s{sW}, 10"); A(f"s_add_u32 s{sT0}, s{sT0}, s{sT1}"); A(f"s_add_u32 s{sT0}, s{sT0}, {WS_DBG}")
        A(f"buffer_store_dwordx4 {r4(vQ)}, v{vL16}, {WSR}, s{sT0} offen"); A("s_waitcnt vmcnt(0)")
    stamp(2)
    def kpost(T):
        o = []
        for j in range(8): o.append(f"v_add_f32_dpp v{T+j}, v{T+j}, v{T+j} row_ror:8 row_mask:0xf bank_mask:0x3")
        for j in range(8): o.append(f"v_add_f32_dpp v{T+j}, v{T+j+8}, v{T+j+8} row_ror:8 row_mask:0xf bank_mask:0xc")
        for j in range(4): o.append(f"v_add_f32_dpp v{T+j}, v{T+j}, v{T+j} row_shl:4 row_mask:0xf bank_mask:0x5")
        for j in range(4): o.append(f"v_add_f32_dpp v{T+j}, v{T+j+4}, v{T+j+4} row_shr:4 row_mask:0xf bank_mask:0xa")
        for j in range(4): o.append(f"v_add_f32_dpp v{T+8+j}, v{T+j}, v{T+j} quad_perm:[2,3,0,1] row_mask:0xf bank_mask:0xf")
        o.append(f"v_cndmask_b32 v{T}, v{T+8}, v{T+10}, s[{sBIT1}:{sBIT1+1}]")
        o.append(f"v_cndmask_b32 v{T+1}, v{T+9}, v{T+11}, s[{sBIT1}:{sBIT1+1}]")
        o.append(f"v_add_f32_dpp v{T+8}, v{T}, v{T} quad_perm:[1,0,3,2] row_mask:0xf bank_mask:0xf")
        o.append(f"v_add_f32_dpp v{T+9}, v{T+1}, v{T+1} quad_perm:[1,0,3,2] row_mask:0xf bank_mask:0xf")
        o.append(f"v_cndmask_b32 v{vSC}, v{T+8}, v{T+9}, s[{sBIT0}:{sBIT0+1}]")
        o += [f"v_cvt_pk_bf16_f32 v{vSC}, v{vSC}, v{vSC}", f"v_and_b32 v{vSC}, 0xffff0000, v{vSC}",
              f"v_mul_f32 v{vSC}, {hex(SCALE)}, v{vSC}",
              f"v_cvt_pk_bf16_f32 v{vSC}, v{vSC}, v{vSC}", f"v_and_b32 v{vSC}, 0xffff0000, v{vSC}",
              f"ds_write_b32 v{vSA}, v{vSC} offset:{SCO}",
              f"v_max_f32 v{vS1}, v{vMX}, v{vSC}",
              f"v_sub_f32 v{vE1}, v{vMX}, v{vS1}", f"v_sub_f32 v{vE2}, v{vSC}, v{vS1}",
              f"v_mul_f32 v{vE1}, {hex(LOG2E)}, v{vE1}", f"v_mul_f32 v{vE2}, {hex(LOG2E)}, v{vE2}",
              f"v_exp_f32 v{vE1}, v{vE1}", f"v_exp_f32 v{vE2}, v{vE2}",
              f"v_mov_b32 v{vMX}, v{vS1}", f"v_add_u32 v{vSA}, 256, v{vSA}",
              f"v_fma_f32 v{vLs}, v{vLs}, v{vE1}, v{vE2}"]
        return o
    def kblock(base, T, post, issue, slot0=0):
        n = len(post); per = (n + 15) // 16
        for j in range(16):
            vm.wait(("k", base + j))
            issue(base + j)
            b = slot(slot0 + j)
            A(f"v_dot2_f32_bf16 v{T+j}, v{b}, v{vQ}, 0")
            for k in range(1, 4): A(f"v_dot2_f32_bf16 v{T+j}, v{b+k}, v{vQ+k}, v{T+j}")
            for ins in post[j*per:(j+1)*per]: A(ins)
    def retag(name, shift):
        vm.q = [((name, t[1] + shift) if (isinstance(t, tuple) and t[0] == name) else t) for t in vm.q]
        vm.seen = set(vm.q)
    T0, T1 = vT, vX
    def steady(srdb, nm, ring, dp=None):
        dp = dp or DP
        assert dp[-1] == 0 and 16 % len(dp) == 0
        def f(n):
            tgt = n + W - dp[n % len(dp)]; prev = n - 1 + W - dp[(n - 1) % len(dp)]
            for m in range(prev + 1, tgt + 1): kv_issue(m, srdb, (nm, m), st, ring)
        return f
    st = {}
    def iss_first(n, ring, pre, srdb, nm):
        if pre < ring or W > ring - 1:
            if n + W >= pre: kv_issue(n + W, srdb, (nm, n + W), st, ring)
        else:
            if 1 <= n <= W: kv_issue(ring + n - 1, srdb, (nm, ring + n - 1), st, ring)
    st = {"direct": True}
    def iss_k01(n):
        if 1 <= n <= W: kv_issue(KPRE + n - 1, SRD_C, ("k", KPRE + n - 1), st, 16)
        elif n >= KPRE and n + W >= KPRE + W: kv_issue(n + W, SRD_C, ("k", n + W), st, 16)
    assert W < KPRE or KPRE == W or True
    if KPRE <= W + 1:
        def iss_k01(n):
            if n + W >= max(KPRE, W): kv_issue(n + W, SRD_C, ("k", n + W), st, 16)
    for m in range(KPRE, W): kv_issue(m, SRD_C, ("k", m), st, 16)
    kblock(0, T0, [], iss_k01)
    stamp(11)
    kblock(16, T1, kpost(T0), iss_k01, slot0=16)
    stamp(12)
    retag("k", -32)
    A(f"s_add_u32 s{sRUN}, s{sRUN}, 131072")
    lds_signal(C_PROG)
    A(f"s_mov_b32 s{sCNT}, 6")
    if DP2:
        A(f"s_getreg_b32 s{sPAR}, hwreg(HW_REG_XCC_ID, 0, 1)")
        A(f"s_cmp_eq_u32 s{sPAR}, 0"); A("s_cbranch_scc1 L_kloop2")
    for lab, dp in (("L_kloop", DP),) + ((("L_kloop2", DP2),) if DP2 else ()):
        A(f"{lab}:")
        q_in = list(vm.q); st = {}
        kblock(0, T0, kpost(T1), steady(SRD_C, "k", 16, dp))
        kblock(16, T1, kpost(T0), steady(SRD_C, "k", 16, dp))
        retag("k", -32)
        assert vm.q == q_in, (vm.q, q_in)
        lds_signal(C_PROG)
        stamp_loop(17, sCNT, 6)
        A(f"s_add_u32 s{sRUN}, s{sRUN}, 131072")
        A(f"s_sub_u32 s{sCNT}, s{sCNT}, 1"); A(f"s_cmp_lg_u32 s{sCNT}, 0"); A(f"s_cbranch_scc1 {lab}")
        if DP2 and lab == "L_kloop": A("s_branch L_kloop_end")
    A("L_kloop_end:")
    st = {}
    kblock(0, T0, kpost(T1), lambda n: kv_issue(n + W, SRD_C, ("k", n + W), st, 16))
    retag("k", -16)
    A(f"s_add_u32 s{sRUN}, s{sRUN}, 65536")
    if ml2: lds_signal(C_PROG)
    st = {}
    sRUNV = sT2
    A(f"s_lshl_b32 s{sT0}, s{sW}, 12"); A(f"s_add_u32 s{sRUNV}, s{sROT}, s{sT0}")
    VOFF = 16 if R == 32 else 0
    def issl(j):
        if j + W < 16: kv_issue(j + W, SRD_C, ("k", j + W), st, 16)
        else:
            if st.get("epoch", 0) == 0:
                st["epoch"] = 1; st["slot0"] = VOFF; A(f"s_mov_b32 s{sRUN}, s{sRUNV}")
            kv_issue(j + W - 16, SRD_D, ("v", j + W - 16), st, R)
    kblock(0, T1, kpost(T0), issl)
    for ins in kpost(T1): A(ins)
    stamp(3)
    A(f"v_mov_b32 v{vS1}, v{vMX}")
    allreduce("v_max_f32", vS1, vE1)
    exp_diff(vE1, vMX, vS1)
    A(f"v_mul_f32 v{vLs}, v{vLs}, v{vE1}")
    allreduce("v_add_f32", vLs, vE1)
    vPAIR = vX
    A(f"v_mov_b32 v{vPAIR}, v{vS1}"); A(f"v_mov_b32 v{vPAIR+1}, v{vLs}")
    A(f"s_lshl_b32 s{sT0}, s{sW}, 3"); A(f"v_mov_b32 v{vE1}, s{sT0}")
    A("s_mov_b64 exec, 1")
    A(f"ds_write_b64 v{vE1}, v[{vPAIR}:{vPAIR+1}] offset:{MLW}")
    A("s_mov_b64 exec, -1")
    lds_signal(C_MLW)
    st = {"epoch": 1, "slot0": VOFF}
    for n in range(W, R):
        A(f"s_waitcnt vmcnt({W-1})")
        kv_issue(n, SRD_D, ("v", n), st, R)
    A(f"v_subrev_u32 v{vSA}, 4096, v{vSA}")
    vL = None; vP = vU + 31; vSN = vU + 32; vP2 = vU + 33; vMG = vX + 2; vIL = vX + 3
    A(f"ds_read_b32 v{vSN}, v{vSA} offset:{SCO}")
    zero4(vD)
    if "mlwait" not in skip: lds_wait(C_MLRDY, 1)
    A(f"v_mov_b32 v{vE1}, 0")
    A(f"ds_read_b64 v[{vMG}:{vMG+1}], v{vE1} offset:{MLF}")
    stamp(10)
    def vblock(base, issue, last=False):
        A("s_waitcnt lgkmcnt(0)")
        exp_diff(vP, vSN, vMG)
        if not last:
            A(f"v_add_u32 v{vSA}, 256, v{vSA}")
            A(f"ds_read_b32 v{vSN}, v{vSA} offset:{SCO}")
        A(f"v_mul_f32 v{vP}, v{vP}, v{vIL}")
        A(f"v_cvt_pk_bf16_f32 v{vP2}, v{vP}, v{vP}")
        for j in range(16):
            vm.wait(("v", base + j))
            issue(base + j)
            mfma_row(vA0 if j % 2 == 0 else vA1, vP2, slot((base + j + VOFF) % R), vD, dpp=j)
    NB = R // 16
    vm.q = [("v", n) for n in range(R)]; vm.seen.update(vm.q)
    st = {"epoch": 1, "slot0": VOFF}
    for bb in range(NB):
        vblock(16 * bb, lambda n: iss_first(n, R, R, SRD_D, "v"))
    stamp(13)
    retag("v", -R)
    A(f"s_add_u32 s{sRUN}, s{sRUN}, {65536*NB}")
    assert not (W2 and NB != 1)
    nloop = 16 // NB - 2 - (N2 if W2 else 0)
    A(f"s_mov_b32 s{sCNT}, {nloop}")
    if DP2:
        A(f"s_cmp_eq_u32 s{sPAR}, 0"); A("s_cbranch_scc1 L_vloop_b")
    for lab, dp in (("L_vloop", DP),) + ((("L_vloop_b", DP2),) if DP2 else ()):
        A(f"{lab}:")
        q_in = list(vm.q); st = {"epoch": 1, "slot0": VOFF}
        for bb in range(NB):
            vblock(16 * bb, steady(SRD_D, "v", R, dp))
        retag("v", -R)
        assert vm.q == q_in, (vm.q, q_in)
        stamp_loop(32, sCNT, nloop)
        A(f"s_add_u32 s{sRUN}, s{sRUN}, {65536*NB}")
        A(f"s_sub_u32 s{sCNT}, s{sCNT}, 1"); A(f"s_cmp_lg_u32 s{sCNT}, 0"); A(f"s_cbranch_scc1 {lab}")
        if DP2 and lab == "L_vloop": A("s_branch L_vloop_end")
    A("L_vloop_end:")
    WL = W
    if W2:
        WL = W2
        st = {"epoch": 1, "slot0": VOFF}
        def iss_grow(n):
            lo = W if n == 0 else n + W2
            for m in range(lo, n + W2 + 1): kv_issue(m, SRD_D, ("v", m), st, R)
        vblock(0, iss_grow)
        retag("v", -16)
        A(f"s_add_u32 s{sRUN}, s{sRUN}, 65536")
        if N2 > 1:
            A(f"s_mov_b32 s{sCNT}, {N2 - 1}")
            A("L_vloop2:")
            q_in = list(vm.q); st = {"epoch": 1, "slot0": VOFF}
            vblock(0, lambda n: kv_issue(n + W2, SRD_D, ("v", n + W2), st, R))
            retag("v", -16)
            assert vm.q == q_in
            A(f"s_add_u32 s{sRUN}, s{sRUN}, 65536")
            A(f"s_sub_u32 s{sCNT}, s{sCNT}, 1"); A(f"s_cmp_lg_u32 s{sCNT}, 0"); A("s_cbranch_scc1 L_vloop2")
    A(f"v_lshrrev_b32 v{vX+4}, 1, v{vG}"); A(f"v_lshlrev_b32 v{vX+4}, 9, v{vX+4}")
    A(f"v_and_b32 v{vX+5}, 1, v{vG}"); A(f"v_lshl_add_u32 v{vX+4}, v{vX+5}, 4, v{vX+4}")
    A(f"v_lshl_add_u32 v{vX+4}, v{vC}, 5, v{vX+4}")
    A(f"v_lshrrev_b32 v{vX+5}, 2, v{vX+4}")
    A(f"s_cmp_lg_u32 s{sW}, 2"); A("s_cbranch_scc1 L_noyf")
    lds_wait(C_YP, 1)
    A(f"v_lshlrev_b32 v{vX+6}, 2, v{vLANE}")
    A(f"ds_read_b128 {r4(vT)}, v{vL16} offset:{QD}")
    A(f"ds_read_b32 v{vT+4}, v{vX+6} offset:{QD+1024}")
    A("L_noyf:")
    st = {"epoch": 1, "slot0": VOFF}
    for bb in range(NB):
        vblock(16 * bb, lambda n: kv_issue(n + WL, SRD_D, ("v", n + WL), st, R) if n + WL < R else None, last=(bb == NB - 1))
    A(f"v_lshlrev_b32 v{vTMP}, 5, v{vC}")
    A(f"v_lshl_add_u32 v{vTMP}, v{vG}, 4, v{vTMP}")
    A(f"s_lshl_b32 s{sT0}, s{sBOXH}, 11"); A(f"s_lshl_b32 s{sT1}, s{sW}, 9"); A(f"s_add_u32 s{sT0}, s{sT0}, s{sT1}"); A(f"s_add_u32 s{sT0}, s{sT0}, {WS_X2}")
    A("s_mov_b32 exec_hi, 0")
    A(f"buffer_store_dwordx4 {r4(vD)}, v{vTMP}, {WSR}, s{sT0} offen sc1")
    A("s_mov_b64 exec, -1")
    stamp(4)
    A(f"s_cmp_lg_u32 s{sW}, 2"); A("s_cbranch_scc1 L_noxy")
    A(f"s_lshl_b32 s{sT0}, s{sBOXC}, 1"); A(f"s_add_u32 s{sT0}, s{sT0}, {WS_XY}")
    if "xypub" not in skip:
        A(f"buffer_store_dwordx4 {r4(vT)}, v{vX+4}, {WSR}, s{sT0} offen sc1")
        A(f"buffer_store_dword v{vT+4}, v{vX+5}, {WSR}, s{sT0} offen offset:1024 sc1")
    A("L_noxy:")
    A("s_barrier")
    if stamps:
        A(f"s_cmp_lg_u32 s{sW}, 0"); A("s_cbranch_scc1 L_nost")
        stamp_store(0)
        A("L_nost:")
    A(f"s_cmp_lg_u32 s{sW}, 1"); A("s_cbranch_scc1 L_sexit")
    A(f"s_and_b32 s{sT0}, s{sH}, 7"); A(f"s_cmp_eq_u32 s{sT0}, s{sSUB}"); A("s_cbranch_scc0 L_sexit")
    A(f"s_lshr_b32 s{sK4}, s{sH}, 3")
    A(f"v_lshlrev_b32 v{vU+28}, 10, v{vG}")
    A(f"v_bfe_u32 v{vU+26}, v{vLANE}, 3, 1"); A(f"v_lshl_add_u32 v{vU+28}, v{vU+26}, 9, v{vU+28}")
    A(f"v_and_b32 v{vU+29}, 7, v{vLANE}"); A(f"v_lshl_add_u32 v{vU+28}, v{vU+29}, 4, v{vU+28}")
    GATE()
    A("L_sexit:")
    A("s_endpgm")

    A("L_helper_issue:")
    vmh = VM(A)
    srd(SRD_WS, sWS, 0x1000000)
    srd(SRD_Q, sV if hmode == "contig" else sX, 0x4000000 if hmode == "contig" else 0)
    sSF, sRB = 53, 54
    A(f"s_and_b32 s{sSF}, s2, 7"); A(f"s_lshl_b32 s{sSF}, s{sSF}, 3"); A(f"s_lshr_b32 s{sT0}, s2, 3"); A(f"s_and_b32 s{sT1}, s{sT0}, 7"); A(f"s_add_u32 s{sSF}, s{sSF}, s{sT1}")
    A(f"s_lshr_b32 s{sRB}, s{sT0}, 3")
    A(f"v_lshrrev_b32 v{vF1}, 3, v{vC}"); A(f"v_lshl_add_u32 v{vF1}, v{vF1}, 2, v{vG}")
    A(f"v_mul_u32_u24 v{vF1}, 7168, v{vF1}")
    A(f"v_and_b32 v{vWD}, 7, v{vC}"); A(f"v_lshl_add_u32 v{vF1}, v{vWD}, 4, v{vF1}")
    A(f"v_mov_b32 v{vWD2}, 0x40000000")
    A(f"v_cmp_gt_u32 vcc, 7, v{vWD}")
    A(f"v_cndmask_b32 v{vF1}, v{vWD2}, v{vF1}, vcc")
    A(f"s_and_b32 s{sT0}, s{sHW}, 1"); A(f"s_cmp_eq_u32 s{sT0}, 0")
    A(f"s_cselect_b32 s{sT2}, s{sWG}, s{sWU}"); A(f"s_cselect_b32 s{sT3}, s{sWG+1}, s{sWU+1}")
    A(f"s_mul_i32 s{sT0}, s{sSF}, 112")
    A(f"s_add_u32 s{SRD_B}, s{sT2}, s{sT0}"); A(f"s_addc_u32 s{SRD_B+1}, s{sT3}, 0")
    A(f"s_mov_b32 s{SRD_B+2}, {1024*7168 - 63*112}"); A(f"s_mov_b32 s{SRD_B+3}, 0x20000")
    A(f"s_lshl_b32 s{sT0}, s{sRB}, 8"); A(f"s_lshr_b32 s{sT1}, s{sHW}, 1"); A(f"s_lshl_b32 s{sT1}, s{sT1}, 7")
    A(f"s_add_u32 s{sT0}, s{sT0}, s{sT1}"); A(f"s_mul_i32 s{sRUN}, s{sT0}, 7168")
    A(f"v_lshlrev_b32 v{vWD}, 11, v{vG}")
    A(f"v_lshl_add_u32 v{vWD}, v{vC}, 4, v{vWD}")
    A(f"s_cmp_lg_u32 s{sHW}, 3"); A("s_cbranch_scc0 L_wd_oob")
    A(f"v_mov_b32 v{vWD2}, v{vWD}")
    A("L_wd_oob:")
    A(f"s_mul_i32 s{sT0}, s{sH}, {112*2048}"); A(f"s_lshl_b32 s{sT1}, s{sSUB}, 8"); A(f"s_add_u32 s{sT0}, s{sT0}, s{sT1}")
    srd(SRD_C, sWD, 111 * 2048 + 256, add=sT0)
    A(f"s_lshl_b32 s{sT0}, s{sH}, 18"); A(f"s_add_u32 s{sT0}, s{sT0}, s{sT1}")
    srd(SRD_D, sWO, 127 * 2048 + 256, add=sT0)
    sHB = sCNT
    A(f"s_lshl_b32 s{sHB}, s{sHW}, 16")
    def h_issue(n):
        if n >= 32: return
        if hmode == "contig":
            A(f"s_lshl_b32 s{sOFF}, s2, 17"); A(f"s_lshl_b32 s{sT5}, s{sHW}, 10"); A(f"s_add_u32 s{sOFF}, s{sOFF}, s{sT5}"); A(f"s_add_u32 s{sOFF}, s{sOFF}, {n*4096}")
            A(f"buffer_load_dwordx4 {r4(slot(n))}, v{vL16}, s[{SRD_Q}:{SRD_Q+3}], s{sOFF} offen {wflag}")
        elif hmode == "none":
            A(f"s_mov_b32 s{sOFF}, 0")
            A(f"buffer_load_dwordx4 {r4(slot(n))}, v{vL16}, s[{SRD_A}:{SRD_A+3}], s{sOFF} offen")
        elif n < 16:
            A(f"s_add_u32 s{sOFF}, s{sRUN}, {n*57344}")
            A(f"buffer_load_dwordx4 {r4(slot(n))}, v{vF1}, s[{SRD_B}:{SRD_B+3}], s{sOFF} offen {wflag}")
        elif n < 24:
            A(f"s_add_u32 s{sOFF}, s{sHB}, {(n-16)*8192}")
            A(f"buffer_load_dwordx4 {r4(slot(n))}, v{vWD if n < 20 else vWD2}, s[{SRD_C}:{SRD_C+3}], s{sOFF} offen {wflag}")
        else:
            A(f"s_add_u32 s{sOFF}, s{sHB}, {(n-24)*8192}")
            A(f"buffer_load_dwordx4 {r4(slot(n))}, v{vWD}, s[{SRD_D}:{SRD_D+3}], s{sOFF} offen {wflag}")
        vmh.issue(("h", n))
    A("s_waitcnt lgkmcnt(0)")
    A("s_barrier")
    A(f"s_add_u32 s{sTAG}, s{sTAG}, 1")
    A(f"s_cmp_lg_u32 s{sHW}, 0"); A("s_cbranch_scc1 L_noclear")
    if "clear" in skip: A("s_branch L_noclear")
    for k in range(4): A(f"v_mov_b32 v{vD2+k}, -1")
    A(f"s_add_u32 s{sT1}, s{sBOXC}, {WS_X3}")
    A(f"buffer_store_dwordx4 {r4(vD2)}, v{vL16}, {WSR}, s{sT1} offen sc1")
    A(f"s_lshl_b32 s{sT0}, s{sBOXH}, 11"); A(f"s_add_u32 s{sT1}, s{sT0}, {WS_X2}")
    A(f"buffer_store_dwordx4 {r4(vD2)}, v{vL16}, {WSR}, s{sT1} offen sc1")
    A(f"buffer_store_dwordx4 {r4(vD2)}, v{vL16}, {WSR}, s{sT1} offen offset:1024 sc1")
    A(f"s_lshl_b32 s{sT1}, s{sBOXH}, 7"); A(f"s_add_u32 s{sT1}, s{sT1}, {WS_XM}")
    A("s_mov_b64 exec, 0xff")
    A(f"buffer_store_dwordx4 {r4(vD2)}, v{vL16}, {WSR}, s{sT1} offen sc1")
    A("s_mov_b64 exec, -1")
    A("L_noclear:")
    for n in range(WH): h_issue(n)
    masks()
    if qby == "helper":
        A(f"s_cmp_lg_u32 s{sHW}, 0"); A("s_cbranch_scc1 L_hstart")
        QEXCH(lambda: A("s_waitcnt vmcnt(0)"))
    else:
        A(f"s_cmp_lg_u32 s{sHW}, 0"); A("s_cbranch_scc1 L_hstart")
        A(f"s_waitcnt vmcnt({WH})")
        lds_signal(C_CLR)
    A("L_hstart:")
    vm = vmh
    vm.q = [("h", n) for n in range(WH)]; vm.seen.update(vm.q)
    for n in range(32 - WH):
        vm.wait(("h", n))
        h_issue(n + WH)
        if n in (0, 7, 15, 23): stamp({0: 13, 7: 14, 15: 15, 23: 18}[n])
    zero4(vD); zero4(vD2)
    A(f"s_lshl_b32 s{sT0}, s{sRB}, 8"); A(f"s_lshr_b32 s{sT1}, s{sHW}, 1"); A(f"s_lshl_b32 s{sT1}, s{sT1}, 7"); A(f"s_add_u32 s{sT0}, s{sT0}, s{sT1}")
    A(f"v_add_u32 v{vU+25}, s{sT0}, v{vXA}")
    lds_wait(C_XDUP, 4)
    vm.wait(("h", 15))
    for half in range(2):
        for q4 in range(4): A(f"ds_read_b128 {r4(vX+4*q4)}, v{vU+25} offset:{XDUP + half*64 + q4*16}")
        A("s_waitcnt lgkmcnt(0)")
        for n in range(8):
            mfma_row(vA0, vX + 2*n, slot(8*half + n), vD)
            mfma_row(vA1, vX + 2*n + 1, slot(8*half + n), vD2)
    A("s_nop 7")
    for r in range(4): A(f"v_add_f32_dpp v{vD+r}, v{vD2+r}, v{vD+r} row_ror:8 row_mask:0xf bank_mask:0xf")
    vRA = vU + 24
    A(f"s_and_b32 s{sT0}, s{sHW}, 1"); A(f"s_lshl_b32 s{sT0}, s{sT0}, 10")
    A(f"v_add_u32 v{vRA}, s{sT0}, v{vL16}")
    A(f"s_cmp_lt_u32 s{sHW}, 2"); A("s_cbranch_scc1 L_f1_keep")
    A(f"ds_write_b128 v{vRA}, {r4(vD)} offset:{RED}")
    lds_signal(C_H1)
    A("L_f1_keep:")
    stamp(2)
    A(f"s_cmp_lt_u32 s{sHW}, 2"); A("s_cbranch_scc0 L_f1_done")
    lds_wait(C_H1, 2)
    A(f"ds_read_b128 {r4(vD2)}, v{vRA} offset:{RED}")
    A("s_waitcnt lgkmcnt(0)")
    for r in range(4): A(f"v_add_f32 v{vD+r}, v{vD+r}, v{vD2+r}")
    A(f"s_cmp_eq_u32 s{sHW}, 0"); A("s_cbranch_scc1 L_f1_h0")
    A(f"ds_write_b128 v{vL16}, {r4(vD)} offset:{RED + 2048}")
    lds_signal(C_H1B)
    A("s_branch L_f1_done")
    A("L_f1_h0:")
    A(f"v_and_b32 v{vU+25}, 7, v{vC}"); A(f"v_lshl_add_u32 v{vU+25}, v{vG}, 4, v{vU+25}"); A(f"v_lshlrev_b32 v{vU+25}, 4, v{vU+25}")
    lds_wait(C_H1B, 1)
    A(f"ds_read_b128 {r4(vD2)}, v{vU+25} offset:{RED + 2048}")
    A(f"v_cmp_lt_u32 vcc, 7, v{vC}")
    A("s_waitcnt lgkmcnt(0)")
    for r in range(4): A(f"v_cndmask_b32 v{vD+r}, v{vD+r}, v{vD2+r}, vcc")
    A(f"v_and_b32 v{vU+26}, 7, v{vC}"); A(f"v_cmp_gt_u32 vcc, 7, v{vU+26}")
    for r in range(4): A(f"v_cndmask_b32 v{vD+r}, 0, v{vD+r}, vcc")
    int_sum(range(vD, vD + 4), vD2)
    for k in (8, 4, 2, 1): A(f"v_add_u32_dpp v{vD2}, v{vD2}, v{vD2} row_ror:{k} row_mask:0xf bank_mask:0xf")
    A(f"v_sub_u32 v{vD2}, s{sTAG}, v{vD2}")
    A(f"v_cmp_eq_u32 vcc, 15, v{vC}")
    A(f"v_cndmask_b32 v{vD}, v{vD}, v{vD2}, vcc")
    A(f"s_lshl_b32 s{sT0}, s{sSF}, 2"); A(f"s_add_u32 s{sT0}, s{sT0}, s{sRB}"); A(f"s_lshl_b32 s{sT0}, s{sT0}, 10"); A(f"s_add_u32 s{sT0}, s{sT0}, {WS_X1}")
    if "x1pub" not in skip: A(f"buffer_store_dwordx4 {r4(vD)}, v{vL16}, {WSR}, s{sT0} offen sc1")
    lds_wait(C_PROG, 4 * PX1, nap=32)
    A(f"s_lshl_b32 s{sT5}, s{sTAG}, 3")
    def x1_issue():
        A(f"s_lshl_b32 s{sT0}, s{sH}, 13"); A(f"s_add_u32 s{sT0}, s{sT0}, {WS_X1}")
        for k in range(8):
            if k == 4: A(f"s_add_u32 s{sT0}, s{sT0}, 4096")
            A(f"buffer_load_dwordx4 {r4(slot(k))}, v{vL16}, {WSR}, s{sT0} offen offset:{(k&3)*1024} sc1")
    if "x1get" not in skip: poll_sum("L_x1poll", x1_issue, range(slot(0), slot(0) + 32), vT, sT5, nap=32, rowreduce=True, masked=False)
    stamp(3)
    for st_ in range(2):
        for r in range(4):
            A(f"v_add_f32 v{vT+4*st_+r}, v{slot(4*st_)+r}, v{slot(4*st_+1)+r}"); A(f"v_add_f32 v{vT+8+r}, v{slot(4*st_+2)+r}, v{slot(4*st_+3)+r}")
        for r in range(4): A(f"v_add_f32 v{vT+4*st_+r}, v{vT+4*st_+r}, v{vT+8+r}")
    for r in range(8): A(f"v_mov_b32_dpp v{vX+r}, v{vT+r} row_ror:8 row_mask:0xf bank_mask:0xf")
    A(f"v_cmp_gt_u32 vcc, 7, v{vC}")
    for r in range(8):
        A(f"v_cndmask_b32 v{vT+r}, 0, v{vT+r}, vcc"); A(f"v_cndmask_b32 v{vX+r}, 0, v{vX+r}, vcc")
    A(f"v_lshrrev_b32 v{vU+25}, 1, v{vG}"); A(f"v_mul_u32_u24 v{vU+25}, {4*HSTR}, v{vU+25}")
    A(f"v_and_b32 v{vU+26}, 1, v{vG}"); A(f"v_lshl_add_u32 v{vU+26}, v{vC}, 1, v{vU+26}")
    A(f"v_lshl_add_u32 v{vU+25}, v{vU+26}, 2, v{vU+25}")
    for st_ in range(2):
        for r in range(4):
            bf16r(vT + 4*st_ + r, vT + 4*st_ + r); bf16r(vX + 4*st_ + r, vX + 4*st_ + r)
            silu(vT + 8, vT + 4*st_ + r, vT + 9, vT + 10)
            A(f"v_mul_f32 v{vT+8}, v{vT+8}, v{vX+4*st_+r}")
            A(f"v_cvt_pk_bf16_f32 v{vT+4*st_+r}, v{vT+8}, v{vT+8}")
        m = 0x007f007f if st_ == 0 else 0x01ff01ff
        A(f"s_mov_b32 exec_lo, {hex(m)}"); A(f"s_mov_b32 exec_hi, {hex(m)}")
        for r in range(4): A(f"ds_write_b32 v{vU+25}, v{vT+4*st_+r} offset:{HDUP + r*HSTR + st_*56}")
        A("s_mov_b64 exec, -1")
    lds_signal(C_H2)
    A("L_f1_done:")
    lds_wait(C_H2, 1, nap=32)
    A(f"v_mul_u32_u24 v{vU+25}, {HSTR}, v{vBG}")
    A(f"s_lshl_b32 s{sT0}, s{sHW}, 5")
    A(f"v_add_u32 v{vU+25}, s{sT0}, v{vU+25}")
    A(f"ds_read_b128 {r4(vX)}, v{vU+25} offset:{HDUP}")
    A(f"ds_read_b128 {r4(vX+4)}, v{vU+25} offset:{HDUP+16}")
    zero4(vD)
    A("s_waitcnt vmcnt(0) lgkmcnt(0)")
    for n in range(8): mfma_row(vA0 if n % 2 == 0 else vA1, vX + n, slot(16 + n), vD)
    vRA = vU + 24
    A(f"s_lshl_b32 s{sT0}, s{sHW}, 10")
    A(f"v_add_u32 v{vRA}, s{sT0}, v{vL16}")
    vPL = vU + 27
    A(f"v_lshrrev_b32 v{vPL}, 1, v{vG}"); A(f"v_lshlrev_b32 v{vPL}, 9, v{vPL}")
    A(f"v_and_b32 v{vU+26}, 1, v{vG}"); A(f"v_lshl_add_u32 v{vPL}, v{vU+26}, 4, v{vPL}")
    A(f"v_lshl_add_u32 v{vPL}, v{vC}, 5, v{vPL}")
    A(f"v_lshrrev_b32 v{vU+57}, 2, v{vPL}")
    A(f"s_lshr_b32 s{sK4}, s{sH}, 3")
    vGA = vU + 28; vOA = vU + 30
    A(f"v_lshlrev_b32 v{vGA}, 10, v{vG}")
    A(f"v_bfe_u32 v{vU+26}, v{vLANE}, 3, 1"); A(f"v_lshl_add_u32 v{vGA}, v{vU+26}, 9, v{vGA}")
    A(f"v_and_b32 v{vU+29}, 7, v{vLANE}"); A(f"v_lshl_add_u32 v{vGA}, v{vU+29}, 4, v{vGA}")
    A(f"v_lshlrev_b32 v{vOA}, 11, v{vU+26}")
    A(f"v_lshl_add_u32 v{vOA}, v{vU+29}, 3, v{vOA}")
    A(f"s_lshl_b32 s{sT0}, s{sSUB}, 8"); A(f"s_lshl_b32 s{sT1}, s{sK4}, 6"); A(f"s_add_u32 s{sT0}, s{sT0}, s{sT1}")
    A(f"v_add_u32 v{vOA}, s{sT0}, v{vOA}")
    A(f"s_and_b32 s{sT0}, s{sH}, 7"); A(f"s_cmp_eq_u32 s{sT0}, s{sSUB}"); A(f"s_cselect_b32 s{sISC}, 1, 0")
    A(f"s_cmp_eq_u32 s{sHW}, 0"); A("s_cbranch_scc1 L_f2_h0")
    A(f"ds_write_b128 v{vRA}, {r4(vD)} offset:{RED}")
    lds_signal(C_H3)
    A("s_branch L_tail")
    A("L_f2_h0:")
    lds_wait(C_H3, 3)
    for w in range(1, 4): A(f"ds_read_b128 {r4(vT+4*w)}, v{vL16} offset:{RED + w*1024}")
    A("s_waitcnt lgkmcnt(0)")
    for r in range(4):
        for w in range(1, 4): A(f"v_add_f32 v{vD+r}, v{vD+r}, v{vT+4*w+r}")
    for k in range(4): A(f"v_mov_b32 v{vT+k}, -1")
    for w in range(1, 4): A(f"ds_write_b128 v{vL16}, {r4(vT)} offset:{RED + w*1024}")
    vYC = vU + 56
    int_sum(range(vD, vD + 4), vYC)
    A(f"v_sub_u32 v{vYC}, s{sTAG}, v{vYC}")
    A(f"v_lshlrev_b32 v{vYC+1}, 2, v{vLANE}")
    A(f"ds_write_b128 v{vL16}, {r4(vD)} offset:{QD}")
    A(f"ds_write_b32 v{vYC+1}, v{vYC} offset:{QD+1024}")
    lds_signal(C_YP)
    sGB = sT3
    def g_issue(base_const):
        def f(setbase):
            A(f"s_lshl_b32 s{sGB}, s{sSUB}, 15"); A(f"s_lshl_b32 s{sT1}, s{sK4}, 7"); A(f"s_add_u32 s{sGB}, s{sGB}, s{sT1}"); A(f"s_add_u32 s{sGB}, s{sGB}, {base_const}")
            for tt in range(8):
                A(f"buffer_load_dwordx4 {r4(setbase+4*tt)}, v{vGA}, {WSR}, s{sGB} offen sc1")
                if tt < 7: A(f"s_add_u32 s{sGB}, s{sGB}, 4096")
        return f
    A("L_xm:")
    stamp(10)
    if ml2: lds_wait(C_PROG, 4 * 8, nap=32)
    lds_wait(C_MLW, 4, nap=napml)
    if prio: A(f"s_setprio {prio}")
    vML = vT
    A(f"v_mov_b32 v{vTMP}, 0")
    A(f"ds_read_b128 {r4(vML)}, v{vTMP} offset:{MLW}")
    A(f"ds_read_b128 {r4(vML+4)}, v{vTMP} offset:{MLW+16}")
    A("s_waitcnt lgkmcnt(0)")
    vMM = vT + 8; vLL = vT + 9; vFW = vT + 10
    A(f"v_max_f32 v{vMM}, v{vML}, v{vML+2}")
    A(f"v_max3_f32 v{vMM}, v{vMM}, v{vML+4}, v{vML+6}")
    for w in range(4): exp_diff(vFW + w, vML + 2 * w, vMM)
    A(f"v_mul_f32 v{vLL}, v{vFW}, v{vML+1}")
    for w in range(1, 4): A(f"v_fmac_f32 v{vLL}, v{vFW+w}, v{vML+2*w+1}")
    A(f"s_lshl_b32 s{sT0}, s{sBOXH}, 7"); A(f"s_add_u32 s{sT0}, s{sT0}, {WS_XM}")
    A(f"v_mov_b32 v{vTMP}, 0")
    A("s_mov_b64 exec, 1")
    A(f"buffer_store_dwordx2 v[{vMM}:{vMM+1}], v{vTMP}, {WSR}, s{sT0} offen sc1")
    A("s_mov_b64 exec, -1")
    stamp(11)
    A(f"v_and_b32 v{vU+25}, 3, v{vLANE}"); A(f"v_lshlrev_b32 v{vU+25}, 7, v{vU+25}")
    A(f"s_lshl_b32 s{sT1}, s{sH}, 3"); A(f"s_lshl_b32 s{sT0}, s{sB}, 2"); A(f"s_add_u32 s{sT1}, s{sT1}, s{sT0}"); A(f"s_lshl_b32 s{sT1}, s{sT1}, 7"); A(f"s_add_u32 s{sT1}, s{sT1}, {WS_XM}")
    def xm_issue(sb): A(f"buffer_load_dwordx2 v[{sb}:{sb+1}], v{vU+25}, {WSR}, s{sT1} offen sc1")
    def xm_proc(sb):
        A(f"v_mov_b32 v{vT}, v{sb}"); A(f"v_mov_b32 v{vT+1}, v{sb+1}")
    poll2("L_xmp", xm_issue, 1, slot(0), slot(1), 2, xm_proc, vT + 4)
    A(f"v_max_f32_dpp v{vT+2}, v{vT}, v{vT} quad_perm:[1,0,3,2] row_mask:0xf bank_mask:0xf")
    A(f"v_max_f32_dpp v{vT+2}, v{vT+2}, v{vT+2} quad_perm:[2,3,0,1] row_mask:0xf bank_mask:0xf")
    exp_diff(vT + 3, vT, vT + 2)
    A(f"v_mul_f32 v{vT+3}, v{vT+3}, v{vT+1}")
    A(f"v_add_f32_dpp v{vT+3}, v{vT+3}, v{vT+3} quad_perm:[1,0,3,2] row_mask:0xf bank_mask:0xf")
    A(f"v_add_f32_dpp v{vT+3}, v{vT+3}, v{vT+3} quad_perm:[2,3,0,1] row_mask:0xf bank_mask:0xf")
    A(f"v_rcp_f32 v{vT+5}, v{vT+3}")
    A(f"v_fma_f32 v{vT+6}, -v{vT+3}, v{vT+5}, 1.0")
    A(f"v_fma_f32 v{vT+5}, v{vT+6}, v{vT+5}, v{vT+5}")
    A(f"v_mov_b32 v{vT+4}, v{vT+2}")
    A(f"v_mov_b32 v{vTMP}, 0")
    A("s_mov_b64 exec, 1")
    A(f"ds_write_b64 v{vTMP}, v[{vT+4}:{vT+5}] offset:{MLF}")
    A("s_mov_b64 exec, -1")
    lds_signal(C_MLRDY)
    if prio: A("s_setprio 0")
    stamp(12)
    A("s_waitcnt vmcnt(0)")
    A(f"s_cmp_eq_u32 s{sISC}, 0"); A("s_cbranch_scc1 L_tail")
    A(f"v_and_b32 v{vU+25}, 31, v{vLANE}"); A(f"v_lshlrev_b32 v{vU+25}, 14, v{vU+25}")
    A(f"s_lshl_b32 s{sT3}, s{sSUB}, 11"); A(f"s_add_u32 s{sT3}, s{sT3}, 1008")
    def pf_issue():
        A(f"buffer_load_dwordx4 {r4(slot(0))}, v{vU+25}, {WSR}, s{sT3} offen sc1")
        A(f"buffer_load_dword v{slot(1)}, v{vU+25}, {WSR}, s{sT3} offen offset:268 sc1")
    poll_sum("L_proof", pf_issue, range(slot(0), slot(0) + 5), vT, sTAG, nap=32)
    vXO = vU + 36
    A(f"buffer_load_dwordx2 v[{vU+40}:{vU+41}], v{vOA}, s[{SRD_A}:{SRD_A+3}], 0 offen")
    A("s_waitcnt vmcnt(0)")
    A(f"v_lshlrev_b32 v{vXO}, 16, v{vU+40}"); A(f"v_and_b32 v{vXO+1}, 0xffff0000, v{vU+40}")
    A(f"v_lshlrev_b32 v{vXO+2}, 16, v{vU+41}"); A(f"v_and_b32 v{vXO+3}, 0xffff0000, v{vU+41}")

    A("L_tail:")
    vX2A = vU + 44
    A(f"v_bfe_u32 v{vU+26}, v{vLANE}, 2, 2")
    A(f"v_lshrrev_b32 v{vX2A}, 5, v{vLANE}")
    A(f"v_lshl_add_u32 v{vX2A}, v{vX2A}, 2, v{vU+26}")
    A(f"v_lshlrev_b32 v{vX2A}, 11, v{vX2A}")
    A(f"v_bfe_u32 v{vU+26}, v{vLANE}, 4, 1"); A(f"v_and_b32 v{vU+46}, 3, v{vLANE}")
    A(f"v_lshl_add_u32 v{vU+46}, v{vU+26}, 2, v{vU+46}")
    A(f"v_lshl_add_u32 v{vX2A}, v{vU+46}, 4, v{vX2A}")
    A(f"s_lshl_b32 s{sT0}, s{sHW}, 7")
    A(f"v_add_u32 v{vX2A}, s{sT0}, v{vX2A}")
    vOW = vU + 47; vOR = vU + 48
    A(f"v_lshrrev_b32 v{vOW}, 5, v{vLANE}"); A(f"v_mul_u32_u24 v{vOW}, {4*OSTR}, v{vOW}")
    A(f"v_lshl_add_u32 v{vOW}, v{vU+46}, 2, v{vOW}")
    A(f"s_mul_i32 s{sT0}, s{sHW}, 384")
    A(f"v_add_u32 v{vOW}, s{sT0}, v{vOW}")
    A(f"v_mul_u32_u24 v{vOR}, {OSTR}, v{vBG}"); A(f"v_add_u32 v{vOR}, s{sT0}, v{vOR}")
    sX2 = sT3
    A(f"s_lshl_b32 s{sX2}, s{sH}, 14"); A(f"s_add_u32 s{sX2}, s{sX2}, {WS_X2}")
    zero4(vD)
    A("s_waitcnt vmcnt(0) lgkmcnt(0)")
    A("s_barrier")
    stamp(5)
    def x2_issue(sb):
        for w in range(4):
            A(f"buffer_load_dwordx4 {r4(sb+4*w)}, v{vX2A}, {WSR}, s{sX2} offen offset:{w*512} sc1")
    def x2_proc(sb):
        for r in range(4):
            A(f"v_add_f32 v{vT+r}, v{sb+r}, v{sb+4+r}"); A(f"v_add_f32 v{vT+4+r}, v{sb+8+r}, v{sb+12+r}")
        for r in range(4): A(f"v_add_f32 v{vT+r}, v{vT+r}, v{vT+4+r}")
    if depth > 1: poll_pipe("L_x2", lambda: x2_issue(slot(0)), 4, range(slot(0), slot(0) + 16), vT + 8, depth)
    else: poll_masked("L_x2", lambda: x2_issue(slot(0)), range(slot(0), slot(0) + 16), vT + 8, nap=napx2)
    x2_proc(slot(0))
    stamp(6)
    for k in (4, 8):
        for r in range(4):
            A(f"v_add_f32_dpp v{vT+r}, v{vT+r}, v{vT+r} row_ror:{k} row_mask:0xf bank_mask:0xf")
    for r in range(4):
        A(f"v_cvt_pk_bf16_f32 v{vT+r}, v{vT+r}, v{vT+r}")
    for r in range(4):
        A(f"ds_write_b32 v{vOW}, v{vT+r} offset:{ODUP + r*OSTR}")
    A(f"ds_read_b128 {r4(vX)}, v{vOR} offset:{ODUP}")
    A(f"ds_read_b128 {r4(vX+4)}, v{vOR} offset:{ODUP+16}")
    A("s_waitcnt lgkmcnt(0)")
    mfma_rows([vX + n for n in range(8)], [slot(24 + n) for n in range(8)], vD)
    A(f"s_cmp_eq_u32 s{sHW}, 0"); A("s_cbranch_scc1 L_x3_h0")
    A(f"ds_write_b128 v{vRA}, {r4(vD)} offset:{RED}")
    A("s_endpgm")
    A("L_x3_h0:")
    A(f"s_mov_b32 s{sSPIN2}, {SPIN_LIMIT*4}")
    A("L_r3:")
    for w in range(1, 4): A(f"ds_read_b128 {r4(vT+4*w)}, v{vL16} offset:{RED + w*1024}")
    A("s_waitcnt lgkmcnt(0)")
    check_sentinel(range(vT + 4, vT + 16), vT)
    A("s_cbranch_scc1 L_r3_ok")
    A(f"s_sub_u32 s{sSPIN2}, s{sSPIN2}, 1"); A(f"s_cmp_lg_u32 s{sSPIN2}, 0"); A("s_cbranch_scc1 L_r3")
    A("L_r3_ok:")
    for r in range(4):
        A(f"v_add_f32 v{vD+r}, v{vD+r}, v{vT+4+r}"); A(f"v_add_f32 v{vT+8+r}, v{vT+8+r}, v{vT+12+r}")
    for r in range(4): A(f"v_add_f32 v{vD+r}, v{vD+r}, v{vT+8+r}")
    A(f"s_add_u32 s{sT0}, s{sBOXC}, {WS_X3}")
    A(f"buffer_store_dwordx4 {r4(vD)}, v{vPL}, {WSR}, s{sT0} offen sc1")
    stamp(7)
    A(f"s_cmp_eq_u32 s{sISC}, 0"); A("s_cbranch_scc1 L_fin")
    vGG = vU + 32
    A(f"v_and_b32 v{vU+25}, 15, v{vLANE}"); A(f"v_lshlrev_b32 v{vU+25}, 4, v{vU+25}")
    if gearly:
        lds_wait(C_G, 1)
        A(f"ds_read_b128 {r4(vGG)}, v{vU+25} offset:{RED}")
    if depth > 1: poll_pipe("L_g3", lambda: g_issue(WS_X3)(slot(8)), 8, range(slot(8), slot(8) + 32), vT + 4, depth)
    else: poll_masked("L_g3", lambda: g_issue(WS_X3)(slot(8)), range(slot(8), slot(8) + 32), vT + 4, nap=napx3)
    g_process(slot(8))
    g_finish()
    if not gearly:
        lds_wait(C_G, 1)
        A(f"ds_read_b128 {r4(vGG)}, v{vU+25} offset:{RED}")
    A("s_waitcnt lgkmcnt(0)")
    for r in range(4):
        A(f"v_mul_f32 v{vT+r}, v{vT+r}, v{vGG+r}")
    for r in range(4): bf16r(vT + r, vT + r)
    for r in range(4): A(f"v_add_f32 v{vT+r}, v{vT+r}, v{vXO+r}")
    A(f"v_cvt_pk_bf16_f32 v{vT+4}, v{vT}, v{vT+1}")
    A(f"v_cvt_pk_bf16_f32 v{vT+5}, v{vT+2}, v{vT+3}")
    srd(SRD_B, sOUT, 4096)
    A("s_mov_b64 exec, 0xffff")
    A(f"buffer_store_dwordx2 v[{vT+4}:{vT+5}], v{vOA}, s[{SRD_B}:{SRD_B+3}], 0 offen {outflag}")
    A(f"s_cmp_lg_u32 s2, 0"); A("s_cbranch_scc1 L_noepoch")
    A(f"v_mov_b32 v{vT}, s{sTAG}"); A(f"v_mov_b32 v{vT+1}, {WS_Z}")
    A("s_mov_b64 exec, 1")
    A(f"buffer_store_dword v{vT}, v{vT+1}, {WSR}, 0 offen sc1")
    A("L_noepoch:")
    A("s_mov_b64 exec, -1")
    A("L_fin:")
    if dbgtime:
        A(f"s_memrealtime s[{sT4}:{sT5}]"); A("s_waitcnt lgkmcnt(0)")
        A(f"s_sub_u32 s{sT4}, s{sT4}, s{sSTAMP0}")
        A(f"s_cmp_ge_u32 s2, 64"); A("s_cbranch_scc1 L_end")
        A(f"s_lshl_b32 s{sT0}, s2, 2"); A(f"v_mov_b32 v{vT}, s{sT4}"); A(f"v_mov_b32 v{vT+1}, s{sT0}")
        A("s_mov_b64 exec, 1")
        A(f"global_store_dword v{vT+1}, v{vT}, s[{sDBG}:{sDBG+1}]")
    if stamps:
        stamp(8)
        stamp_store(256)
    A("L_end:")
    A("s_endpgm")

    probs = A.check_branches()
    for p in probs: print("HAZARD across branch:", p, file=sys.stderr)
    out = HEADER
    out += f"; @launch grid=(256,1,1) block=(512,1,1) lds={LDS_BYTES}\n"
    out += '.amdgcn_target "amdgcn-amd-amdhsa--gfx950"\n.text\n'
    out += f".globl {KNAME}\n.p2align 8\n.type {KNAME},@function\n"
    out += A.text()
    out += f""".section .rodata,"a"
.p2align 6
.amdhsa_kernel {KNAME}
  .amdhsa_next_free_vgpr 256
  .amdhsa_next_free_sgpr 96
  .amdhsa_accum_offset 256
  .amdhsa_group_segment_fixed_size 0
  .amdhsa_kernarg_size 96
  .amdhsa_user_sgpr_count 2
  .amdhsa_user_sgpr_kernarg_segment_ptr 1
  .amdhsa_system_sgpr_workgroup_id_x 1
  .amdhsa_float_denorm_mode_32 3
.end_amdhsa_kernel
"""
    return out

if __name__ == "__main__":
    kw = eval("dict(" + (sys.argv[2] if len(sys.argv) > 2 else "") + ")")
    open(sys.argv[1], "w").write(gen(**kw))
```
